```python
import torch

def _softmax(x, axis=-1):
    return torch.softmax(x, dim=axis)

def _gelu(x):
    return torch.nn.functional.gelu(x, approximate='tanh')

def _silu(x):
    return torch.nn.functional.silu(x)

def _sigmoid(x):
    return torch.sigmoid(x)

def _layernorm(x, axis=-1, eps=1e-05):
    m = x.mean(dim=axis, keepdim=True)
    v = x.var(dim=axis, keepdim=True, unbiased=False)
    return (x - m) / torch.sqrt(v + eps)

def _scatter_add(tgt, idx, src, axis=0):
    return tgt.clone().index_add_(axis, idx, src)

def _segment_sum(src, seg, n):
    out = torch.zeros((n,) + src.shape[1:], dtype=src.dtype)
    return out.index_add_(0, seg, src)

def _pad(x, pw):
    flat = tuple((v for pair in reversed(pw) for v in pair))
    return torch.nn.functional.pad(x, flat)
kernel_name = 'concat_heads__memory_aug_recurrent_mem_tr__memory_aug_recurrent_mem_tr__prompt'

def setup_inputs():

    _w = lambda a: (lambda t: t.to(torch.bfloat16) if t.is_floating_point() else t)(torch.as_tensor(a))

    def _A_setup():
        B, S, Dm = (1, 2048, 512)
        H, Dh = (32, 128)
        M, seg = (8, 32)
        seg = min(seg, S)
        S = S // seg * seg
        return {'x': _w((lambda *s: torch.randn(*s, dtype=torch.bfloat16) * 0.05)(B, S, Dm)), 'mem0': _w((lambda *s: torch.randn(*s, dtype=torch.bfloat16) * 0.4)(B, M, Dm)), 'Wq': _w((lambda *s: torch.randn(*s, dtype=torch.bfloat16) * 6.4)(Dm, H, Dh) * Dm ** (-0.5)), 'Wk': _w((lambda *s: torch.randn(*s, dtype=torch.bfloat16) * 6.4)(Dm, H, Dh) * Dm ** (-0.5)), 'Wv': _w((lambda *s: torch.randn(*s, dtype=torch.bfloat16) * 0.4)(Dm, H, Dh) * Dm ** (-0.5)), 'Wo': _w((lambda *s: torch.randn(*s, dtype=torch.bfloat16) * 0.4)(H, Dh, Dm) * (H * Dh) ** (-0.5)), 'seg_len': seg}
    _A_in = _A_setup()

    def _B_setup():
        B, S, Dm = (1, 2048, 512)
        H, Dh = (32, 128)
        M, seg = (8, 32)
        seg = min(seg, S)
        S = S // seg * seg
        return {'x': _w((lambda *s: torch.randn(*s, dtype=torch.bfloat16) * 0.05)(B, S, Dm)), 'mem0': _w((lambda *s: torch.randn(*s, dtype=torch.bfloat16) * 0.4)(B, M, Dm)), 'Wq': _w((lambda *s: torch.randn(*s, dtype=torch.bfloat16) * 6.4)(Dm, H, Dh) * Dm ** (-0.5)), 'Wk': _w((lambda *s: torch.randn(*s, dtype=torch.bfloat16) * 6.4)(Dm, H, Dh) * Dm ** (-0.5)), 'Wv': _w((lambda *s: torch.randn(*s, dtype=torch.bfloat16) * 0.4)(Dm, H, Dh) * Dm ** (-0.5)), 'Wo': _w((lambda *s: torch.randn(*s, dtype=torch.bfloat16) * 0.4)(H, Dh, Dm) * (H * Dh) ** (-0.5)), 'seg_len': seg}
    _B_in = _B_setup()
    return {'A_x': _A_in['x'], 'A_mem0': _A_in['mem0'], 'A_Wq': _A_in['Wq'], 'A_Wk': _A_in['Wk'], 'A_Wv': _A_in['Wv'], 'A_Wo': _A_in['Wo'], 'A_seg_len': _A_in['seg_len'], 'B_x': _B_in['x'], 'B_mem0': _B_in['mem0'], 'B_Wq': _B_in['Wq'], 'B_Wk': _B_in['Wk'], 'B_Wv': _B_in['Wv'], 'B_Wo': _B_in['Wo'], 'B_seg_len': _B_in['seg_len']}

def reference(A_x, A_mem0, A_Wq, A_Wk, A_Wv, A_Wo, A_seg_len, B_x, B_mem0, B_Wq, B_Wk, B_Wv, B_Wo, B_seg_len):

    def _A_ref(x, mem0, Wq, Wk, Wv, Wo, seg_len):
        B, S, Dm = x.shape
        H, Dh = (Wq.shape[1], Wq.shape[2])
        M = mem0.shape[1]
        scale = Dh ** (-0.5)
        n_seg = S // seg_len
        L = M + seg_len
        idx = torch.arange(L)
        mask = (idx[:, None] < M) | (idx[:, None] >= idx[None, :])
        mem = mem0
        outs = []
        for s in range(n_seg):
            xs = x[:, s * seg_len:(s + 1) * seg_len, :].clone()
            h = torch.concatenate([mem, xs], axis=1)
            q = torch.einsum('btd,dhe->bhte', h, Wq)
            k = torch.einsum('btd,dhe->bhte', h, Wk)
            v = torch.einsum('btd,dhe->bhte', h, Wv)
            scores = torch.einsum('bhqe,bhke->bhqk', q, k) * scale
            scores = torch.where(mask[None, None], scores, -1000000000.0)
            p = _softmax(scores, axis=-1)
            o = torch.einsum('bhqk,bhke->bhqe', p, v)
            o = torch.einsum('bhte,hed->btd', o, Wo)
            mem = o[:, :M, :].clone()
            outs.append(o[:, M:, :])
        return torch.concatenate(outs, axis=1)

    def _B_ref(x, mem0, Wq, Wk, Wv, Wo, seg_len):
        B, S, Dm = x.shape
        H, Dh = (Wq.shape[1], Wq.shape[2])
        M = mem0.shape[1]
        scale = Dh ** (-0.5)
        n_seg = S // seg_len
        L = M + seg_len
        idx = torch.arange(L)
        mask = (idx[:, None] < M) | (idx[:, None] >= idx[None, :])
        mem = mem0
        outs = []
        for s in range(n_seg):
            xs = x[:, s * seg_len:(s + 1) * seg_len, :].clone()
            h = torch.concatenate([mem, xs], axis=1)
            q = torch.einsum('btd,dhe->bhte', h, Wq)
            k = torch.einsum('btd,dhe->bhte', h, Wk)
            v = torch.einsum('btd,dhe->bhte', h, Wv)
            scores = torch.einsum('bhqe,bhke->bhqk', q, k) * scale
            scores = torch.where(mask[None, None], scores, -1000000000.0)
            p = _softmax(scores, axis=-1)
            o = torch.einsum('bhqk,bhke->bhqe', p, v)
            o = torch.einsum('bhte,hed->btd', o, Wo)
            mem = o[:, :M, :].clone()
            outs.append(o[:, M:, :])
        return torch.concatenate(outs, axis=1)
    a = _A_ref(A_x, A_mem0, A_Wq, A_Wk, A_Wv, A_Wo, A_seg_len)
    b = _B_ref(B_x, B_mem0, B_Wq, B_Wk, B_Wv, B_Wo, B_seg_len)
    return torch.concatenate([a, b], axis=-1)
```

```python
import re

REG_RE = re.compile(r'^(-|abs\()?([vas])(\d+|\[(\d+):(\d+)\])\)?$')

def parse_reg(tok):
    tok = tok.strip()
    if tok in ('vcc', 'exec', 'm0', 'scc'):
        return [(tok, 0)]
    if tok in ('vcc_lo', 'vcc_hi'): return [('vcc', 0)]
    if tok in ('exec_lo', 'exec_hi'): return [('exec', 0)]
    m = REG_RE.match(tok.replace('|', ''))
    if not m: return []
    k = m.group(2)
    if m.group(4) is not None:
        return [(k, i) for i in range(int(m.group(4)), int(m.group(5)) + 1)]
    return [(k, int(m.group(3)))]

TRANS = ('v_exp_f32', 'v_log_f32', 'v_rcp_f32', 'v_rsq_f32', 'v_sqrt_f32', 'v_sin_f32', 'v_cos_f32')

def mfma_passes(op):
    if '32x32x16' in op or '32x32x8' in op or '32x32x32' in op: return 8
    if '16x16x32' in op or '16x16x16' in op or '16x16x64' in op: return 4
    raise ValueError(op)

class Inst:
    def __init__(self, text):
        self.text = text
        t = text.split(';')[0].strip()
        sp = t.split(None, 1)
        self.op = op = sp[0]
        rest = sp[1] if len(sp) > 1 else ''
        ops = []; mods = ''
        parts = rest.split(',') if rest else []
        for i, o in enumerate(parts):
            o = o.strip()
            if ' ' in o or '\t' in o:
                a, b = o.split(None, 1)
                ops.append(a); mods = ','.join([b] + parts[i + 1:]); break
            ops.append(o)
        self.ops = ops; self.mods = mods
        R = [parse_reg(o) for o in ops]
        self.w = []; self.r = []; self.kind = None
        self.srcc = []; self.ab = []; self.sdata = []
        flat = lambda xs: [x for l in xs for x in l]
        if op.startswith('v_smfmac'):
            self.kind = 'mfma'; self.passes = mfma_passes(op)
            self.w = R[0]; self.srcc = R[0]; self.ab = R[1] + R[2] + R[3]; self.r = self.srcc + self.ab
        elif op.startswith('v_mfma'):
            self.kind = 'mfma'; self.passes = mfma_passes(op)
            self.w = R[0]; self.srcc = R[3]; self.ab = R[1] + R[2]; self.r = self.srcc + self.ab
        elif op.startswith('v_permlane') and 'swap' in op:
            self.kind = 'permlane'; self.w = R[0] + R[1]; self.r = R[0] + R[1]
        elif op.startswith('v_readfirstlane') or op.startswith('v_readlane'):
            self.kind = 'readlane'; self.w = R[0]; self.r = flat(R[1:])
        elif op.startswith('v_cmp'):
            assert not op.startswith('v_cmpx')
            self.kind = 'valu'; self.w = R[0]; self.r = flat(R[1:])
        elif op.startswith('v_nop'):
            self.kind = 'nop'; self.states = 1
        elif op.startswith('v_'):
            self.kind = 'valu'
            base = op.replace('_e32', '').replace('_e64', '').replace('_dpp', '')
            if base in TRANS: self.kind = 'trans'
            if '_dpp' in op or 'row_' in mods or 'quad_perm' in mods: self.kind = 'dpp'
            if '_co_' in op:
                self.w = R[0] + R[1]; self.r = flat(R[2:])
            else:
                self.w = R[0]; self.r = flat(R[1:])
            if base.startswith('v_fmac') or base.startswith('v_writelane') or self.kind == 'dpp' or base.startswith('v_pk_fmac'):
                self.r = self.r + R[0]
        elif op.startswith('global_load') or op.startswith('buffer_load'):
            if 'lds' in op or re.search(r'\blds\b', mods):
                self.kind = 'dma'; self.r = flat(R) + [('m0', 0)]
            else:
                self.kind = 'vload'; self.w = R[0]; self.r = flat(R[1:])
        elif op.startswith('global_store') or op.startswith('buffer_store'):
            self.kind = 'vstore'; self.r = flat(R)
            self.sdata = R[1] if op.startswith('global') else R[0]
        elif op.startswith('global_atomic'):
            if re.search(r'\bsc0\b', mods):
                self.kind = 'vload'; self.w = R[0]; self.r = flat(R[1:])
            else:
                self.kind = 'vstore'; self.r = flat(R)
        elif op.startswith('buffer_inv') or op.startswith('buffer_wbl2'):
            self.kind = 'vstore'
        elif op.startswith('ds_read') or op.startswith('ds_bpermute') or op.startswith('ds_swizzle'):
            self.kind = 'dsread'; self.w = R[0]; self.r = flat(R[1:])
        elif op.startswith('ds_'):
            self.kind = 'dswrite'; self.r = flat(R)
        elif op == 's_nop':
            self.kind = 'nop'; self.states = int(ops[0], 0) + 1
        elif op.startswith('s_waitcnt') or op in ('s_barrier', 's_endpgm', 's_sleep', 's_setprio'):
            self.kind = 'misc'
        elif op.startswith('s_cbranch') or op == 's_branch':
            self.kind = 'branch'; self.target = ops[0]
        elif op.startswith('s_load') or op.startswith('s_mem') or op.startswith('s_atomic'):
            self.kind = 'smem'; self.w = R[0]; self.r = flat(R[1:])
        elif op.startswith('s_cmp') or op.startswith('s_bitcmp'):
            self.kind = 'salu'; self.r = flat(R)
        elif op.startswith('s_'):
            self.kind = 'salu'; self.w = R[0]; self.r = flat(R[1:])
            if 'saveexec' in op: self.w = self.w + [('exec', 0)]
        else:
            raise ValueError('unknown instruction: ' + text)
        self.ws = set(self.w); self.rs = set(self.r)
    def nstates(self):
        return self.states if self.kind == 'nop' else 1

VALU = ('valu', 'trans', 'dpp', 'permlane', 'readlane')
VMEM = ('vload', 'vstore', 'dma')
def isvec(r): return r[0] in 'va' and r[0] != 'vcc' and len(r[0]) == 1
def issg(r): return r[0] in ('s', 'vcc')

def need(p, c):
    n = 0
    if p.kind in VALU:
        wv = {r for r in p.ws if isvec(r)}
        wsg = {r for r in p.ws if issg(r)}
        if c.kind == 'mfma' and wv & c.rs: n = max(n, 2)
        if c.kind in ('dpp', 'permlane') and wv & c.rs: n = max(n, 2)
        if c.kind == 'readlane' and wv & c.rs: n = max(n, 1)
        if p.kind == 'trans' and c.kind in VALU and c.kind != 'trans' and wv & c.rs: n = max(n, 1)
        if wsg & c.rs:
            if c.kind == 'readlane': n = max(n, 4)
            elif c.kind in VALU: n = max(n, 2)
            elif c.kind in VMEM: n = max(n, 5)
    if p.kind == 'mfma':
        big = {2: 5, 4: 8, 8: 12, 16: 20}[p.passes]
        if c.kind == 'mfma':
            if p.ws & set(c.ab): n = max(n, big)
            if p.ws & set(c.srcc):
                if c.srcc == p.w and c.passes == p.passes: n = max(n, 2 if p.passes == 2 else 0)
                else: n = max(n, {2: 4, 4: 6, 8: 10, 16: 18}[p.passes])
            elif p.ws & c.ws: n = max(n, big)
        elif c.kind in VALU or c.kind in VMEM or c.kind in ('dsread', 'dswrite'):
            if p.ws & (c.rs | c.ws): n = max(n, big)
            if c.kind in VALU and set(p.srcc) & c.ws: n = max(n, {2: 1, 4: 3, 8: 7, 16: 15}[p.passes])
    if p.kind == 'vstore' and len(p.sdata) >= 3 and set(p.sdata) & c.ws:
        n = max(n, 2 if c.kind in VALU else 1)
    if p.kind == 'salu' and ('m0', 0) in p.ws and c.kind == 'dma': n = max(n, 1)
    return n

CYCLE_AWARE = True
class Prog:
    def __init__(self):
        self.items = []
        self.vm = []; self.lg = []
        self.uid = 0
    def I(self, text, tag=None):
        for line in text.strip().split('\n'):
            line = line.strip()
            if not line or line.startswith(';'):
                continue
            if line.endswith(':'):
                self.items.append(('label', line[:-1])); continue
            ins = Inst(line)
            self.items.append(ins)
            if ins.kind in VMEM: self.vm.append(tag)
            if ins.kind in ('dsread', 'dswrite'): self.lg.append(tag)
    def L(self, name): self.items.append(('label', name))
    def C(self, text): self.items.append(('raw', '    ; ' + text))
    def raw(self, text): self.items.append(('raw', text))
    def lab(self, base):
        self.uid += 1
        return f'{base}_{self.uid}'
    def reset_cnt(self, vm=None, lg=None):
        self.vm = list(vm or []); self.lg = list(lg or [])
    def _cnt(self, q, tag):
        idx = [i for i, t in enumerate(q) if t == tag]
        if not idx: return None
        return len(q) - 1 - idx[-1]
    def wait(self, vm=None, lg=None):
        parts = []
        if vm is not None:
            n = 0 if vm == 'all' else self._cnt(self.vm, vm)
            if n is not None:
                n = min(n, 63); parts.append(f'vmcnt({n})'); self.vm = self.vm[len(self.vm) - n:] if n else []
        if lg is not None:
            n = 0 if lg == 'all' else self._cnt(self.lg, lg)
            if n is not None:
                n = min(n, 15); parts.append(f'lgkmcnt({n})'); self.lg = self.lg[len(self.lg) - n:] if n else []
        if parts: self.I('s_waitcnt ' + ' '.join(parts))
    @staticmethod
    def _states(seq):
        t = 0; lastm = None
        for i, x in enumerate(seq):
            if i > 0:
                t += seq[i - 1].nstates()
            if x.kind == 'mfma':
                if lastm is not None and CYCLE_AWARE: t = max(t, lastm[0] + lastm[1])
                lastm = (t, x.passes, 3 if x.op.startswith('v_smfmac') else 2)
            elif x.kind in VALU and lastm is not None and CYCLE_AWARE and i > 1:
                t = max(t, lastm[0] + lastm[2])
        return t - 1
    def fix_hazards(self, verbose=False):
        out = []; inserted = 0
        for it in self.items:
            if isinstance(it, Inst):
                while True:
                    win = []
                    for p in reversed(out):
                        if not isinstance(p, Inst): continue
                        if p.op in ('s_branch', 's_endpgm'): break
                        win.append(p)
                        if len(win) >= 21: break
                    win.reverse()
                    req = 0
                    for i, p in enumerate(win):
                        n = need(p, it)
                        if n:
                            have = self._states(win[i:] + [it])
                            if n - have > req: req = n - have; why = p
                    if req <= 0: break
                    inserted += req
                    if verbose: print(f'hazard: +{req} before [{it.text}] after [{why.text}]')
                    k = min(req, 16)
                    if out and isinstance(out[-1], Inst) and out[-1].op == 's_nop' and getattr(out[-1], 'auto', False) and out[-1].states + k <= 16:
                        k += out.pop().states
                    n_ = Inst(f's_nop {k-1}'); n_.auto = True; out.append(n_)
            out.append(it)
        self.items = out
        return inserted
    def check_branches(self):
        pos = {it[1]: i for i, it in enumerate(self.items) if not isinstance(it, Inst) and it[0] == 'label'}
        errs = []
        for i, it in enumerate(self.items):
            if isinstance(it, Inst) and it.kind == 'branch':
                pre = []
                for p in reversed(self.items[:i + 1]):
                    if isinstance(p, Inst):
                        if p is not it and p.op in ('s_branch', 's_endpgm'): break
                        pre.append(p)
                        if len(pre) >= 20: break
                pre.reverse()
                post = []
                for p in self.items[pos[it.target]:]:
                    if isinstance(p, Inst):
                        post.append(p)
                        if p.op in ('s_branch', 's_endpgm') or len(post) >= 20: break
                for ci, c in enumerate(post):
                    for pi, p in enumerate(pre):
                        n = need(p, c)
                        if n:
                            have = self._states(pre[pi:] + post[:ci + 1])
                            if n > have: errs.append(f'branch hazard via [{it.text}]: [{p.text}] -> [{c.text}] need {n} have {have}')
        return errs
    def text(self):
        o = []
        for it in self.items:
            if isinstance(it, Inst): o.append('    ' + it.text)
            elif it[0] == 'label': o.append(it[1] + ':')
            else: o.append(it[1])
        return '\n'.join(o) + '\n'

def vr(a, n=1): return f'v{a}' if n == 1 else f'v[{a}:{a+n-1}]'
def ar(a, n=1): return f'a{a}' if n == 1 else f'a[{a}:{a+n-1}]'
def sr(a, n=1): return f's{a}' if n == 1 else f's[{a}:{a+n-1}]'
```

```python
import sys
sys.path.insert(0, 'gen')
from asmlib import *

NAME = 'concat_heads__memory_aug_recurrent_mem_tr__memory_aug_recurrent_mem_tr__prompt_kernel'
MB = 1 << 20
WS_MODEL = 64 * MB
KVF, OF, KVM, XF = 0, 32 * MB, 48 * MB, 56 * MB
PR = 58 * MB
MR = PR + 512 * 1024
FL = 59 * MB
TS = 60 * MB
SENT = 0xffc0ffc0
F_K, F_V, F_C, F_O = 0, 1024, 2048, 3072
SAFE_OFF = 3 * MB

S_X, S_MEM0, S_WQ, S_WK, S_WV, S_WO = 4, 6, 8, 10, 12, 14
S_OUT, S_DBG, S_WS = 16, 18, 20
S_XCC, S_W, S_H, S_M = 22, 23, 24, 25
S_STEP, S_SPIN = 26, 27
S_SRD = 28
S_PP, S_MS, S_MRS, S_MP, S_KV, S_PUB, S_PPO = 34, 36, 38, 40, 42, 44, 46
S_TO = 50
S_LATE = 32
S_MQ1 = 48
S_T0, S_T1, S_T2, S_T3 = 58, 59, 60, 61
S_PTOG, S_MTOG = 62, 63
S_OPS, S_OPP, S_OMP = 64, 65, 66
S_SC = 98
S_MODE, S_FLB = 3, 96
S_PL, S_PH = 68, 69
S_SENT, S_THR = 70, 71
S_ST = 72

MF, SB = 0, 32
Q0, Q1, K0, K1, V0, V1 = 64, 68, 72, 76, 80, 84
KX, VX = 88, 96
C_IDX, A_L16, C_SELT, C_SELR = 104, 105, 106, 108
A_PST, A_MST, A_STW, A_ST1, A_ST2, A_ST3, A_WL, A_MW, A_OW, A_OR = 112, 113, 114, 115, 116, 117, 118, 119, 120, 121
A_FL, V_FL = 122, 123
C_SENT = 124
ALAND = 240
L_STG, L_XCH, L_W = 0, 8192, 16384
HOME = {}
for sg in range(8):
    for tt in range(2): HOME[('q', sg, tt)] = ('a', 16 * sg + 8 * tt)
_l = 0
for key in [('k', 0, 0), ('k', 0, 1), ('k', 1, 0), ('k', 1, 1), ('k', 4, 0), ('k', 4, 1), ('k', 5, 0), ('k', 5, 1),
            ('v', 2, 0), ('v', 2, 1), ('v', 3, 0), ('v', 3, 1),
            ('o', 0, 0), ('o', 1, 0), ('o', 2, 0), ('o', 3, 0), ('o', 7, 0), ('o', 7, 1)]:
    HOME[key] = ('l', _l); _l += 1
_a = 128
for sg in (0, 1, 4, 5, 6, 7):
    for tt in range(2): HOME[('v', sg, tt)] = ('a', _a); _a += 8
for tt in range(2): HOME[('k', 7, tt)] = ('a', _a); _a += 8
assert _a == ALAND
_v = 128
for t in range(8):
    for cc in range(2):
        if ('o', t, cc) not in HOME: HOME[('o', t, cc)] = ('v', _v); _v += 8
for sg in (2, 3, 6):
    for tt in range(2): HOME[('k', sg, tt)] = ('v', _v); _v += 8
assert _v == 256
def sbslot(key): return SB + 8 * (HOME[key][1] % 4)

def add64(dst, base, off_s):
    return [f's_add_u32 s{dst}, s{base}, {off_s}', f's_addc_u32 s{dst+1}, s{base+1}, 0']

def load_args(p):
    p.I(f"""
    s_load_dwordx4 s[{S_X}:{S_X+3}], s[0:1], 0
    s_load_dwordx4 s[{S_WQ}:{S_WQ+3}], s[0:1], 16
    s_load_dwordx4 s[{S_WV}:{S_WV+3}], s[0:1], 32
    s_load_dwordx2 s[32:33], s[0:1], 56
    s_load_dwordx4 s[36:39], s[0:1], 64
    s_load_dwordx4 s[40:43], s[0:1], 80
    s_load_dwordx2 s[44:45], s[0:1], 96
    s_load_dwordx4 s[{S_OUT}:{S_OUT+3}], s[0:1], 112
    s_load_dwordx2 s[{S_WS}:{S_WS+1}], s[0:1], 128
    """)

def common_prologue(p, cfg):
    p.I("""
    s_cmp_ge_u32 s2, 256
    s_cbranch_scc1 L_end
    """)
    load_args(p)
    p.I(f"""
    s_getreg_b32 s{S_XCC}, hwreg(HW_REG_XCC_ID)
    s_and_b32 s{S_XCC}, s{S_XCC}, 7
    v_lshrrev_b32 v1, 6, v0
    v_and_b32 v0, 63, v0
    v_readfirstlane_b32 s{S_W}, v1
    s_mov_b32 s{S_SPIN}, {cfg.get('spin', 2000000)}
    s_mov_b32 s{S_MODE}, 0
    s_waitcnt lgkmcnt(0)
    """)
    if cfg.get('stamps'):
        p.I(f's_memrealtime s[94:95]')
    p.I(f"""
    s_cmp_eq_u32 s{S_W}, 0
    s_cbranch_scc0 L_noticket
    s_mov_b64 exec, 1
    s_lshl_b32 s{S_T0}, s{S_XCC}, 2
    v_mov_b32 v1, s{S_T0}
    v_mov_b32 v2, 1
    global_atomic_add v3, v1, v2, s[{S_DBG}:{S_DBG+1}] sc0
    v_mov_b32 v1, 0
    s_waitcnt vmcnt(0)
    ds_write_b32 v1, v3
    s_waitcnt lgkmcnt(0)
    s_mov_b64 exec, -1
L_noticket:
    s_barrier
    v_mov_b32 v1, 0
    ds_read_b32 v3, v1
    s_waitcnt lgkmcnt(0)
    v_readfirstlane_b32 s{S_H}, v3
    s_barrier
    """)

AV = (1, 2)
def arrive(p, lab, tv=(252, 253)):
    p.I(f"""
    s_waitcnt vmcnt(0) lgkmcnt(0)
    s_barrier
    s_cmp_eq_u32 s{S_W}, 0
    s_cbranch_scc0 {lab}_noarr
    s_mov_b64 exec, 1
    s_lshl_b32 s{S_T0}, s{S_MODE}, 2
    s_add_u32 s{S_T0}, s{S_T0}, 32
    v_mov_b32 v{tv[0]}, s{S_T0}
    v_mov_b32 v{tv[1]}, 1
    global_atomic_add v{tv[0]}, v{tv[1]}, s[{S_DBG}:{S_DBG+1}]
    s_mov_b64 exec, -1
{lab}_noarr:
    """)
    p.reset_cnt()

NARR = [256]
FORCE = [0]
def wait_all(p, lab, tv=(252, 253)):
    p.I(f"""
    v_mbcnt_lo_u32_b32 v{tv[0]}, -1, 0
    v_and_b32 v{tv[0]}, 15, v{tv[0]}
    v_lshlrev_b32 v{tv[0]}, 2, v{tv[0]}
    s_add_u32 s{S_T1}, s{S_MODE}, 8
{lab}_wa:
    global_load_dword v{tv[1]}, v{tv[0]}, s[{S_DBG}:{S_DBG+1}] sc1
    s_waitcnt vmcnt(0)
    v_readlane_b32 s{S_T0}, v{tv[1]}, s{S_T1}
    s_cmp_ge_u32 s{S_T0}, {NARR[0]}
    s_cbranch_scc1 {lab}_wb
    s_sleep 4
    s_sub_u32 s{S_SPIN}, s{S_SPIN}, 1
    s_cbranch_scc0 {lab}_wa
    s_branch L_end
{lab}_wb:
    s_cmp_eq_u32 s{S_MODE}, 1
    s_cbranch_scc1 {lab}_wc
    global_load_dword v{tv[1]}, v{tv[0]}, s[{S_DBG}:{S_DBG+1}] sc1
    s_waitcnt vmcnt(0)
    v_cmp_ne_u32 vcc, {32 + FORCE[0]}, v{tv[1]}
    s_and_b32 s{S_T0}, vcc_lo, 0xff
    s_cbranch_scc1 L_safe
{lab}_wc:
    """)
    p.reset_cnt()

def select_model(p):
    p.I(f'''
    s_cmp_eq_u32 s{S_M}, 1
    s_cselect_b64 s[{S_X}:{S_X+1}], s[32:33], s[{S_X}:{S_X+1}]
    s_cselect_b64 s[{S_MEM0}:{S_MEM0+1}], s[36:37], s[{S_MEM0}:{S_MEM0+1}]
    s_cselect_b64 s[{S_WQ}:{S_WQ+1}], s[38:39], s[{S_WQ}:{S_WQ+1}]
    s_cselect_b64 s[{S_WK}:{S_WK+1}], s[40:41], s[{S_WK}:{S_WK+1}]
    s_cselect_b64 s[{S_WV}:{S_WV+1}], s[42:43], s[{S_WV}:{S_WV+1}]
    s_cselect_b64 s[{S_WO}:{S_WO+1}], s[44:45], s[{S_WO}:{S_WO+1}]
    s_lshl_b32 s{S_T0}, s{S_M}, 26
    s_add_u32 s{S_WS}, s{S_WS}, s{S_T0}
    s_addc_u32 s{S_WS+1}, s{S_WS+1}, 0
    ''')

def set_srd(p, ptr, nbytes):
    p.I(f'''
    s_mov_b32 s{S_SRD}, s{ptr}
    s_and_b32 s{S_SRD+1}, s{ptr+1}, 0xffff
    s_mov_b32 s{S_SRD+2}, {nbytes}
    s_mov_b32 s{S_SRD+3}, 0x20000
    ''')

def chain_consts(p, RO):
    p.I(f'''
    v_and_b32 v1, 15, v0
    v_lshrrev_b32 v2, 4, v0
    v_lshlrev_b32 v{A_L16}, 4, v0
    s_mov_b32 s{S_MQ1}, 0xcccccccc
    s_mov_b32 s{S_MQ1+1}, 0xcccccccc
    s_mov_b32 s{S_SC}, 0x3e0293ee
    s_mov_b32 s{S_PL}, 0x05040100
    s_mov_b32 s{S_PH}, 0x07060302
    s_mov_b32 s{S_SENT}, {SENT}
    s_mov_b32 s{S_THR}, 0xffc00000
    s_mov_b32 s{S_SC+1}, 0x3e0293ee
    v_mov_b32 v{C_SENT}, s{S_SENT}
    v_mov_b32 v{C_SENT+1}, s{S_SENT}
    v_mov_b32 v{C_SENT+2}, s{S_SENT}
    v_mov_b32 v{C_SENT+3}, s{S_SENT}
    v_mov_b32 v4, 0xeeee
    v_mov_b32 v5, 0x4444
    v_cndmask_b32 v{C_IDX}, v5, v4, s[{S_MQ1}:{S_MQ1+1}]
    ''')
    p.I(f'''
    v_and_b32 v3, 1, v1
    v_lshlrev_b32 v3, 4, v3
    v_mov_b32 v4, 0x3f80
    v_lshlrev_b32 v4, v3, v4
    v_lshrrev_b32 v5, 2, v1
    v_cmp_eq_u32 vcc, v5, v2
    v_cndmask_b32 v4, 0, v4, vcc
    v_mov_b32 v5, 0
    v_cndmask_b32 v{C_SELT}, v5, v4, s[{S_MQ1}:{S_MQ1+1}]
    v_cndmask_b32 v{C_SELT+1}, v4, v5, s[{S_MQ1}:{S_MQ1+1}]
    ''')
    p.I(f'''
    v_lshrrev_b32 v3, 2, v1
    v_and_b32 v3, 1, v3
    v_lshlrev_b32 v3, 4, v3
    v_mov_b32 v4, 0x3f80
    v_lshlrev_b32 v4, v3, v4
    v_and_b32 v5, 11, v1
    ''')
    for d, key in enumerate([0, 1, 8, 9]):
        p.I(f'v_cmp_eq_u32 vcc, {key}, v5\nv_cndmask_b32 v{C_SELR+d}, 0, v4, vcc')
    p.I(f'''
    v_lshrrev_b32 v3, 1, v2
    v_lshlrev_b32 v3, 13, v3
    v_and_b32 v4, 1, v2
    v_lshl_add_u32 v3, v4, 11, v3
    v_lshl_add_u32 v3, v1, 2, v3
    s_lshl_b32 s{S_T0}, s{S_W}, 16
    s_lshl_b32 s{S_T1}, s{S_H}, 6
    s_add_u32 s{S_T0}, s{S_T0}, s{S_T1}
    v_add_u32 v{A_PST}, s{S_T0}, v3
    ''')
    for t in range(8): p.I(f's_mov_b32 s{S_TO+t}, {(t&3)*16384 + (t>>2)*4096}')
    p.I(f'''
    v_and_b32 v3, 2, v0
    v_lshlrev_b32 v3, 4, v3
    v_and_b32 v4, 1, v2
    v_lshl_add_u32 v3, v4, 4, v3
    v_and_b32 v4, 1, v0
    v_lshl_add_u32 v3, v4, 3, v3
    v_lshrrev_b32 v4, 1, v2
    v_lshl_add_u32 v3, v4, 2, v3
    s_lshr_b32 s{S_LATE}, s{S_W}, 1
    s_lshr_b32 s{S_T2}, s{S_H}, 1
    s_and_b32 s{S_T2}, s{S_T2}, 3
    s_lshl_b32 s{S_T0}, s{S_LATE}, 2
    s_add_u32 s{S_T2}, s{S_T2}, s{S_T0}
    s_and_b32 s{S_T3}, s{S_H}, 1
    s_lshl_b32 s{S_T3}, s{S_T3}, 1
    s_and_b32 s{S_T0}, s{S_W}, 1
    s_add_u32 s{S_T3}, s{S_T3}, s{S_T0}
    s_lshl_b32 s{S_T0}, s{S_T2}, 10
    s_lshr_b32 s{S_T1}, s{S_H}, 3
    s_lshl_b32 s{S_T1}, s{S_T1}, 8
    s_add_u32 s{S_T0}, s{S_T0}, s{S_T1}
    s_lshl_b32 s{S_T1}, s{S_T3}, 6
    s_add_u32 s{S_T0}, s{S_T0}, s{S_T1}
    v_add_u32 v{A_MST}, s{S_T0}, v3
    ''')
    p.I(f'''
    v_and_b32 v3, 1, v2
    v_lshlrev_b32 v3, 10, v3
    v_lshrrev_b32 v4, 1, v2
    v_lshl_add_u32 v3, v4, 5, v3
    v_and_b32 v4, 3, v0
    v_lshl_add_u32 v3, v4, 6, v3
    s_lshl_b32 s{S_T0}, s{S_T3}, 11
    s_lshr_b32 s{S_T1}, s{S_H}, 3
    s_lshl_b32 s{S_T1}, s{S_T1}, 8
    s_add_u32 s{S_T0}, s{S_T0}, s{S_T1}
    s_lshl_b32 s{S_T1}, s{S_T2}, 1
    s_add_u32 s{S_T0}, s{S_T0}, s{S_T1}
    v_add_u32 v30, s{S_T0}, v3
    ''')
    p.I(f'''
    s_lshl_b32 s{S_T0}, s{S_W}, 11
    v_add_u32 v{A_STW}, s{S_T0}, v{A_L16}
    v_xor_b32 v{A_ST1}, 0x800, v{A_STW}
    v_xor_b32 v{A_ST2}, 0x1000, v{A_STW}
    v_xor_b32 v{A_ST3}, 0x1800, v{A_STW}
    s_mul_i32 s{S_T0}, s{S_W}, 36864
    s_add_u32 s{S_T0}, s{S_T0}, {L_W}
    v_add_u32 v{A_WL}, s{S_T0}, v{A_L16}
    s_lshl_b32 s{S_T0}, s{S_W}, 2
    v_add_u32 v{A_MW}, s{S_T0}, v{A_L16}
    ''')
    p.I(f'''
    v_lshrrev_b32 v4, 2, v1
    v_lshlrev_b32 v3, 5, v4
    v_and_b32 v4, 1, v0
    v_lshl_add_u32 v3, v4, 4, v3
    v_lshl_add_u32 v5, v2, 7, v3
    s_lshr_b32 s{S_T0}, s{S_W}, 1
    s_lshl_b32 s{S_T0}, s{S_T0}, 11
    s_and_b32 s{S_T1}, s{S_W}, 1
    s_lshl_b32 s{S_T1}, s{S_T1}, 9
    s_add_u32 s{S_T0}, s{S_T0}, s{S_T1}
    s_add_u32 s{S_T0}, s{S_T0}, {L_XCH + 2048 + 1024}
    v_add_u32 v6, s{S_T0}, v5
    v_add_u32 v7, {L_XCH + 6144 + 1024}, v5
    v_cndmask_b32 v{A_OW}, v7, v6, s[{S_MQ1}:{S_MQ1+1}]
    ''')
    p.I(f'''
    v_lshl_add_u32 v3, v2, 8, v3
    v_and_b32 v4, 2, v0
    v_lshl_add_u32 v3, v4, 6, v3
    v_add_u32 v{A_OR}, {L_XCH + 2048 + 1024}, v3
    ''')
    p.I(f'''
    s_lshl_b32 s{S_T2}, s{S_H}, 2
    s_add_u32 s{S_T2}, s{S_T2}, s{S_W}
    s_lshl_b32 s{S_OPP}, s{S_T2}, 11
    s_add_u32 s{S_OPP}, s{S_OPP}, {PR + RO}
    s_lshl_b32 s{S_OMP}, s{S_W}, 10
    s_add_u32 s{S_OMP}, s{S_OMP}, {MR + RO + 2048}
    s_lshl_b32 s{S_T0}, s{S_T2}, 12
    ''')
    p.I('\n'.join(add64(S_KV, S_WS, f's{S_T0}')))
    p.I(f's_lshl_b32 s{S_T0}, s{S_T2}, 10\ns_add_u32 s{S_T0}, s{S_T0}, {KVM}')
    p.I('\n'.join(add64(S_PUB, S_WS, f's{S_T0}')))

def chain_load_weights(p):
    VA_QKV, VA_WO = 6, 7
    p.I(f'''
    v_and_b32 v1, 15, v0
    v_lshrrev_b32 v2, 5, v0
    v_lshlrev_b32 v2, 20, v2
    v_and_b32 v3, 16, v0
    v_lshl_add_u32 v2, v3, 14, v2
    v_lshl_add_u32 v2, v1, 2, v2
    s_lshl_b32 s{S_T0}, s{S_H}, 8
    s_lshl_b32 s{S_T1}, s{S_W}, 6
    s_add_u32 s{S_T0}, s{S_T0}, s{S_T1}
    v_add_u32 v{VA_QKV}, s{S_T0}, v2
    v_lshrrev_b32 v2, 5, v0
    v_lshlrev_b32 v2, 14, v2
    v_and_b32 v3, 16, v0
    v_lshl_add_u32 v2, v3, 8, v2
    v_lshl_add_u32 v2, v1, 4, v2
    s_lshl_b32 s{S_T0}, s{S_H}, 17
    s_lshl_b32 s{S_T1}, s{S_W}, 8
    s_add_u32 s{S_T0}, s{S_T0}, s{S_T1}
    v_add_u32 v{VA_WO}, s{S_T0}, v2
    ''')
    batches = []
    for mat in ('q', 'k', 'v'):
        for sg in range(8): batches.append((mat, sg))
    for cc in range(2):
        for jp in range(4): batches.append(('o', (cc, jp)))
    NG = 5
    cur = [None]
    def issue(bi):
        mat, x = batches[bi]; base = 8 + 16 * (bi % NG)
        if cur[0] != mat:
            set_srd(p, {'q': S_WQ, 'k': S_WK, 'v': S_WV, 'o': S_WO}[mat], 4 * MB); cur[0] = mat
        if mat != 'o':
            sg = x
            p.I(f's_xor_b32 s{S_T2}, s{S_W}, {sg>>1}\ns_lshl_b32 s{S_T2}, s{S_T2}, 13')
            for j in range(8):
                d = 4 * (sg & 1) + 256 * (j >> 2) + 64 * (j & 1) + 16 * ((j >> 1) & 1)
                for u in range(2):
                    p.I(f's_add_u32 s{S_T3}, s{S_T2}, {(d+8*u)*8192}')
                    p.I(f'buffer_load_dword v{base+2*j+u}, v{VA_QKV}, s[{S_SRD}:{S_SRD+3}], s{S_T3} offen', tag=('w', bi))
        else:
            cc, jp = x
            for jj in range(2):
                j = 2 * jp + jj
                e = 64 * cc + 32 * (j >> 2) + 8 * (j & 1) + 2 * ((j >> 1) & 1)
                p.I(f's_mov_b32 s{S_T3}, {e*1024}')
                for u in range(2):
                    p.I(f'buffer_load_dwordx4 {vr(base+8*jj+4*u,4)}, v{VA_WO}, s[{S_SRD}:{S_SRD+3}], s{S_T3} offen offset:{u*1024}', tag=('w', bi))
    rot = [0]
    def put(key, j, hi, a, b, tmp):
        sel = S_PH if hi else S_PL
        kind, idx = HOME[key]
        if kind == 'v': p.I(f'v_perm_b32 v{idx+j}, v{b}, v{a}, s{sel}')
        elif kind == 'a':
            t = 1 + rot[0] % 4; rot[0] += 1
            p.I(f'v_perm_b32 v{t}, v{b}, v{a}, s{sel}\nv_accvgpr_write_b32 a{idx+j}, v{t}')
        else: p.I(f'v_perm_b32 v{tmp}, v{b}, v{a}, s{sel}')
    def process(bi):
        mat, x = batches[bi]; base = 8 + 16 * (bi % NG)
        p.wait(vm=('w', bi))
        if mat == 'o':
            cc, jp = x
            p.wait(lg='all')
            for jj in range(2):
                j = 2 * jp + jj
                for y in range(4):
                    a, b = base + 8 * jj + y, base + 8 * jj + 4 + y
                    for hi in range(2):
                        t = 2 * y + hi
                        put(('o', t, cc), j, hi, a, b, 88 + 2 * t + jj)
            for t in range(8):
                kind, idx = HOME[('o', t, cc)]
                if kind == 'l':
                    p.I(f'ds_write_b64 v{A_WL}, {vr(88+2*t,2)} offset:{idx*2048 + (jp>>1)*1024 + (jp&1)*8}', tag='wl')
            return
        sg = x
        lds = HOME[(mat, sg, 0)][0] == 'l'
        if lds: p.wait(lg='all')
        for j in range(8):
            for tt in range(2):
                put((mat, sg, tt), j, tt, base + 2 * j, base + 2 * j + 1, 88 + 8 * tt + j)
        if lds:
            for tt in range(2):
                for hh in range(2):
                    p.I(f'ds_write_b128 v{A_WL}, {vr(88+8*tt+4*hh,4)} offset:{HOME[(mat,sg,tt)][1]*2048 + hh*1024}', tag='wl')
    nin = lambda bi: 16 if batches[bi][0] != 'o' else 4
    issued = 0; done = 0
    while done < len(batches):
        while issued < len(batches) and issued - done < NG and sum(nin(b) for b in range(done, issued + 1)) <= 60:
            issue(issued); issued += 1
        process(done); done += 1

def stamp(p, cfg, i):
    if cfg.get('stamps') == 2:
        p.I(f'''
        s_memtime s[{S_ST+18}:{S_ST+19}]
        s_waitcnt lgkmcnt(0)
        s_sub_u32 s{S_ST+19}, s{S_ST+18}, s{S_ST+15}
        s_add_u32 s{S_ST+i}, s{S_ST+i}, s{S_ST+19}
        s_mov_b32 s{S_ST+15}, s{S_ST+18}
        ''')
        p.lg = []

def chain_bases(RO):
    o = [f's_add_u32 s{S_T0}, s{S_PTOG}, {PR + RO}'] + add64(S_SRD, S_WS, f's{S_T0}')
    o += [f's_add_u32 s{S_T0}, s{S_OPP}, s{S_PTOG}'] + add64(S_PP, S_WS, f's{S_T0}')
    o += [f's_add_u32 s{S_T0}, s{S_MTOG}, {MR + RO}'] + add64(S_MS, S_WS, f's{S_T0}')
    o += [f's_xor_b32 s{S_T0}, s{S_MTOG}, 0x2000', f's_add_u32 s{S_T0}, s{S_T0}, {MR + RO}'] + add64(S_MRS, S_WS, f's{S_T0}')
    o += [f's_add_u32 s{S_T0}, s{S_OMP}, s{S_MTOG}'] + add64(S_MP, S_WS, f's{S_T0}')
    return o

DPP = 'row_mask:0xf bank_mask:0xf'

def chain(p, cfg, st, lab):
    RO = SAFE_OFF if st else 0
    NSTEP = cfg.get('nstep', 64)
    depth1, depth2 = cfg.get('depth1', 2), cfg.get('depth2', 2)
    def frag(key):
        kind, idx = HOME[key]
        if kind == 'l':
            p.wait(lg=key); return vr(sbslot(key), 8)
        return (ar if kind == 'a' else vr)(idx, 8)
    def smf(acc, a, key, *shadow):
        b = frag(key)
        p.I(f'v_smfmac_f32_16x16x64_bf16 {vr(acc,4)}, {vr(a,4)}, {b}, v{C_IDX}')
        for x in shadow:
            if callable(x): x()
            else: p.I(x)
    def wl(key, hh):
        return lambda: p.I(f'ds_read_b128 {vr(sbslot(key)+4*hh,4)}, v{A_WL} offset:{HOME[key][1]*2048 + hh*1024}', tag=key)
    def kvld(i):
        if cfg.get('nokv'): return lambda: p.I('s_nop 0')
        return lambda: p.I(f'global_load_dwordx4 {ar(ALAND+4*i,4)}, v{A_L16}, s[{S_KV}:{S_KV+1}] offset:{1024*i} sc1', tag='kv')
    kv_adv = add64(S_KV, S_KV, 32 * 16384)

    chain_consts(p, RO)
    p.I(f'''
    v_and_b32 v3, 3, v0
    v_lshlrev_b32 v3, 2, v3
    v_and_b32 v4, 4, v0
    v_lshl_add_u32 v{A_FL}, v4, 8, v3
    s_lshl_b32 s{S_T0}, s{S_H}, 4
    s_add_u32 s{S_T0}, s{S_T0}, {FL}
    s_add_u32 s{S_FLB}, s{S_WS}, s{S_T0}
    s_addc_u32 s{S_FLB+1}, s{S_WS+1}, 0
    s_lshl_b32 s{S_T0}, s{S_W}, 2
    v_mov_b32 v3, s{S_T0}
    v_mov_b32 v4, 0
    global_store_dword v3, v4, s[{S_FLB}:{S_FLB+1}] offset:{F_C} sc1
    ''')
    p.I(f's_mov_b32 s{S_PTOG}, 0\ns_mov_b32 s{S_MTOG}, 0')
    p.I('\n'.join(chain_bases(RO)))
    p.I(f'''
    global_store_dwordx4 v{A_L16}, {vr(C_SENT,4)}, s[{S_PP}:{S_PP+1}] {st}
    global_store_dwordx4 v{A_L16}, {vr(C_SENT,4)}, s[{S_PP}:{S_PP+1}] offset:1024 {st}
    s_add_u32 s{S_PPO}, s{S_PP}, 0x40000
    s_addc_u32 s{S_PPO+1}, s{S_PP+1}, 0
    global_store_dwordx4 v{A_L16}, {vr(C_SENT,4)}, s[{S_PPO}:{S_PPO+1}] {st}
    global_store_dwordx4 v{A_L16}, {vr(C_SENT,4)}, s[{S_PPO}:{S_PPO+1}] offset:1024 {st}
    global_store_dword v{A_MST}, v{C_SENT}, s[{S_MRS}:{S_MRS+1}] {st}
    ''')
    p.I(f'''
    global_load_ushort v5, v30, s[{S_MEM0}:{S_MEM0+1}]
    global_load_ushort v6, v30, s[{S_MEM0}:{S_MEM0+1}] offset:16
    s_waitcnt vmcnt(0)
    v_lshl_or_b32 v5, v6, 16, v5
    global_store_dword v{A_MST}, v5, s[{S_MS}:{S_MS+1}] {st}
    ''')
    arrive(p, lab, (1, 2))
    chain_load_weights(p)
    p.I('s_waitcnt vmcnt(0) lgkmcnt(0)')
    wait_all(p, lab, (1, 2))
    nofl = cfg.get('noflags')
    def fl_ld(): p.I(f'global_load_dword v{V_FL}, v{A_FL}, s[{S_FLB}:{S_FLB+1}] sc1', tag='kv')
    def fl_spin(name, back):
        p.L(name)
        fl_ld()
        p.I(f'''
        s_waitcnt vmcnt(0)
        v_cmp_ge_u32 vcc, s{S_T1}, v{V_FL}
        s_cbranch_vccz {back}
        s_sleep 1
        s_sub_u32 s{S_SPIN}, s{S_SPIN}, 1
        s_cbranch_scc0 {name}
        s_branch L_end
        ''')
    p.I(f's_mov_b32 s{S_STEP}, 0\ns_mov_b32 s{S_T1}, 1')
    if not nofl:
        fl_spin('L_ch_fl0', 'L_ch_fl0ok')
        p.L('L_ch_fl0ok')
    p.reset_cnt()
    for i in range(4): kvld(i)()
    p.I('\n'.join(kv_adv))
    if cfg.get('stamps'):
        p.I('s_memrealtime s[92:93]\ns_waitcnt lgkmcnt(0)\ns_mov_b32 s33, s94\ns_mov_b32 s64, s92')
    p.I(f's_mov_b32 s{S_SRD+2}, 0x40000\ns_mov_b32 s{S_SRD+3}, 0x20000')
    pre_keys = [('k', 0, 0), ('k', 0, 1), ('k', 1, 0), ('k', 1, 1)]
    kvmove = [f'v_accvgpr_read_b32 v{KX+i}, a{ALAND+i}' for i in range(16)]
    zacc = [f'v_mov_b64 {vr(Q0+2*i,2)}, 0' for i in range(12)]
    marks = cfg.get('marks', [])
    def mk(name):
        if name in marks:
            i = marks.index(name); p.I(f's_memtime s[{72+2*i}:{73+2*i}]')
    def MK(name): return lambda: mk(name)
    def emit(xs):
        for x in xs:
            if callable(x): x()
            else: p.I(x)
    def m_ld(i):
        p.I(f'global_load_dwordx4 {vr(MF+4*i,4)}, v{A_L16}, s[{S_MP}:{S_MP+1}] offset:{-2048+4096*i} sc1')
    def nops(n):
        while n > 0:
            q = min(n, 16); p.I(f's_nop {q-1}'); n -= q
    pubst = f'global_store_dwordx4 v{A_L16}, {vr(Q0,4)}, s[{S_PUB}:{S_PUB+1}] sc1'
    p.reset_cnt()
    for x in zacc: p.I(x)
    for kk in pre_keys: wl(kk, 0)(); wl(kk, 1)()
    m_ld(0); m_ld(1)
    p.I('s_waitcnt vmcnt(0) lgkmcnt(0)')
    emit(kvmove)
    p.I('s_branch L_ch_p2')
    p.L('L_ch_hop2')
    if cfg.get('stamps'):
        p.I(f's_cmp_eq_u32 s{S_STEP}, 3\ns_cbranch_scc0 L_ch_stskip')
        p.I(f's_mov_b32 s100, 0\ns_mov_b32 s101, 0')
        p.I(f's_memrealtime s[92:93]\ns_memtime s[94:95]\ns_waitcnt lgkmcnt(0)')
        p.L('L_ch_stskip')
    p.I(f's_add_u32 s{S_T1}, s{S_STEP}, 1\ns_min_u32 s{S_T1}, s{S_T1}, 63')
    if not nofl: p.I(f'v_cmp_ge_u32 vcc, s{S_T1}, v{V_FL}')
    emit(kvmove)
    if not nofl:
        p.I('s_cbranch_vccnz L_ch_fl')
        p.L('L_ch_flok')
    d2e, d2l = cfg.get('d2e', 56), cfg.get('d2l', 32)
    if d2e != d2l:
        p.I(f's_cmp_eq_u32 s{S_LATE}, 1\ns_cbranch_scc1 L_ch_h2l')
        nops(d2e - d2l)
        p.L('L_ch_h2l')
    nops(d2l)
    mk('h2a')
    m_ld(0)
    p.I(f's_sub_u32 s{S_T0}, s{S_STEP}, 1\nv_mov_b32 v29, s{S_T0}\nv_lshlrev_b32 v28, 2, s{S_W}')
    nops(cfg.get('g2', 13))
    m_ld(1)
    p.I(pubst)
    p.I(f'global_store_dword v28, v29, s[{S_FLB}:{S_FLB+1}] offset:{F_C} sc1')
    p.I('\n'.join(add64(S_PUB, S_PUB, 32 * 4096)))
    emit(zacc[:2])
    p.I('s_waitcnt vmcnt(2) lgkmcnt(0)')
    p.L('L_ch_p2')
    p.reset_cnt()
    mk('qk0')
    Wr = lambda i: (lambda: p.I(f'ds_write_b128 v{A_STW}, {vr(MF+4*i,4)} offset:{L_STG+1024*i}', tag='stg'))
    Wr(0)()
    smf(Q0, MF, ('q', 0, 0), Wr(1), 'v_max3_u32 v28, v0, v1, v2')
    smf(Q1, MF, ('q', 0, 1), 'v_max3_u32 v29, v3, v4, v5')
    smf(K0, MF, ('k', 0, 0), 'v_max3_u32 v28, v28, v6, v7')
    smf(K1, MF, ('k', 0, 1), 'v_max_u32 v28, v28, v29')
    smf(Q0, MF + 4, ('q', 1, 0), f'v_cmp_le_u32 vcc, s{S_THR}, v28')
    smf(Q1, MF + 4, ('q', 1, 1))
    smf(K0, MF + 4, ('k', 1, 0), 's_cbranch_vccnz L_ch_p2fail')
    p.wait(lg='all')
    mk('b1a')
    p.I('s_barrier')
    mk('b1b')
    areg = {1: A_ST1, 2: A_ST2, 3: A_ST3}
    def mf(sg):
        return lambda: p.I(f'ds_read_b128 {vr(MF+4*sg,4)}, v{areg[sg>>1]} offset:{L_STG+(sg&1)*1024}', tag=('mf', sg))
    sal = [f's_xor_b32 s{S_MTOG}, s{S_MTOG}, 0x2000'] + chain_bases(RO)
    def S(n):
        o = sal[:n]; del sal[:n]; return o
    mf(2)(); mf(3)()
    smf(K1, MF + 4, ('k', 1, 1), mf(4))
    smf(V0, MF, ('v', 0, 0), mf(5))
    smf(V1, MF, ('v', 0, 1), mf(6))
    smf(V0, MF + 4, ('v', 1, 0), mf(7))
    if cfg.get('v4', 1): smf(V1, MF + 4, ('v', 1, 1), wl(('k', 4, 0), 0))
    else: wl(('k', 4, 0), 0)()
    p.wait(lg=('mf', 2))
    smf(Q0, MF + 8, ('q', 2, 0), wl(('k', 4, 0), 1), MK('s2'))
    smf(Q1, MF + 8, ('q', 2, 1), wl(('k', 4, 1), 0), *S(1))
    smf(K0, MF + 8, ('k', 2, 0), wl(('k', 4, 1), 1), *S(1))
    smf(K1, MF + 8, ('k', 2, 1), wl(('k', 5, 0), 0), kvld(0))
    p.wait(lg=('mf', 3))
    smf(Q0, MF + 12, ('q', 3, 0), wl(('k', 5, 0), 1), *S(1))
    smf(Q1, MF + 12, ('q', 3, 1), wl(('k', 5, 1), 0), *S(1))
    smf(K0, MF + 12, ('k', 3, 0), wl(('k', 5, 1), 1), *S(1))
    smf(K1, MF + 12, ('k', 3, 1), kvld(1), *S(1))
    p.wait(lg=('mf', 7))
    smf(Q0, MF + 16, ('q', 4, 0), MK('s4'), *S(2))
    if not nofl: fl_ld()
    smf(Q1, MF + 16, ('q', 4, 1), *S(2))
    smf(K0, MF + 16, ('k', 4, 0), wl(('v', 2, 0), 0), *S(1))
    smf(K1, MF + 16, ('k', 4, 1), wl(('v', 2, 0), 1), kvld(2))
    smf(Q0, MF + 20, ('q', 5, 0), wl(('v', 2, 1), 0), *S(2))
    smf(Q1, MF + 20, ('q', 5, 1), wl(('v', 2, 1), 1), *S(1))
    smf(K0, MF + 20, ('k', 5, 0), wl(('v', 3, 0), 0), *S(1))
    smf(K1, MF + 20, ('k', 5, 1), wl(('v', 3, 0), 1), kvld(3))
    smf(Q0, MF + 24, ('q', 6, 0), wl(('v', 3, 1), 0), MK('s6'), *S(1))
    smf(K0, MF + 24, ('k', 6, 0), wl(('v', 3, 1), 1), *S(1))
    assert not sal
    smf(Q0, MF + 28, ('q', 7, 0), f's_cmp_lt_u32 s{S_STEP}, {NSTEP-2}', f's_cselect_b32 s{S_T1}, {0 if cfg.get("kvsame") else 32*16384}, 0')
    smf(K0, MF + 28, ('k', 7, 0), *add64(S_KV, S_KV, f's{S_T1}'))
    smf(Q1, MF + 24, ('q', 6, 1), f's_mov_b64 vcc, s[{S_MQ1}:{S_MQ1+1}]', f'v_add_f32 v{Q0}, v{Q0}, v{Q0+2}')
    smf(K1, MF + 24, ('k', 6, 1), f'v_add_f32 v{Q0+1}, v{Q0+1}, v{Q0+3}', f'v_add_f32 v{K0}, v{K0}, v{K0+2}')
    smf(Q1, MF + 28, ('q', 7, 1), f'v_cvt_pk_bf16_f32 v{Q0+2}, v{Q0}, v{Q0+1}', f'v_add_f32 v{K0+1}, v{K0+1}, v{K0+3}')
    smf(K1, MF + 28, ('k', 7, 1), MK('qk1'), f'v_cvt_pk_bf16_f32 v{Q0+3}, v{K0}, v{K0+1}')
    vq = [(sg, tt) for sg in range(2, 8) for tt in range(2)]
    if not cfg.get('v4', 1): vq.append((1, 1))
    def V(*shadow):
        sg, tt = vq.pop(0)
        smf(V0 + 4 * tt, MF + 4 * sg, ('v', sg, tt), *shadow)
    rst = lambda i: f'global_store_dwordx4 v{A_L16}, {vr(C_SENT,4)}, s[{S_PPO}:{S_PPO+1}] offset:{1024*i} {st}'
    p.I(f"""
    v_add_f32 v{Q1}, v{Q1}, v{Q1+2}
    v_add_f32 v{Q1+1}, v{Q1+1}, v{Q1+3}
    v_mfma_f32_16x16x16_bf16 {vr(K0,4)}, {vr(Q0+2,2)}, {vr(C_SELT,2)}, 0
    v_cvt_pk_bf16_f32 v{Q1+2}, v{Q1}, v{Q1+1}
    v_add_f32 v{K1}, v{K1}, v{K1+2}
    v_add_f32 v{K1+1}, v{K1+1}, v{K1+3}
    v_cvt_pk_bf16_f32 v{Q1+3}, v{K1}, v{K1+1}
    v_mfma_f32_16x16x16_bf16 {vr(K1,4)}, {vr(Q1+2,2)}, {vr(C_SELT,2)}, 0
    v_cvt_pk_bf16_f32 v{Q0}, v{K0}, v{K0+1}
    v_cvt_pk_bf16_f32 v{Q0+1}, v{K0+2}, v{K0+3}
    {rst(0)}
    v_cvt_pk_bf16_f32 v{Q0+2}, v{K1}, v{K1+1}
    v_cvt_pk_bf16_f32 v{Q0+3}, v{K1+2}, v{K1+3}
    v_mfma_f32_16x16x32_bf16 {vr(K0,4)}, {vr(KX,4)}, {vr(Q0,4)}, 0
    """)
    mk('sc')
    p.I(f"""
    v_mfma_f32_16x16x32_bf16 {vr(K1,4)}, {vr(KX+4,4)}, {vr(Q0,4)}, 0
    v_mfma_f32_16x16x32_bf16 {vr(Q1,4)}, {vr(Q0,4)}, {vr(Q0,4)}, 0
    {rst(1)}
    """)
    for r in range(4):
        p.I(f'v_cndmask_b32_dpp v{K0+r}, v{K1+r}, v{K0+r}, vcc quad_perm:[2,3,2,3] {DPP}')
    p.I(f'ds_write_b128 v{A_STW}, {vr(K0,4)} offset:{L_XCH}', tag='sx')
    p.I(f'v_cndmask_b32_dpp v{Q1}, v{Q1+1}, v{Q1}, vcc quad_perm:[2,3,2,3] {DPP}')
    p.I(f'ds_write_b32 v{A_MW}, v{Q1} offset:{L_XCH+1024}', tag='sx')
    mk('sw')
    for _ in range(cfg.get('nva', 6)): V()
    p.wait(lg='all')
    mk('b2a')
    p.I('s_barrier')
    mk('b2b')
    p.I(f'ds_read_b128 {vr(K1,4)}, v{A_ST1} offset:{L_XCH}', tag='s1')
    p.I(f'ds_read_b128 {vr(KX,4)}, v{A_ST2} offset:{L_XCH}', tag='s2')
    V(lambda: p.I(f'ds_read_b128 {vr(KX+4,4)}, v{A_ST3} offset:{L_XCH}', tag='s3'),
      lambda: p.I(f'ds_read_b128 {vr(Q1,4)}, v{A_L16} offset:{L_XCH+1024}', tag='sm'))
    ol = [wl(('o', t, 0), hh) for t in range(4) for hh in range(2)]
    while vq: V(ol.pop(0))
    p.wait(lg='sm')
    mk('sm0')
    T0, T1 = Q1 + 1, Q1 + 2
    def OL():
        if ol: ol.pop(0)()
    p.I(f"""
    v_add_f32 v{K0}, v{K0}, v{K1}
    v_add_f32 v{K0+1}, v{K0+1}, v{K1+1}
    v_add_f32 v{K0+2}, v{K0+2}, v{K1+2}
    v_add_f32 v{K0+3}, v{K0+3}, v{K1+3}
    v_pk_add_f32 {vr(KX,2)}, {vr(KX,2)}, {vr(KX+4,2)}
    v_pk_add_f32 {vr(KX+2,2)}, {vr(KX+2,2)}, {vr(KX+6,2)}
    v_pk_add_f32 {vr(Q1,2)}, {vr(Q1,2)}, {vr(Q1+2,2)}
    v_pk_add_f32 {vr(K0,2)}, {vr(K0,2)}, {vr(KX,2)}
    v_pk_add_f32 {vr(K0+2,2)}, {vr(K0+2,2)}, {vr(KX+2,2)}
    v_add_f32 v{Q1}, v{Q1}, v{Q1+1}
    v_max3_f32 v{T0}, v{K0}, v{K0+1}, v{K0+2}
    v_max3_f32 v{T0}, v{T0}, v{K0+3}, v{Q1}
    v_pk_add_f32 {vr(V0,2)}, {vr(V0,2)}, {vr(V0+2,2)}
    v_pk_add_f32 {vr(V1,2)}, {vr(V1,2)}, {vr(V1+2,2)}
    v_max_f32_dpp v{T0}, v{T0}, v{T0} quad_perm:[2,3,0,1] {DPP}
    v_mov_b32 v{T1}, v{T0}
    v_cvt_pk_bf16_f32 v{V0+2}, v{V0}, v{V0+1}
    v_cvt_pk_bf16_f32 v{V0+3}, v{V1}, v{V1+1}
    v_permlane16_swap_b32 v{T0}, v{T1}
    v_max_f32 v{T0}, v{T0}, v{T1}
    v_mov_b32 v{T1}, v{T0}
    v_mov_b32 v{KX+5}, 0
    v_mov_b32 v{KX+6}, 0
    v_permlane32_swap_b32 v{T0}, v{T1}
    v_max_f32 v{T0}, v{T0}, v{T1}
    """)
    mk('mx')
    p.I(f"""
    v_mul_f32 v{T1}, s{S_SC}, v{T0}
    v_pk_fma_f32 {vr(K0,2)}, {vr(K0,2)}, s[{S_SC}:{S_SC+1}], {vr(T1,2)} op_sel_hi:[1,1,0] neg_lo:[0,0,1] neg_hi:[0,0,1]
    v_pk_fma_f32 {vr(K0+2,2)}, {vr(K0+2,2)}, s[{S_SC}:{S_SC+1}], {vr(T1,2)} op_sel_hi:[1,1,0] neg_lo:[0,0,1] neg_hi:[0,0,1]
    v_fma_f32 v{Q1}, v{Q1}, s{S_SC}, -v{T1}
    v_exp_f32 v{K0}, v{K0}
    v_exp_f32 v{K0+1}, v{K0+1}
    v_exp_f32 v{K0+2}, v{K0+2}
    v_cvt_pk_bf16_f32 v{KX}, v{K0}, v{K0+1}
    v_exp_f32 v{K0+3}, v{K0+3}
    v_exp_f32 v{Q1}, v{Q1}
    v_cvt_pk_bf16_f32 v{KX+1}, v{K0+2}, v{K0+3}
    v_mov_b32_dpp v{KX+2}, v{KX} quad_perm:[2,3,0,1] {DPP}
    v_mov_b32_dpp v{T0}, v{Q1} quad_perm:[2,3,0,1] {DPP}
    v_mov_b32_dpp v{KX+3}, v{KX+1} quad_perm:[2,3,0,1] {DPP}
    v_cvt_pk_bf16_f32 v{KX+4}, v{Q1}, v{T0}
    v_cvt_pk_bf16_f32 v{KX+7}, v{Q1}, v{T0}
    v_mfma_f32_16x16x32_bf16 {vr(K1,4)}, {vr(VX,4)}, {vr(KX,4)}, 0
    """)
    mk('pv'); OL()
    p.I(f"""
    v_add_f32 v{K0}, v{K0}, v{K0+1}
    v_add_f32 v{K0+2}, v{K0+2}, v{K0+3}
    v_mfma_f32_16x16x32_bf16 {vr(V1,4)}, {vr(VX+4,4)}, {vr(KX,4)}, 0
    """)
    OL()
    p.I(f"""
    v_add_f32 v{Q1}, v{Q1}, v{K0}
    v_add_f32 v{Q1}, v{Q1}, v{K0+2}
    v_mfma_f32_16x16x16_bf16 {vr(K1,4)}, {vr(V0+2,2)}, {vr(KX+4,2)}, {vr(K1,4)}
    s_not_b64 vcc, vcc
    v_add_f32_dpp v{Q1}, v{Q1}, v{Q1} quad_perm:[2,3,0,1] {DPP}
    v_mov_b32 v{T0}, v{Q1}
    v_mfma_f32_16x16x16_bf16 {vr(V1,4)}, {vr(V0+2,2)}, {vr(KX+6,2)}, {vr(V1,4)}
    s_cmp_ge_u32 s{S_STEP}, {NSTEP-1}
    v_permlane16_swap_b32 v{Q1}, v{T0}
    v_add_f32 v{Q1}, v{Q1}, v{T0}
    v_mov_b32 v{T0}, v{Q1}
    v_cndmask_b32 v{Q0}, v{V0+2}, v{Q0}, vcc
    v_cndmask_b32 v{Q0+1}, v{V0+3}, v{Q0+1}, vcc
    v_permlane32_swap_b32 v{Q1}, v{T0}
    v_add_f32 v{Q1}, v{Q1}, v{T0}
    v_rcp_f32 v{Q1}, v{Q1}
    v_cndmask_b32_dpp v{Q0+2}, v{V0+2}, v{Q0+2}, vcc quad_perm:[2,3,0,1] {DPP}
    v_pk_mul_f32 {vr(K1,2)}, {vr(K1,2)}, {vr(Q1,2)} op_sel_hi:[1,0]
    v_pk_mul_f32 {vr(V1,2)}, {vr(V1,2)}, {vr(Q1,2)} op_sel_hi:[1,0]
    v_pk_mul_f32 {vr(K1+2,2)}, {vr(K1+2,2)}, {vr(Q1,2)} op_sel_hi:[1,0]
    v_pk_mul_f32 {vr(V1+2,2)}, {vr(V1+2,2)}, {vr(Q1,2)} op_sel_hi:[1,0]
    v_cvt_pk_bf16_f32 v{K0}, v{K1}, v{V1}
    v_cvt_pk_bf16_f32 v{K0+1}, v{K1+1}, v{V1+1}
    v_cvt_pk_bf16_f32 v{K0+2}, v{K1+2}, v{V1+2}
    v_cvt_pk_bf16_f32 v{K0+3}, v{K1+3}, v{V1+3}
    """)
    p.I(f'ds_write_b128 v{A_OW}, {vr(K0,4)}', tag='ow')
    mk('ow')
    while ol: OL()
    p.I(f"""
    v_cndmask_b32_dpp v{Q0+3}, v{V0+3}, v{Q0+3}, vcc quad_perm:[2,3,0,1] {DPP}
    s_cbranch_scc1 L_ch_done
    """)
    zmf = [f'v_mov_b64 {vr(MF+2*i,2)}, 0' for i in range(16)]
    nz = cfg.get('nz', 6)
    for x in zmf[:nz]: p.I(x)
    p.wait(lg='ow')
    mk('b3a')
    p.I('s_barrier')
    mk('b3b')
    p.I(f'ds_read_b128 {vr(Q1,4)}, v{A_OR}', tag=('or', 0))
    p.I(f'ds_read_b128 {vr(K1,4)}, v{A_OR} offset:2048', tag=('or', 1))
    for x in zmf[nz:]: p.I(x)
    OA = [Q1, K1]
    def post(t):
        a = MF + 4 * t
        return [f'v_add_f32 v{a}, v{a}, v{a+2}', f'v_add_f32 v{a+1}, v{a+1}, v{a+3}', f'v_cvt_pk_bf16_f32 v{a}, v{a}, v{a+1}']
    def pst(t): return f'buffer_store_dword v{MF+4*t}, v{A_PST}, s[{S_SRD}:{S_SRD+3}], s{S_TO+t} offen {st}'
    def W(t, cc, *shadow): smf(MF + 4 * t, OA[cc], ('o', t, cc), *shadow)
    p.wait(lg=('or', 0))
    W(0, 0, MK('w0'), wl(('o', 7, 0), 0))
    p.wait(lg=('or', 1))
    W(0, 1, wl(('o', 7, 0), 1))
    W(1, 0, wl(('o', 7, 1), 0), f's_mov_b64 s[{S_PPO}:{S_PPO+1}], s[{S_PP}:{S_PP+1}]', f's_xor_b32 s{S_PTOG}, s{S_PTOG}, 0x40000')
    W(1, 1, wl(('o', 7, 1), 1), f's_add_u32 s{S_STEP}, s{S_STEP}, 1', post(0)[0])
    for t in range(2, 8):
        W(t, 0, post(t-2)[1], post(t-2)[2])
        W(t, 1, pst(t-2), *([f's_cmp_eq_u32 s{S_LATE}, 1', MK('w7')] if t == 7 else []), post(t-1)[0])
    a = MF + 28
    p.I(post(6)[1]); p.I(post(6)[2]); p.I(pst(6))
    p.I(f'v_pk_add_f32 {vr(a,2)}, {vr(a,2)}, {vr(a+2,2)}\nv_cvt_pk_bf16_f32 v{a}, v{a}, v{a+1}')
    p.I(pst(7))
    mk('we')
    def p_poll():
        p.I(f'global_load_dwordx4 v[8:11], v{A_L16}, s[{S_PP}:{S_PP+1}] sc1')
        p.I(f'global_load_dwordx4 v[12:15], v{A_L16}, s[{S_PP}:{S_PP+1}] offset:1024 sc1')
    fl = []
    for kk in pre_keys: fl += [wl(kk, 0), wl(kk, 1)]
    fl += zacc[2:]
    p.I('s_cbranch_scc1 L_ch_h1l')
    nops(cfg.get('d1e', 64))
    p_poll()
    emit(fl)
    p.I('s_branch L_ch_h1j')
    p.L('L_ch_h1l')
    n1 = cfg.get('n1l', 12)
    emit(fl[:n1]); nops(cfg.get('d1l', 64))
    p_poll()
    emit(fl[n1:])
    p.L('L_ch_h1j')
    def attempt():
        p.I(f"""
        s_waitcnt vmcnt(1)
        v_mfma_f32_16x16x32_bf16 v[16:19], {vr(C_SELR,4)}, v[8:11], 0
        s_waitcnt vmcnt(0)
        v_mfma_f32_16x16x32_bf16 v[16:19], {vr(C_SELR,4)}, v[12:15], v[16:19]
        """)
        mk('h1r')
        p.I(f"""
        v_add_f32_dpp v16, v16, v16 row_ror:4 {DPP}
        v_add_f32_dpp v17, v17, v17 row_ror:4 {DPP}
        v_cmp_u_f32 vcc, v18, v18
        v_add_f32_dpp v16, v16, v16 row_ror:8 {DPP}
        v_add_f32_dpp v17, v17, v17 row_ror:8 {DPP}
        v_cvt_pk_bf16_f32 v16, v16, v17
        global_store_dword v{A_MST}, v16, s[{S_MS}:{S_MS+1}] {st}
        """)
    attempt()
    p.I('s_cbranch_vccnz L_ch_p1fail')
    p.L('L_ch_p1ok')
    mk('ms')
    p.I(f'global_store_dword v{A_MST}, v{C_SENT}, s[{S_MRS}:{S_MRS+1}] {st}')
    p.I('s_branch L_ch_hop2')
    p.L('L_ch_p1fail')
    p_poll()
    if cfg.get('stamps'): p.I('s_add_u32 s100, s100, 1')
    attempt()
    p.I(f"""
    s_cbranch_vccz L_ch_p1ok
    s_sub_u32 s{S_SPIN}, s{S_SPIN}, 1
    s_cbranch_scc0 L_ch_p1fail
    s_branch L_end
L_ch_p2fail:
    s_waitcnt lgkmcnt(0)
    """)
    m_ld(0); m_ld(1)
    p.I('s_nop 4')
    for i in range(8): p.I(f'v_mov_b64 {vr(Q0+2*i,2)}, 0')
    if cfg.get('stamps'): p.I('s_add_u32 s101, s101, 1')
    p.I(f"""
    s_waitcnt vmcnt(0)
    s_sub_u32 s{S_SPIN}, s{S_SPIN}, 1
    s_cbranch_scc0 L_ch_p2
    s_branch L_end
    """)
    if not nofl: fl_spin('L_ch_fl', 'L_ch_flok')
    p.L('L_ch_done')
    p.I(pubst)
    p.I(f'''
    v_mov_b32 v29, 64
    v_lshlrev_b32 v28, 2, s{S_W}
    s_waitcnt vmcnt(0)
    global_store_dword v28, v29, s[{S_FLB}:{S_FLB+1}] offset:{F_C} sc1
    ''')
    if cfg.get('stamps'):
        p.I(f"""
        s_memtime s[60:61]
        s_memrealtime s[58:59]
        s_waitcnt lgkmcnt(0)
        s_sub_u32 s60, s60, s94
        v_mov_b32 v0, s60
        v_mov_b32 v1, s58
        v_mov_b32 v2, s92
        v_mov_b32 v3, s33
        v_mov_b32 v4, s64
        v_mov_b32 v5, s100
        v_mov_b32 v6, s101
        v_mov_b32 v7, 0
        s_lshl_b32 s{S_T0}, s{S_H}, 2
        s_add_u32 s{S_T0}, s{S_T0}, s{S_W}
        s_lshl_b32 s{S_T0}, s{S_T0}, 7
        s_add_u32 s{S_T0}, s{S_T0}, {TS}
        v_mov_b32 v30, s{S_T0}
        """)
        for i in range(10): p.I(f'v_mov_b32 v{8+i}, s{72+2*i}')
        p.I('s_mov_b64 exec, 1')
        for q in range(5): p.I(f'global_store_dwordx4 v30, {vr(4*q,4)}, s[{S_WS}:{S_WS+1}] offset:{16*q}')
    p.I('s_branch L_end')

def relabel(p, start, old, new):
    for i in range(start, len(p.items)):
        it = p.items[i]
        if isinstance(it, Inst):
            if it.kind == 'branch' and it.target.startswith(old):
                p.items[i] = Inst(it.text.replace(old, new))
        elif it[0] == 'label' and it[1].startswith(old):
            p.items[i] = ('label', it[1].replace(old, new))

def build(cfg):
    import workers as Wk
    p = Prog()
    only = cfg.get('only')
    NARR[0] = 64 if only == 'chain' else 256
    FORCE[0] = cfg.get('force_safe', 0)
    common_prologue(p, cfg)
    p.I(f"""
L_role:
    s_cmp_ge_u32 s{S_H}, 32
    s_cbranch_scc1 L_norole
    s_cmp_ge_u32 s{S_XCC}, 2
    s_cbranch_scc1 {'L_end' if only == 'chain' else 'L_worker'}
    s_mov_b32 s{S_M}, s{S_XCC}
    """)
    select_model(p)
    p.I(f's_cmp_eq_u32 s{S_MODE}, 1\ns_cbranch_scc1 L_chain_safe')
    chain(p, cfg, '', 'L_ch')
    p.L('L_worker')
    p.I(f"""
    s_cmp_ge_u32 s{S_XCC}, 5
    s_cselect_b32 s{S_M}, 1, 0
    s_cselect_b32 s{S_T1}, 5, 2
    s_sub_u32 s{S_XCC}, s{S_XCC}, s{S_T1}
    """)
    select_model(p)
    p.I(f"""
    s_cmp_eq_u32 s{S_XCC}, 1
    s_cbranch_scc1 L_vw
    s_cmp_eq_u32 s{S_XCC}, 2
    s_cbranch_scc1 L_qw
    """)
    p.reset_cnt(); Wk.kv_worker(p, cfg, 'k', 'L_k')
    p.I(f's_branch L_ow')
    p.L('L_vw')
    p.reset_cnt(); Wk.kv_worker(p, cfg, 'v', 'L_v')
    p.L('L_ow')
    p.reset_cnt(); Wk.o_worker(p, cfg, 'L_o')
    p.L('L_qw')
    p.reset_cnt(); Wk.q_worker(p, cfg, 'L_q')
    p.L('L_norole')
    arrive(p, 'L_n'); wait_all(p, 'L_n')
    p.I('s_branch L_end')
    p.L('L_safe')
    load_args(p)
    p.I(f"""
    s_mov_b32 s{S_MODE}, 1
    s_and_b32 s{S_XCC}, s2, 7
    s_lshr_b32 s{S_H}, s2, 3
    v_mbcnt_lo_u32_b32 v0, -1, 0
    v_mbcnt_hi_u32_b32 v0, -1, v0
    s_waitcnt vmcnt(0) lgkmcnt(0)
    s_barrier
    s_branch L_role
    """)
    p.L('L_chain_safe')
    n0 = len(p.items)
    p.reset_cnt(); chain(p, cfg, 'sc1', 'L_ch')
    relabel(p, n0, 'L_ch', 'L_cs')
    p.L('L_end')
    p.I('s_endpgm')
    n = p.fix_hazards(cfg.get('verbose', False))
    errs = p.check_branches()
    for e in errs: print(e)
    assert not errs
    head = f'''; @launch grid=(256,1,1) block=(256,1,1) lds=163840
.amdgcn_target "amdgcn-amd-amdhsa--gfx950"
.text
.globl {NAME}
.p2align 8
.type {NAME},@function
{NAME}:
'''
    tail = f'''.section .rodata,"a"
.p2align 6
.amdhsa_kernel {NAME}
  .amdhsa_next_free_vgpr 512
  .amdhsa_next_free_sgpr 102
  .amdhsa_accum_offset 256
  .amdhsa_group_segment_fixed_size 0
  .amdhsa_kernarg_size 136
  .amdhsa_user_sgpr_count 2
  .amdhsa_user_sgpr_kernarg_segment_ptr 1
  .amdhsa_system_sgpr_workgroup_id_x 1
  .amdhsa_float_denorm_mode_32 3
.end_amdhsa_kernel
'''
    return head + p.text() + tail

if __name__ == '__main__':
    cfg = eval(sys.argv[2]) if len(sys.argv) > 2 else {}
    open(sys.argv[1], 'w').write(build(cfg))
```

```python
from asmlib import *
import kern as K
MB = 1 << 20
S_W, S_H, S_M, S_WS, S_SRD, S_SPIN = K.S_W, K.S_H, K.S_M, K.S_WS, K.S_SRD, K.S_SPIN
T0, T1, T2, T3 = K.S_T0, K.S_T1, K.S_T2, K.S_T3
S_PL, S_PH = K.S_PL, K.S_PH
S_C4K = 32
S_KV, S_FLG, S_PUB, S_OF, S_FL2, S_FL3 = 40, 42, 44, 46, 48, 50
S_IT = 26
S_SC = 67
S_SRD2 = 52
RING, ACC, QF, MASK = 128, 160, 192, 224
V_L16, V_LHI, V_KA, V_VA, V_KM, V_VM, V_Z, V_T = 240, 241, 242, 243, 244, 245, 246, 248
add64 = K.add64

def base_consts(p):
    p.I(f'''
    v_lshlrev_b32 v{V_L16}, 4, v0
    v_add_u32 v{V_LHI}, 0x10000, v{V_L16}
    v_mov_b32 v{V_Z}, 0
    s_mov_b32 s{S_PL}, 0x05040100
    s_mov_b32 s{S_PH}, 0x07060302
    ''')
    for k in range(8): p.I(f's_mov_b32 s{S_C4K+k}, {4096*k}')
    p.I(f'''
    v_lshrrev_b32 v1, 5, v0
    v_lshlrev_b32 v1, 8, v1
    v_and_b32 v2, 8, v0
    v_lshl_add_u32 v2, v2, 7, v1
    v_and_b32 v3, 16, v0
    v_lshl_add_u32 v2, v3, 3, v2
    v_and_b32 v3, 7, v0
    v_lshl_add_u32 v{V_KA}, v3, 4, v2
    v_and_b32 v3, 16, v0
    v_lshl_add_u32 v2, v3, 6, v1
    v_and_b32 v3, 15, v0
    v_lshl_add_u32 v2, v3, 4, v2
    v_add_u32 v{V_VA}, 0x800, v2
    ''')

def xf_convert(p, half):
    p.I(f'''
    s_add_u32 s{T0}, s{S_H}, {32*half}
    s_lshl_b32 s{T0}, s{T0}, 15
    v_and_b32 v1, 31, v0
    v_lshlrev_b32 v1, 10, v1
    v_lshrrev_b32 v2, 5, v0
    v_lshl_add_u32 v1, v2, 4, v1
    s_lshl_b32 s{T1}, s{S_W}, 8
    s_add_u32 s{T1}, s{T1}, s{T0}
    v_add_u32 v1, s{T1}, v1
    ''')
    for i in range(8):
        p.I(f'global_load_dwordx4 {vr(160+4*i,4)}, v1, s[{K.S_X}:{K.S_X+1}] offset:{32*i}', tag=('xc', i))
    p.I(f'''
    s_lshl_b32 s{T1}, s{S_W}, 13
    s_add_u32 s{T0}, s{T0}, s{T1}
    s_add_u32 s{T0}, s{T0}, {K.XF + 4096}
    ''')
    p.I('\n'.join(add64(S_FL3, S_WS, f's{T0}')))
def xf_store(p):
    for i in range(8):
        p.wait(vm=('xc', i))
        p.I(f'global_store_dwordx4 v{V_L16}, {vr(160+4*i,4)}, s[{S_FL3}:{S_FL3+1}] offset:{1024*i-4096} sc1')

def projw_issue(p, wptr):
    p.I(f'''
    v_and_b32 v1, 15, v0
    v_lshrrev_b32 v2, 4, v0
    v_lshlrev_b32 v3, 16, v2
    v_lshl_add_u32 v3, v1, 4, v3
    s_lshl_b32 s{T0}, s{S_W}, 20
    s_lshl_b32 s{T1}, s{S_H}, 8
    s_add_u32 s{T0}, s{T0}, s{T1}
    v_add_u32 v{V_T}, s{T0}, v3
    v_mov_b32 v{V_T+1}, v0
    ''')
    K.set_srd(p, wptr, 4 * MB)
    for q in range(4):
        for i in range(8):
            p.I(f's_mov_b32 s{T3}, {(32*q+i)*8192}')
            p.I(f'buffer_load_dwordx4 {vr(32*q+4*i,4)}, v{V_T}, s[{S_SRD}:{S_SRD+3}], s{T3} offen', tag=('pw', q))

def projw_finish(p, kind):
    L = V_T + 1
    p.I(f'''
    v_and_b32 v{V_T+2}, 15, v{L}
    v_lshrrev_b32 v{V_T+3}, 2, v{V_T+2}
    v_lshlrev_b32 v{V_T+3}, 15, v{V_T+3}
    v_lshrrev_b32 v{V_T+4}, 4, v{L}
    v_lshl_add_u32 v{V_T+3}, v{V_T+4}, 9, v{V_T+3}
    s_lshl_b32 s{T0}, s{S_W}, 13
    v_add_u32 v{V_T+3}, s{T0}, v{V_T+3}
    ''')
    if kind == 'v':
        p.I(f'v_and_b32 v{V_T+4}, 3, v{L}\nv_lshl_add_u32 v{V_T+3}, v{V_T+4}, 6, v{V_T+3}')
        statc = lambda t: 16 * (t & 1) + (t >> 1)
    else:
        p.I(f'''
        v_and_b32 v{V_T+4}, 2, v{L}
        v_lshl_add_u32 v{V_T+3}, v{V_T+4}, 7, v{V_T+3}
        v_and_b32 v{V_T+4}, 1, v{L}
        v_lshl_add_u32 v{V_T+3}, v{V_T+4}, 6, v{V_T+3}
        ''')
        statc = lambda t: 8 * (t & 1) + (t >> 1)
    for q in range(4):
        p.wait(vm=('pw', q))
        for t in range(8):
            o = 128 + 4 * t
            p.wait(lg=('pl', q - 1, t))
            for jj in range(4):
                a = 32 * q + 4 * (2 * jj) + (t >> 1); b = a + 4
                p.I(f'v_perm_b32 v{o+jj}, v{b}, v{a}, s{S_PH if t & 1 else S_PL}')
            p.I(f'ds_write_b128 v{V_T+3}, {vr(o,4)} offset:{q*2048 + statc(t)*16}', tag=('pl', q, t))
    p.wait(lg='all')

def xs(buf, ks): return vr(4 * ks, 4) if buf == 0 else ar(4 * ks, 4)
def xload(p, buf, ks):
    p.I(f'buffer_load_dwordx4 {xs(buf,ks)}, v{V_L16}, s[{S_SRD}:{S_SRD+3}], s{S_C4K+(ks>>2)} offen offset:{(ks&3)*1024} sc1', tag=('x', buf))
RD = 6
def wread(p, phi):
    phi %= 128
    a = V_L16 if phi < 64 else V_LHI
    p.I(f'ds_read_b128 {vr(RING+4*(phi%8),4)}, v{a} offset:{(phi%64)*1024}', tag=('w', phi))

def proj_setup(p):
    p.I(f'''
    s_lshl_b32 s{T0}, s{S_W}, 15
    s_add_u32 s{T0}, s{T0}, {K.XF}
    s_add_u32 s{S_SRD}, s{S_WS}, s{T0}
    s_addc_u32 s{S_SRD+1}, s{S_WS+1}, 0
    s_mov_b32 s{S_SRD+2}, 0x8000
    s_mov_b32 s{S_SRD+3}, 0x20000
    ''')
    for ks in range(32): xload(p, 0, ks)
    p.I('\n'.join(add64(S_SRD, S_SRD, 4 * 32768)))
    p.I(f'''
    s_lshl_b32 s{T0}, s{S_W}, 19
    s_lshl_b32 s{T1}, s{S_H}, 14
    s_add_u32 s{T0}, s{T0}, s{T1}
    s_add_u32 s{S_SRD2}, s{S_WS}, s{T0}
    s_addc_u32 s{S_SRD2+1}, s{S_WS+1}, 0
    s_mov_b32 s{S_SRD2+2}, 0x4000
    s_mov_b32 s{S_SRD2+3}, 0x20000
    s_mov_b32 s{S_IT}, 0
    ''')

def proj_body(p, kind, buf, extra, ringcont=True):
    nl = 0
    for et in range(4):
        acc = ACC + 16 * (et & 1)
        for ks in range(32):
            phi = 32 * et + ks
            if phi + RD < 128 or ringcont: wread(p, phi + RD)
            p.wait(lg=('w', phi))
            w = vr(RING + 4 * (phi % 8), 4)
            a, b = (xs(buf, ks), w) if kind == 'v' else (w, xs(buf, ks))
            p.I(f'v_mfma_f32_32x32x16_bf16 {vr(acc,16)}, {a}, {b}, {"0" if ks == 0 else vr(acc,16)}')
            if phi % 3 == 2 and nl < 32:
                xload(p, 1 - buf, nl); nl += 1
            for x in extra.get((et, ks), []):
                if callable(x): x()
                else: p.I(x)
    p.I('\n'.join(add64(S_SRD, S_SRD, 4 * 32768)))

def pack(dst, acc):
    return [f'v_cvt_pk_bf16_f32 v{dst+i}, v{acc+2*i}, v{acc+2*i+1}' for i in range(8)]

def kv_worker(p, cfg, kind, lab):
    half = 0 if kind == 'k' else 1
    base_consts(p)
    xf_convert(p, half)
    projw_issue(p, K.S_WK if kind == 'k' else K.S_WV)
    p.I(f'''
    s_lshl_b32 s{T0}, s{S_H}, 4
    s_lshl_b32 s{T1}, s{S_W}, 2
    s_add_u32 s{T0}, s{T0}, s{T1}
    s_add_u32 s{T0}, s{T0}, {K.FL + (K.F_K if kind == 'k' else K.F_V)}
    ''')
    p.I('\n'.join(add64(S_FLG, S_WS, f's{T0}')))
    p.I(f'v_mov_b32 v{V_T+5}, s{S_W}\nglobal_store_dword v{V_Z}, v{V_T+5}, s[{S_FLG}:{S_FLG+1}] sc1')
    xf_store(p)
    projw_finish(p, kind)
    K.arrive(p, lab)
    K.wait_all(p, lab)
    p.reset_cnt()
    proj_setup(p)
    for phi in range(RD): wread(p, phi)
    va = V_KA if kind == 'k' else V_VA
    def epi(et, tag):
        acc = ACC + 16 * (et & 1); pk = pack(QF + 8 * (et & 1), acc)
        st = [lambda f=f: p.I(f'buffer_store_dwordx4 {vr(QF+8*(et&1)+4*f,4)}, v{va}, s[{S_SRD2}:{S_SRD2+3}], s{S_C4K+et} offen offset:{512*f} sc1', tag=tag) for f in range(2)]
        return pk, st
    def sched(extra, et_run, et, tag, post=()):
        pk, st = epi(et, tag)
        for i in range(4): extra.setdefault((et_run, 3 + i), []).extend(pk[2*i:2*i+2])
        extra.setdefault((et_run, 6), []).append(st[0]); extra.setdefault((et_run, 9), []).append(st[1])
        extra[(et_run, 9)].extend(post)
    def flag():
        p.wait(vm='e3')
        p.I(f's_lshl_b32 s{T0}, s{S_IT}, 2\ns_add_u32 s{T0}, s{T0}, s{S_W}\nv_mov_b32 v{V_T}, s{T0}')
        p.I(f'global_store_dword v{V_Z}, v{V_T}, s[{S_FLG}:{S_FLG+1}] sc1')
    adv = add64(S_SRD2, S_SRD2, 4 * 32 * 16384)
    def body(buf, first):
        extra = {}
        if not first:
            sched(extra, 0, 3, 'e3', adv)
            extra.setdefault((1, 20), []).append(flag)
        for et in range(3): sched(extra, et + 1, et, 'e')
        proj_body(p, kind, buf, extra)
        p.I(f's_add_u32 s{S_IT}, s{S_IT}, 1')
    p.wait(vm='all')
    body(0, True)
    lg0 = list(p.lg)
    p.L(f'{lab}_loop')
    p.I('s_waitcnt vmcnt(2)'); p.vm = []
    body(1, False)
    p.I(f's_cmp_ge_u32 s{S_IT}, 16\ns_cbranch_scc1 {lab}_fin')
    p.I('s_waitcnt vmcnt(2)'); p.vm = []
    body(0, False)
    assert p.lg == lg0
    p.I(f's_branch {lab}_loop')
    p.L(f'{lab}_fin')
    pk, st = epi(3, 'e3')
    p.I('s_nop 12')
    for x in pk: p.I(x)
    for x in st: x()
    flag()
    p.I('s_waitcnt vmcnt(0) lgkmcnt(0)')
    p.reset_cnt()

def poll_flags(p, lab, sbase, nl, need_s, vaddr):
    p.I(f'''
{lab}:
    global_load_dword v{V_T}, v{vaddr}, s[{sbase}:{sbase+1}] sc1
    s_waitcnt vmcnt(0)
    v_cmp_gt_u32 vcc, s{need_s}, v{V_T}
    s_cbranch_vccz {lab}_ok
    s_sleep 2
    s_sub_u32 s{S_SPIN}, s{S_SPIN}, 1
    s_cbranch_scc0 {lab}
    s_branch L_end
{lab}_ok:
    ''')
    p.vm = []

def q_worker(p, cfg, lab):
    base_consts(p)
    projw_issue(p, K.S_WQ)
    L = V_T + 1
    p.I(f'''
    s_lshl_b32 s{T0}, s{S_W}, 7
    s_lshl_b32 s{T1}, s{S_H}, 2
    s_add_u32 s{T0}, s{T0}, s{T1}
    s_add_u32 s{T0}, s{T0}, {K.FL + K.F_O}
    ''')
    p.I('\n'.join(add64(S_FLG, S_WS, f's{T0}')))
    p.I(f'global_store_dword v{V_Z}, v{V_Z}, s[{S_FLG}:{S_FLG+1}] sc1')
    p.I(f'''
    s_lshl_b32 s{T0}, s{S_H}, 4
    s_add_u32 s{T2}, s{T0}, {K.FL + K.F_C}
    s_lshl_b32 s{T1}, s{S_W}, 2
    s_add_u32 s{T0}, s{T0}, s{T1}
    s_add_u32 s{T0}, s{T0}, {K.FL + K.F_K}
    ''')
    p.I('\n'.join(add64(S_FL2, S_WS, f's{T0}') + add64(S_FL3, S_WS, f's{T2}')))
    V_FKV, V_FC = 254, 255
    p.I(f'''
    v_and_b32 v{V_FKV}, 1, v{L}
    v_mul_u32_u24 v{V_FKV}, {K.F_V - K.F_K}, v{V_FKV}
    v_and_b32 v{V_FC}, 3, v{L}
    v_lshlrev_b32 v{V_FC}, 2, v{V_FC}
    ''')
    p.I(f'''
    v_lshrrev_b32 v{V_T+2}, 5, v{L}
    v_lshlrev_b32 v{V_T+3}, 8, v{V_T+2}
    v_and_b32 v{V_T+4}, 6, v{L}
    v_lshl_add_u32 v{V_T+3}, v{V_T+4}, 5, v{V_T+3}
    v_and_b32 v{V_T+4}, 1, v{L}
    v_lshl_add_u32 v{V_KM}, v{V_T+4}, 4, v{V_T+3}
    v_lshlrev_b32 v{V_T+3}, 9, v{V_T+2}
    v_and_b32 v{V_T+4}, 15, v{L}
    v_or_b32 v{V_T+4}, 2, v{V_T+4}
    v_lshl_add_u32 v{V_T+3}, v{V_T+4}, 4, v{V_T+3}
    v_and_b32 v{V_T+4}, 16, v{L}
    v_lshrrev_b32 v{V_T+4}, 2, v{V_T+4}
    v_add_u32 v{V_T+3}, v{V_T+3}, v{V_T+4}
    v_and_b32 v{V_T+4}, 2, v{L}
    v_xor_b32 v{V_T+4}, 2, v{V_T+4}
    v_lshl_add_u32 v{V_VM}, v{V_T+4}, 2, v{V_T+3}
    ''')
    p.I(f'''
    v_and_b32 v{V_T+3}, 31, v{L}
    v_lshlrev_b32 v{V_T+2}, 2, v{V_T+2}
    v_sub_u32 v{V_T+3}, v{V_T+3}, v{V_T+2}
    v_mov_b32 v{V_T+4}, 0xf149f2ca
    s_mov_b32 s{S_SC}, 0x3e0293ee
    ''')
    for r in range(16):
        p.I(f'v_cmp_gt_i32 vcc, {8*(r>>2)+(r&3)}, v{V_T+3}\nv_cndmask_b32 v{MASK+r}, 0, v{V_T+4}, vcc')
    projw_finish(p, 'q')
    K.arrive(p, lab)
    K.wait_all(p, lab)
    p.reset_cnt()
    proj_setup(p)
    p.I(f'''
    s_lshl_b32 s{T0}, s{S_W}, 17
    s_lshl_b32 s{T1}, s{S_H}, 12
    s_add_u32 s{T0}, s{T0}, s{T1}
    s_add_u32 s{T1}, s{T0}, {K.KVM}
    s_lshl_b32 s{T0}, s{T0}, 1
    s_add_u32 s{T0}, s{T0}, {K.OF + 4096}
    ''')
    p.I('\n'.join(add64(S_PUB, S_WS, f's{T1}') + add64(S_OF, S_WS, f's{T0}')))
    AK, AV, AM, AVM = 128, 160, 192, 224
    S, SM = ACC, ACC + 16
    P, PM, OP = RING, RING + 8, RING + 12
    TM, TN = V_T + 2, V_T + 3
    def body(buf, n):
        p.lg = []
        for phi in range(RD): wread(p, phi)
        p.I('s_waitcnt vmcnt(0)'); p.vm = []
        extra = {}
        for et in range(3):
            pk = pack(QF + 8 * et, ACC + 16 * (et & 1))
            for i in range(4): extra.setdefault((et + 1, 3 + i), []).extend(pk[2*i:2*i+2])
        proj_body(p, 'q', buf, extra, ringcont=False)
        p.I(f's_add_u32 s{S_IT}, s{S_IT}, 1')
        p.I(f's_lshl_b32 s{T2}, s{S_IT}, 2\ns_add_u32 s{T2}, s{T2}, s{S_W}\ns_sub_u32 s{T2}, s{T2}, 3')
        poll_flags(p, f'{lab}_pk{n}', S_FL2, 2, T2, V_FKV)
        for et in range(4):
            for f in range(2):
                p.I(f'buffer_load_dwordx4 {ar(AK+8*et+4*f,4)}, v{V_KA}, s[{S_SRD2}:{S_SRD2+3}], s{S_C4K+et} offen offset:{512*f} sc1', tag=('k', et, f))
        for et in range(4):
            for f in range(2):
                p.I(f'buffer_load_dwordx4 {ar(AV+8*et+4*f,4)}, v{V_VA}, s[{S_SRD2}:{S_SRD2+3}], s{S_C4K+et} offen offset:{512*f} sc1', tag='v')
        for x in pack(QF + 24, ACC + 16): p.I(x)
        p.I('\n'.join(add64(S_SRD2, S_SRD2, 4 * 32 * 16384)))
        for i in range(8):
            p.wait(vm=('k', i >> 1, i & 1))
            p.I(f'v_mfma_f32_32x32x16_bf16 {vr(S,16)}, {ar(AK+4*i,4)}, {vr(QF+4*i,4)}, {vr(MASK,16) if i == 0 else vr(S,16)}')
        poll_flags(p, f'{lab}_pc{n}', S_FL3, 4, T2, V_FC)
        for i in range(8):
            p.I(f'global_load_dwordx4 {ar(AM+4*i,4)}, v{V_KM}, s[{S_PUB}:{S_PUB+1}] offset:{512*i} sc1', tag=('m', i))
        for et in range(4):
            for d in range(2):
                p.I(f'global_load_dword a{AVM+2*et+d}, v{V_VM}, s[{S_PUB}:{S_PUB+1}] offset:{1024*et+256*d} sc1', tag='vm')
        p.I('\n'.join(add64(S_PUB, S_PUB, 4 * 32 * 4096)))
        p.I(f'v_max3_f32 v{TM}, v{S}, v{S+1}, v{S+2}')
        for i in range(3, 15, 2): p.I(f'v_max3_f32 v{TM}, v{TM}, v{S+i}, v{S+i+1}')
        p.I(f'v_max_f32 v{TM}, v{TM}, v{S+15}')
        for i in range(8):
            p.wait(vm=('m', i))
            p.I(f'v_mfma_f32_32x32x16_bf16 {vr(SM,16)}, {ar(AM+4*i,4)}, {vr(QF+4*i,4)}, {"0" if i == 0 else vr(SM,16)}')
        p.I(f'''
        v_max3_f32 v{TM}, v{TM}, v{SM}, v{SM+1}
        v_max3_f32 v{TM}, v{TM}, v{SM+2}, v{SM+3}
        v_mov_b32 v{TN}, v{TM}
        v_permlane32_swap_b32 v{TM}, v{TN}
        v_max_f32 v{TM}, v{TM}, v{TN}
        v_mul_f32 v{TM}, s{S_SC}, v{TM}
        ''')
        for r in range(20):
            p.I(f'v_fma_f32 v{S+r}, v{S+r}, s{S_SC}, -v{TM}')
        for r in range(20): p.I(f'v_exp_f32 v{S+r}, v{S+r}')
        for i in range(10): p.I(f'v_cvt_pk_bf16_f32 v{P+i}, v{S+2*i}, v{S+2*i+1}')
        for i in range(5): p.I(f'v_pk_add_f32 {vr(S+4*i,2)}, {vr(S+4*i,2)}, {vr(S+4*i+2,2)}')
        p.I(f'''
        v_pk_add_f32 {vr(S,2)}, {vr(S,2)}, {vr(S+4,2)}
        v_pk_add_f32 {vr(S+8,2)}, {vr(S+8,2)}, {vr(S+12,2)}
        v_pk_add_f32 {vr(S,2)}, {vr(S,2)}, {vr(S+16,2)}
        v_pk_add_f32 {vr(S,2)}, {vr(S,2)}, {vr(S+8,2)}
        v_add_f32 v{TM}, v{S}, v{S+1}
        v_mov_b32 v{TN}, v{TM}
        v_permlane32_swap_b32 v{TM}, v{TN}
        v_add_f32 v{TM}, v{TM}, v{TN}
        v_rcp_f32 v{TM}, v{TM}
        s_waitcnt vmcnt(0)
        ''')
        p.vm = []
        def fin(et):
            acc = ACC + 16 * (et & 1); o = OP + 8 * (et & 1)
            for i in range(16): p.I(f'v_mul_f32 v{acc+i}, v{acc+i}, v{TM}')
            for x in pack(o, acc): p.I(x)
            for f in range(2):
                p.I(f'global_store_dwordx4 v{V_L16}, {vr(o+4*f,4)}, s[{S_OF}:{S_OF+1}] offset:{2048*et+1024*f-4096} sc1')
        for et in range(4):
            acc = ACC + 16 * (et & 1)
            p.I(f'v_mfma_f32_32x32x16_bf16 {vr(acc,16)}, {ar(AV+8*et,4)}, {vr(P,4)}, 0')
            p.I(f'v_mfma_f32_32x32x16_bf16 {vr(acc,16)}, {ar(AV+8*et+4,4)}, {vr(P+4,4)}, {vr(acc,16)}')
            p.I(f'v_mfma_f32_32x32x8_bf16 {vr(acc,16)}, {ar(AVM+2*et,2)}, {vr(PM,2)}, {vr(acc,16)}')
            if et > 0: fin(et - 1)
        fin(3)
        p.I('\n'.join(add64(S_OF, S_OF, 4 * 32 * 8192)))
        p.I(f'''
        v_mov_b32 v{V_T}, s{S_IT}
        s_waitcnt vmcnt(0)
        global_store_dword v{V_Z}, v{V_T}, s[{S_FLG}:{S_FLG+1}] sc1
        ''')
    p.L(f'{lab}_loop')
    body(0, 0)
    body(1, 1)
    p.I(f's_cmp_lt_u32 s{S_IT}, 16\ns_cbranch_scc1 {lab}_loop')
    p.I('s_branch L_end')

def o_worker(p, cfg, lab):
    L = V_T + 1
    p.I('s_barrier')
    p.I(f'''
    v_lshrrev_b32 v1, 4, v{L}
    v_lshlrev_b32 v1, 15, v1
    v_and_b32 v2, 4, v{L}
    v_lshl_add_u32 v1, v2, 11, v1
    v_and_b32 v2, 8, v{L}
    v_lshl_add_u32 v1, v2, 7, v1
    v_and_b32 v2, 3, v{L}
    v_lshl_add_u32 v1, v2, 4, v1
    s_lshl_b32 s{T0}, s{S_W}, 20
    s_and_b32 s{T1}, s{S_H}, 15
    s_lshl_b32 s{T1}, s{T1}, 6
    s_add_u32 s{T0}, s{T0}, s{T1}
    v_add_u32 v{V_T}, s{T0}, v1
    ''')
    p.I(f'''
    s_lshl_b32 s{T0}, s{S_W}, 14
    v_lshlrev_b32 v1, 7, v{L}
    v_add_u32 v{V_T+2}, s{T0}, v1
    v_add_u32 v{V_T+3}, s{T0}, v{V_L16}
    ''')
    K.set_srd(p, K.S_WO, 4 * MB)
    def issue(q):
        for i in range(8):
            row = 16 * (i >> 2) + 2 * (i & 3)
            p.I(f's_mov_b32 s{T3}, {q*131072 + row*1024}')
            p.I(f'buffer_load_dwordx4 {vr(32*(q%6)+4*i,4)}, v{V_T}, s[{S_SRD}:{S_SRD+3}], s{T3} offen', tag=('ow', q))
    for q in range(6): issue(q)
    for q in range(8):
        p.wait(vm=('ow', q))
        p.wait(lg='all')
        for t in range(8):
            o = 192 + 4 * t
            for jj in range(4):
                a = 32 * (q % 6) + 8 * jj + (t >> 1); b = a + 4
                p.I(f'v_perm_b32 v{o+jj}, v{b}, v{a}, s{S_PH if t & 1 else S_PL}')
            p.I(f'ds_write_b128 v{V_T+2}, {vr(o,4)} offset:{(q&1)*8192 + t*16}', tag='ol')
        if q + 6 < 8: issue(q + 6)
        p.wait(lg='all')
        for fr in range(8):
            p.I(f'ds_read_b128 {ar(32*q+4*fr,4)}, v{V_T+3} offset:{(q&1)*8192 + fr*1024}', tag='or')
    p.wait(lg='all')
    p.I('s_barrier')
    p.I(f'''
    s_lshr_b32 s{T2}, s{S_H}, 4
    s_lshl_b32 s{T0}, s{K.S_XCC}, 1
    s_add_u32 s{T2}, s{T2}, s{T0}
    s_lshl_b32 s{T0}, s{T2}, 18
    s_lshl_b32 s{T1}, s{S_W}, 16
    s_add_u32 s{T0}, s{T0}, s{T1}
    s_add_u32 s{T0}, s{T0}, {K.OF}
    s_add_u32 s{S_SRD}, s{S_WS}, s{T0}
    s_addc_u32 s{S_SRD+1}, s{S_WS+1}, 0
    s_mov_b32 s{S_SRD+2}, 0x10000
    s_mov_b32 s{S_SRD+3}, 0x20000
    s_lshl_b32 s{T0}, s{T2}, 7
    s_lshl_b32 s{T1}, s{S_W}, 5
    s_add_u32 s{T0}, s{T0}, s{T1}
    s_add_u32 s{T0}, s{T0}, {K.FL + K.F_O}
    s_add_u32 s{S_FL2}, s{S_WS}, s{T0}
    s_addc_u32 s{S_FL2+1}, s{S_WS+1}, 0
    v_and_b32 v{V_KM}, 7, v{L}
    v_lshlrev_b32 v{V_KM}, 2, v{V_KM}
    s_lshl_b32 s{T0}, s{T2}, 16
    s_lshl_b32 s{T1}, s{S_M}, 10
    s_add_u32 s{T0}, s{T0}, s{T1}
    s_and_b32 s{T1}, s{S_H}, 15
    s_lshl_b32 s{T1}, s{T1}, 6
    s_add_u32 s{T0}, s{T0}, s{T1}
    s_lshl_b32 s{T1}, s{S_W}, 4
    s_add_u32 s{T0}, s{T0}, s{T1}
    s_add_u32 s{S_OF}, s{K.S_OUT}, s{T0}
    s_addc_u32 s{S_OF+1}, s{K.S_OUT+1}, 0
    v_and_b32 v1, 31, v{L}
    v_lshlrev_b32 v1, 11, v1
    v_lshrrev_b32 v2, 5, v{L}
    v_lshl_add_u32 v{V_VM}, v2, 3, v1
    v_add_u32 v{V_LHI}, 0x8000, v{V_L16}
    s_lshl_b32 s{T0}, s{S_W}, 12
    v_add_u32 v{V_KA}, s{T0}, v{V_L16}
    s_lshl_b32 s{T0}, s{S_W}, 10
    v_add_u32 v{V_VA}, s{T0}, v{V_L16}
    s_mov_b32 s{S_IT}, 0
    ''')
    NB = 52
    A = 208
    def old(k):
        va = V_L16 if k < 32 else V_LHI
        p.I(f'buffer_load_dwordx4 {vr(4*(k%NB),4)}, v{va}, s[{S_SRD}:{S_SRD+3}], s{S_C4K+((k%32)>>2)} offen offset:{(k&3)*1024} sc1', tag=('o', k))
    def body(par):
        p.I(f's_add_u32 s{S_IT}, s{S_IT}, 1')
        poll_flags(p, f'{lab}_pf{par}', S_FL2, 8, S_IT, V_KM)
        for k in range(NB): old(k)
        for k in range(64):
            p.wait(vm=('o', k))
            p.I(f'v_mfma_f32_32x32x16_bf16 {vr(A,16)}, {ar(4*k,4)}, {vr(4*(k%NB),4)}, {"0" if k == 0 else vr(A,16)}')
            if k + NB < 64: old(k + NB)
        p.I('\n'.join(add64(S_SRD, S_SRD, 4 * 32 * 8192)))
        p.lg = []
        for q in range(4):
            p.I(f'ds_write_b128 v{V_KA}, {vr(A+4*q,4)} offset:{par*16384 + q*1024}')
        p.I('s_waitcnt lgkmcnt(0)\ns_barrier')
        for q in range(4):
            p.I(f'ds_read_b128 {vr(A+4*q,4)}, v{V_VA} offset:{par*16384 + q*4096}')
        p.I(f'''
        s_waitcnt lgkmcnt(0)
        v_pk_add_f32 {vr(A,2)}, {vr(A,2)}, {vr(A+4,2)}
        v_pk_add_f32 {vr(A+2,2)}, {vr(A+2,2)}, {vr(A+6,2)}
        v_pk_add_f32 {vr(A+8,2)}, {vr(A+8,2)}, {vr(A+12,2)}
        v_pk_add_f32 {vr(A+10,2)}, {vr(A+10,2)}, {vr(A+14,2)}
        v_pk_add_f32 {vr(A,2)}, {vr(A,2)}, {vr(A+8,2)}
        v_pk_add_f32 {vr(A+2,2)}, {vr(A+2,2)}, {vr(A+10,2)}
        v_cvt_pk_bf16_f32 v{A+16}, v{A}, v{A+1}
        v_cvt_pk_bf16_f32 v{A+17}, v{A+2}, v{A+3}
        global_store_dwordx2 v{V_VM}, {vr(A+16,2)}, s[{S_OF}:{S_OF+1}]
        ''')
        p.I('\n'.join(add64(S_OF, S_OF, 4 * 32 * 2048)))
    p.L(f'{lab}_loop')
    body(0); body(1)
    p.I(f's_cmp_lt_u32 s{S_IT}, 16\ns_cbranch_scc1 {lab}_loop')
    p.I('s_branch L_end')
```

```python
import sys
sys.path.insert(0, 'gen')
import kern
cfg = eval(sys.argv[2]) if len(sys.argv) > 2 else {}
ref = open('concat_heads__memory_aug_recurrent_mem_tr__memory_aug_recurrent_mem_tr__prompt.s.ref').read().split('\n')
hdr = [l for l in ref if l.startswith(';') and '@launch' not in l and 'Override' not in l and 'grid=ceil' not in l]
open(sys.argv[1], 'w').write('\n'.join(hdr) + '\n' + kern.build(cfg))
```

```python
import sys
sys.path.insert(0, 'gen')
from asmlib import *

NAME = 'concat_heads__memory_aug_recurrent_mem_tr__memory_aug_recurrent_mem_tr__prompt_kernel'
MB = 1 << 20
WS_MODEL = 64 * MB
KVF, OF, KVM, XF = 0, 32 * MB, 48 * MB, 56 * MB
PR = 58 * MB
MR = PR + 512 * 1024
FL = 59 * MB
TS = 60 * MB
SENT = 0xffc0ffc0
F_K, F_V, F_C, F_O = 0, 16384, 32768, 49152
SAFE_OFF = 3 * MB

S_X, S_MEM0, S_WQ, S_WK, S_WV, S_WO = 4, 6, 8, 10, 12, 14
S_OUT, S_DBG, S_WS = 16, 18, 20
S_XCC, S_W, S_H, S_M = 22, 23, 24, 25
S_STEP, S_SPIN = 26, 27
S_SRD = 28
S_PP, S_MS, S_MRS, S_MP, S_KV, S_PUB, S_PPO = 34, 36, 38, 40, 42, 44, 46
S_TO = 50
S_LATE = 32
S_MQ1 = 48
S_T0, S_T1, S_T2, S_T3 = 58, 59, 60, 61
S_PTOG, S_MTOG = 62, 63
S_OPS, S_OPP, S_OMP = 64, 65, 66
S_SC = 98
S_MODE, S_FLB, S_FLC = 3, 96, 4
S_PL, S_PH = 68, 69
S_SENT, S_THR = 70, 71
S_ST = 72

MF, SB = 0, 32
Q0, Q1, K0, K1, V0, V1 = 64, 68, 72, 76, 80, 84
KX, VX = 88, 96
C_IDX, A_L16, C_SELT, C_SELR = 104, 105, 106, 108
A_PST, A_MST, A_STW, A_ST1, A_ST2, A_ST3, A_WL, A_MW, A_OW, A_OR = 112, 113, 114, 115, 116, 117, 118, 119, 120, 121
A_FL, V_FL = 122, 123
C_SENT = 124
ALAND = 240
L_STG, L_XCH, L_W = 0, 8192, 16384
HOME = {}
for sg in range(8):
    for tt in range(2): HOME[('q', sg, tt)] = ('a', 16 * sg + 8 * tt)
_l = 0
for key in [('k', 0, 0), ('k', 0, 1), ('k', 1, 0), ('k', 1, 1), ('k', 4, 0), ('k', 4, 1), ('k', 5, 0), ('k', 5, 1),
            ('v', 2, 0), ('v', 2, 1), ('v', 3, 0), ('v', 3, 1),
            ('o', 0, 0), ('o', 1, 0), ('o', 2, 0), ('o', 3, 0), ('o', 6, 1), ('o', 7, 1)]:
    HOME[key] = ('l', _l); _l += 1
_a = 128
for sg in (0, 1, 4, 5, 6, 7):
    for tt in range(2): HOME[('v', sg, tt)] = ('a', _a); _a += 8
for tt in range(2): HOME[('k', 7, tt)] = ('a', _a); _a += 8
assert _a == ALAND
_v = 128
for t in range(8):
    for cc in range(2):
        if ('o', t, cc) not in HOME: HOME[('o', t, cc)] = ('v', _v); _v += 8
for sg in (2, 3, 6):
    for tt in range(2): HOME[('k', sg, tt)] = ('v', _v); _v += 8
assert _v == 256
def sbslot(key): return SB + 8 * (HOME[key][1] % 4)

def add64(dst, base, off_s):
    return [f's_add_u32 s{dst}, s{base}, {off_s}', f's_addc_u32 s{dst+1}, s{base+1}, 0']

def load_args(p):
    p.I(f"""
    s_load_dwordx4 s[{S_X}:{S_X+3}], s[0:1], 0
    s_load_dwordx4 s[{S_WQ}:{S_WQ+3}], s[0:1], 16
    s_load_dwordx4 s[{S_WV}:{S_WV+3}], s[0:1], 32
    s_load_dwordx2 s[32:33], s[0:1], 56
    s_load_dwordx4 s[36:39], s[0:1], 64
    s_load_dwordx4 s[40:43], s[0:1], 80
    s_load_dwordx2 s[44:45], s[0:1], 96
    s_load_dwordx4 s[{S_OUT}:{S_OUT+3}], s[0:1], 112
    s_load_dwordx2 s[{S_WS}:{S_WS+1}], s[0:1], 128
    """)

def common_prologue(p, cfg):
    p.I("""
    s_cmp_ge_u32 s2, 256
    s_cbranch_scc1 L_end
    """)
    load_args(p)
    p.I(f"""
    s_getreg_b32 s{S_XCC}, hwreg(HW_REG_XCC_ID)
    s_and_b32 s{S_XCC}, s{S_XCC}, 7
    v_lshrrev_b32 v1, 6, v0
    v_and_b32 v0, 63, v0
    v_readfirstlane_b32 s{S_W}, v1
    s_mov_b32 s{S_SPIN}, {cfg.get('spin', 2000000)}
    s_mov_b32 s{S_MODE}, 0
    s_waitcnt lgkmcnt(0)
    """)
    if cfg.get('stamps'):
        p.I(f's_memrealtime s[94:95]')
    p.I(f"""
    s_cmp_eq_u32 s{S_W}, 0
    s_cbranch_scc0 L_noticket
    s_mov_b64 exec, 1
    s_lshl_b32 s{S_T0}, s{S_XCC}, 5
    v_mov_b32 v1, s{S_T0}
    v_mov_b32 v2, 1
    global_atomic_add v3, v1, v2, s[{S_DBG}:{S_DBG+1}] sc0
    v_mov_b32 v1, 0
    s_waitcnt vmcnt(0)
    ds_write_b32 v1, v3
    s_waitcnt lgkmcnt(0)
    s_mov_b64 exec, -1
L_noticket:
    s_barrier
    v_mov_b32 v1, 0
    ds_read_b32 v3, v1
    s_waitcnt lgkmcnt(0)
    v_readfirstlane_b32 s{S_H}, v3
    s_barrier
    """)

AV = (1, 2)
def arrive(p, lab, tv=(252, 253), keep=0):
    p.I(f"""
    s_waitcnt vmcnt({keep}) lgkmcnt(0)
    s_barrier
    s_cmp_eq_u32 s{S_W}, 0
    s_cbranch_scc0 {lab}_noarr
    s_mov_b64 exec, 1
    s_lshl_b32 s{S_T0}, s{S_MODE}, 5
    s_add_u32 s{S_T0}, s{S_T0}, 208
    v_mov_b32 v{tv[0]}, s{S_T0}
    v_mov_b32 v{tv[1]}, 1
    global_atomic_add v{tv[0]}, v{tv[1]}, s[{S_DBG}:{S_DBG+1}]
    s_mov_b64 exec, -1
{lab}_noarr:
    """)
    if keep: p.vm = p.vm[-keep-1:-1]
    else: p.reset_cnt()

NARR = [256]
FORCE = [0]
def wait_all(p, lab, tv=(252, 253)):
    p.I(f"""
    v_mbcnt_lo_u32_b32 v{tv[0]}, -1, 0
    v_and_b32 v{tv[0]}, 15, v{tv[0]}
    v_lshlrev_b32 v{tv[0]}, 4, v{tv[0]}
    s_lshl_b32 s{S_T1}, s{S_MODE}, 1
    s_add_u32 s{S_T1}, s{S_T1}, 13
{lab}_wa:
    global_load_dword v{tv[1]}, v{tv[0]}, s[{S_DBG}:{S_DBG+1}] sc1
    s_waitcnt vmcnt(0)
    v_readlane_b32 s{S_T0}, v{tv[1]}, s{S_T1}
    s_cmp_ge_u32 s{S_T0}, {NARR[0]}
    s_cbranch_scc1 {lab}_wb
    s_sleep 4
    s_sub_u32 s{S_SPIN}, s{S_SPIN}, 1
    s_cbranch_scc0 {lab}_wa
    s_branch L_end
{lab}_wb:
    s_cmp_eq_u32 s{S_MODE}, 1
    s_cbranch_scc1 {lab}_wc
    global_load_dword v{tv[1]}, v{tv[0]}, s[{S_DBG}:{S_DBG+1}] sc1
    s_waitcnt vmcnt(0)
    v_cmp_ne_u32 vcc, {32 + FORCE[0]}, v{tv[1]}
    s_and_b32 s{S_T0}, vcc_lo, 0x5555
    s_cbranch_scc1 L_safe
{lab}_wc:
    """)
    p.reset_cnt()

def select_model(p):
    p.I(f'''
    s_cmp_eq_u32 s{S_M}, 1
    s_cselect_b64 s[{S_X}:{S_X+1}], s[32:33], s[{S_X}:{S_X+1}]
    s_cselect_b64 s[{S_MEM0}:{S_MEM0+1}], s[36:37], s[{S_MEM0}:{S_MEM0+1}]
    s_cselect_b64 s[{S_WQ}:{S_WQ+1}], s[38:39], s[{S_WQ}:{S_WQ+1}]
    s_cselect_b64 s[{S_WK}:{S_WK+1}], s[40:41], s[{S_WK}:{S_WK+1}]
    s_cselect_b64 s[{S_WV}:{S_WV+1}], s[42:43], s[{S_WV}:{S_WV+1}]
    s_cselect_b64 s[{S_WO}:{S_WO+1}], s[44:45], s[{S_WO}:{S_WO+1}]
    s_lshl_b32 s{S_T0}, s{S_M}, 26
    s_add_u32 s{S_WS}, s{S_WS}, s{S_T0}
    s_addc_u32 s{S_WS+1}, s{S_WS+1}, 0
    ''')

def set_srd(p, ptr, nbytes):
    p.I(f'''
    s_mov_b32 s{S_SRD}, s{ptr}
    s_and_b32 s{S_SRD+1}, s{ptr+1}, 0xffff
    s_mov_b32 s{S_SRD+2}, {nbytes}
    s_mov_b32 s{S_SRD+3}, 0x20000
    ''')

def chain_consts(p, RO):
    p.I(f'''
    v_and_b32 v1, 15, v0
    v_lshrrev_b32 v2, 4, v0
    v_lshlrev_b32 v{A_L16}, 4, v0
    s_mov_b32 s{S_MQ1}, 0xcccccccc
    s_mov_b32 s{S_MQ1+1}, 0xcccccccc
    s_mov_b32 s{S_SC}, 0x3e0293ee
    s_mov_b32 s{S_PL}, 0x05040100
    s_mov_b32 s{S_PH}, 0x07060302
    s_mov_b32 s{S_SENT}, {SENT}
    s_mov_b32 s{S_THR}, 0xffc00000
    s_mov_b32 s{S_SC+1}, 0x3e0293ee
    v_mov_b32 v{C_SENT}, s{S_SENT}
    v_mov_b32 v{C_SENT+1}, s{S_SENT}
    v_mov_b32 v{C_SENT+2}, s{S_SENT}
    v_mov_b32 v{C_SENT+3}, s{S_SENT}
    v_mov_b32 v4, 0xeeee
    v_mov_b32 v5, 0x4444
    v_cndmask_b32 v{C_IDX}, v5, v4, s[{S_MQ1}:{S_MQ1+1}]
    ''')
    p.I(f'''
    v_and_b32 v3, 1, v1
    v_lshlrev_b32 v3, 4, v3
    v_mov_b32 v4, 0x3f80
    v_lshlrev_b32 v4, v3, v4
    v_lshrrev_b32 v5, 2, v1
    v_cmp_eq_u32 vcc, v5, v2
    v_cndmask_b32 v4, 0, v4, vcc
    v_mov_b32 v5, 0
    v_cndmask_b32 v{C_SELT}, v5, v4, s[{S_MQ1}:{S_MQ1+1}]
    v_cndmask_b32 v{C_SELT+1}, v4, v5, s[{S_MQ1}:{S_MQ1+1}]
    ''')
    p.I(f'''
    v_lshrrev_b32 v3, 2, v1
    v_and_b32 v3, 1, v3
    v_lshlrev_b32 v3, 4, v3
    v_mov_b32 v4, 0x3f80
    v_lshlrev_b32 v4, v3, v4
    v_and_b32 v5, 11, v1
    ''')
    for d, key in enumerate([0, 1, 8, 9]):
        p.I(f'v_cmp_eq_u32 vcc, {key}, v5\nv_cndmask_b32 v{C_SELR+d}, 0, v4, vcc')
    p.I(f'''
    v_lshrrev_b32 v3, 1, v2
    v_lshlrev_b32 v3, 13, v3
    v_and_b32 v4, 1, v2
    v_lshl_add_u32 v3, v4, 11, v3
    v_lshl_add_u32 v3, v1, 2, v3
    s_lshl_b32 s{S_T0}, s{S_W}, 16
    s_lshl_b32 s{S_T1}, s{S_H}, 6
    s_add_u32 s{S_T0}, s{S_T0}, s{S_T1}
    v_add_u32 v{A_PST}, s{S_T0}, v3
    ''')
    for t in range(8): p.I(f's_mov_b32 s{S_TO+t}, {(t&3)*16384 + (t>>2)*4096}')
    p.I(f'''
    v_and_b32 v3, 2, v0
    v_lshlrev_b32 v3, 4, v3
    v_and_b32 v4, 1, v2
    v_lshl_add_u32 v3, v4, 4, v3
    v_and_b32 v4, 1, v0
    v_lshl_add_u32 v3, v4, 3, v3
    v_lshrrev_b32 v4, 1, v2
    v_lshl_add_u32 v3, v4, 2, v3
    s_lshr_b32 s{S_LATE}, s{S_W}, 1
    s_lshr_b32 s{S_T2}, s{S_H}, 1
    s_and_b32 s{S_T2}, s{S_T2}, 3
    s_lshl_b32 s{S_T0}, s{S_LATE}, 2
    s_add_u32 s{S_T2}, s{S_T2}, s{S_T0}
    s_and_b32 s{S_T3}, s{S_H}, 1
    s_lshl_b32 s{S_T3}, s{S_T3}, 1
    s_and_b32 s{S_T0}, s{S_W}, 1
    s_add_u32 s{S_T3}, s{S_T3}, s{S_T0}
    s_lshl_b32 s{S_T0}, s{S_T2}, 10
    s_lshr_b32 s{S_T1}, s{S_H}, 3
    s_lshl_b32 s{S_T1}, s{S_T1}, 8
    s_add_u32 s{S_T0}, s{S_T0}, s{S_T1}
    s_lshl_b32 s{S_T1}, s{S_T3}, 6
    s_add_u32 s{S_T0}, s{S_T0}, s{S_T1}
    v_add_u32 v{A_MST}, s{S_T0}, v3
    ''')
    p.I(f'''
    v_and_b32 v3, 1, v2
    v_lshlrev_b32 v3, 10, v3
    v_lshrrev_b32 v4, 1, v2
    v_lshl_add_u32 v3, v4, 2, v3
    v_and_b32 v4, 3, v0
    v_lshl_add_u32 v3, v4, 3, v3
    s_lshl_b32 s{S_T0}, s{S_T3}, 11
    s_lshr_b32 s{S_T1}, s{S_H}, 3
    s_lshl_b32 s{S_T1}, s{S_T1}, 8
    s_add_u32 s{S_T0}, s{S_T0}, s{S_T1}
    s_lshl_b32 s{S_T1}, s{S_T2}, 5
    s_add_u32 s{S_T0}, s{S_T0}, s{S_T1}
    v_add_u32 v30, s{S_T0}, v3
    ''')
    p.I(f'''
    s_lshl_b32 s{S_T0}, s{S_W}, 11
    v_add_u32 v{A_STW}, s{S_T0}, v{A_L16}
    v_xor_b32 v{A_ST1}, 0x800, v{A_STW}
    v_xor_b32 v{A_ST2}, 0x1000, v{A_STW}
    v_xor_b32 v{A_ST3}, 0x1800, v{A_STW}
    s_mul_i32 s{S_T0}, s{S_W}, 36864
    s_add_u32 s{S_T0}, s{S_T0}, {L_W}
    v_add_u32 v{A_WL}, s{S_T0}, v{A_L16}
    s_lshl_b32 s{S_T0}, s{S_W}, 2
    v_add_u32 v{A_MW}, s{S_T0}, v{A_L16}
    ''')
    p.I(f'''
    v_lshrrev_b32 v4, 2, v1
    v_lshlrev_b32 v3, 5, v4
    v_and_b32 v4, 1, v0
    v_lshl_add_u32 v3, v4, 4, v3
    v_lshl_add_u32 v5, v2, 7, v3
    s_lshr_b32 s{S_T0}, s{S_W}, 1
    s_lshl_b32 s{S_T0}, s{S_T0}, 11
    s_and_b32 s{S_T1}, s{S_W}, 1
    s_lshl_b32 s{S_T1}, s{S_T1}, 9
    s_add_u32 s{S_T0}, s{S_T0}, s{S_T1}
    s_add_u32 s{S_T0}, s{S_T0}, {L_XCH + 2048 + 1024}
    v_add_u32 v8, s{S_T0}, v5
    v_add_u32 v9, {L_XCH + 6144 + 1024}, v5
    v_cndmask_b32 v{A_OW}, v9, v8, s[{S_MQ1}:{S_MQ1+1}]
    ''')
    p.I(f'''
    v_lshl_add_u32 v3, v2, 8, v3
    v_and_b32 v4, 2, v0
    v_lshl_add_u32 v3, v4, 6, v3
    v_add_u32 v{A_OR}, {L_XCH + 2048 + 1024}, v3
    ''')
    p.I(f'''
    s_lshl_b32 s{S_T2}, s{S_H}, 2
    s_add_u32 s{S_T2}, s{S_T2}, s{S_W}
    s_lshl_b32 s{S_OPP}, s{S_T2}, 11
    s_add_u32 s{S_OPP}, s{S_OPP}, {PR + RO}
    s_lshl_b32 s{S_OMP}, s{S_W}, 10
    s_add_u32 s{S_OMP}, s{S_OMP}, {MR + RO + 2048}
    s_lshl_b32 s{S_T0}, s{S_T2}, 12
    ''')
    p.I('\n'.join(add64(S_KV, S_WS, f's{S_T0}')))
    p.I(f's_lshl_b32 s{S_T0}, s{S_T2}, 10\ns_add_u32 s{S_T0}, s{S_T0}, {KVM}')
    p.I('\n'.join(add64(S_PUB, S_WS, f's{S_T0}')))

S_LB, S_SR2 = 72, 76
def chain_weights_setup(p):
    VA_QKV, VA_WO, VA_TR = 6, 7, 31
    p.I(f"""
    v_lshrrev_b32 v2, 5, v0
    v_lshlrev_b32 v2, 20, v2
    v_and_b32 v3, 16, v0
    v_lshl_add_u32 v2, v3, 11, v2
    v_and_b32 v3, 8, v0
    v_lshl_add_u32 v2, v3, 13, v2
    v_and_b32 v3, 4, v0
    v_lshl_add_u32 v2, v3, 11, v2
    v_and_b32 v1, 3, v0
    v_lshl_add_u32 v2, v1, 4, v2
    s_lshl_b32 s{S_T0}, s{S_H}, 8
    s_lshl_b32 s{S_T1}, s{S_W}, 6
    s_add_u32 s{S_T0}, s{S_T0}, s{S_T1}
    v_add_u32 v{VA_QKV}, s{S_T0}, v2
    v_lshrrev_b32 v2, 5, v0
    v_lshlrev_b32 v2, 13, v2
    v_and_b32 v3, 16, v0
    v_lshl_add_u32 v2, v3, 7, v2
    v_and_b32 v3, 8, v0
    v_lshl_add_u32 v2, v3, 9, v2
    v_and_b32 v3, 4, v0
    v_lshl_add_u32 v2, v3, 12, v2
    v_lshl_add_u32 v2, v1, 4, v2
    s_lshl_b32 s{S_T0}, s{S_H}, 17
    s_lshl_b32 s{S_T1}, s{S_W}, 8
    s_add_u32 s{S_T0}, s{S_T0}, s{S_T1}
    v_add_u32 v{VA_WO}, s{S_T0}, v2
    s_mul_i32 s{S_LB}, s{S_W}, 36864
    s_add_u32 s{S_LB}, s{S_LB}, {L_W}
    v_lshrrev_b32 v2, 2, v0
    v_lshlrev_b32 v2, 6, v2
    v_lshl_add_u32 v2, v1, 3, v2
    v_add_u32 v{VA_TR}, s{S_LB}, v2
    """)
    for i, ptr in enumerate((S_WQ, S_WK, S_WV, S_WO)):
        b = S_SR2 + 4 * i
        p.I(f's_mov_b32 s{b}, s{ptr}\ns_and_b32 s{b+1}, s{ptr+1}, 0xffff\ns_mov_b32 s{b+2}, {4*MB}\ns_mov_b32 s{b+3}, 0x20000')
    pairs = []
    for cc in range(2):
        for t in range(0, 8, 2): pairs.append((('o', t, cc), ('o', t + 1, cc)))
    for m in 'qkv':
        for sg in range(8): pairs.append(((m, sg, 0), (m, sg, 1)))
    reg = [x for x in pairs if HOME[x[0]][0] != 'l']
    res = {HOME[x[0]][1] // 2: x for x in pairs if HOME[x[0]][0] == 'l'}
    order = reg + [res[i % 9] for i in range(len(reg), 32)]
    def issue(i):
        a = order[i][0]; slot = i % 9
        srd = S_SR2 + 4 * 'qkvo'.index(a[0])
        if a[0] != 'o':
            sg = a[1]
            p.I(f's_xor_b32 s{S_T2}, s{S_W}, {sg>>1}\ns_lshl_b32 s{S_T2}, s{S_T2}, 17')
        for jp in range(4):
            p.I(f's_add_u32 m0, s{S_LB}, {slot*4096 + jp*1024}')
            if a[0] != 'o':
                d = 64 * (sg & 1) + 256 * (jp >> 1) + 2 * (jp & 1)
                p.I(f's_add_u32 s{S_T3}, s{S_T2}, {d*8192}')
                p.I(f'buffer_load_dwordx4 v{VA_QKV}, s[{srd}:{srd+3}], s{S_T3} offen lds', tag=('w', i))
            else:
                e = 64 * a[2] + 32 * (jp >> 1) + (jp & 1)
                p.I(f's_mov_b32 s{S_T3}, {e*1024 + a[1]*32}')
                p.I(f'buffer_load_dwordx4 v{VA_WO}, s[{srd}:{srd+3}], s{S_T3} offen lds', tag=('w', i))
    def process(i):
        slot = i % 9
        p.wait(vm=('w', i))
        for tt in range(2):
            kind, idx = HOME[order[i][tt]]
            for jp in range(4):
                dst = ar(idx + 2 * jp, 2) if kind == 'a' else vr((idx if kind == 'v' else 8 + 8 * tt) + 2 * jp, 2)
                p.I(f'ds_read_b64_tr_b16 {dst}, v{VA_TR} offset:{slot*4096 + jp*1024 + tt*32}')
        p.wait(lg='all')
        if kind == 'l':
            for q in range(4): p.I(f'ds_write_b128 v{A_WL}, {vr(8+4*q,4)} offset:{slot*4096 + q*1024}')
            p.wait(lg='all')
    return issue, process

def stamp(p, cfg, i):
    if cfg.get('stamps') == 2:
        p.I(f'''
        s_memtime s[{S_ST+18}:{S_ST+19}]
        s_waitcnt lgkmcnt(0)
        s_sub_u32 s{S_ST+19}, s{S_ST+18}, s{S_ST+15}
        s_add_u32 s{S_ST+i}, s{S_ST+i}, s{S_ST+19}
        s_mov_b32 s{S_ST+15}, s{S_ST+18}
        ''')
        p.lg = []

def chain_bases(RO):
    o = [f's_add_u32 s{S_T0}, s{S_PTOG}, {PR + RO}'] + add64(S_SRD, S_WS, f's{S_T0}')
    o += [f's_add_u32 s{S_T0}, s{S_OPP}, s{S_PTOG}'] + add64(S_PP, S_WS, f's{S_T0}')
    o += [f's_add_u32 s{S_T0}, s{S_MTOG}, {MR + RO}'] + add64(S_MS, S_WS, f's{S_T0}')
    o += [f's_xor_b32 s{S_T0}, s{S_MTOG}, 0x2000', f's_add_u32 s{S_T0}, s{S_T0}, {MR + RO}'] + add64(S_MRS, S_WS, f's{S_T0}')
    o += [f's_add_u32 s{S_T0}, s{S_OMP}, s{S_MTOG}'] + add64(S_MP, S_WS, f's{S_T0}')
    return o

DPP = 'row_mask:0xf bank_mask:0xf'

def chain(p, cfg, st, lab):
    RO = SAFE_OFF if st else 0
    NSTEP = cfg.get('nstep', 64)
    depth1, depth2 = cfg.get('depth1', 2), cfg.get('depth2', 2)
    def frag(key):
        kind, idx = HOME[key]
        if kind == 'l':
            p.wait(lg=key); return vr(sbslot(key), 8)
        return (ar if kind == 'a' else vr)(idx, 8)
    def smf(acc, a, key, *shadow):
        b = frag(key)
        p.I(f'v_smfmac_f32_16x16x64_bf16 {vr(acc,4)}, {vr(a,4)}, {b}, v{C_IDX}')
        for x in shadow:
            if callable(x): x()
            else: p.I(x)
    def wl(key, hh):
        return lambda: p.I(f'ds_read_b128 {vr(sbslot(key)+4*hh,4)}, v{A_WL} offset:{HOME[key][1]*2048 + hh*1024}', tag=key)
    def kvld(i):
        if cfg.get('nokv'): return lambda: p.I('s_nop 0')
        return lambda: p.I(f'global_load_dwordx4 {ar(ALAND+4*i,4)}, v{A_L16}, s[{S_KV}:{S_KV+1}] offset:{1024*i} {cfg.get("kvm","sc1")}', tag='kv')
    kv_adv = add64(S_KV, S_KV, 32 * 16384)

    w_issue, w_process = chain_weights_setup(p)
    for i in range(cfg.get('early', 4)): w_issue(i)
    chain_consts(p, RO)
    p.I(f'''
    v_and_b32 v3, 3, v0
    v_lshlrev_b32 v3, 7, v3
    v_and_b32 v4, 4, v0
    v_lshl_add_u32 v{A_FL}, v4, 12, v3
    s_lshl_b32 s{S_T0}, s{S_H}, 9
    s_add_u32 s{S_T0}, s{S_T0}, {FL}
    s_add_u32 s{S_FLB}, s{S_WS}, s{S_T0}
    s_addc_u32 s{S_FLB+1}, s{S_WS+1}, 0
    s_lshl_b32 s{S_T0}, s{S_W}, 7
    s_add_u32 s{S_T0}, s{S_T0}, {F_C}
    s_add_u32 s{S_FLC}, s{S_FLB}, s{S_T0}
    s_addc_u32 s{S_FLC+1}, s{S_FLB+1}, 0
    v_mov_b32 v4, 0
    s_mov_b64 exec, 1
    global_store_dword v{A_L16}, v4, s[{S_FLC}:{S_FLC+1}] sc1
    s_mov_b64 exec, -1
    ''')
    p.I(f's_mov_b32 s{S_PTOG}, 0\ns_mov_b32 s{S_MTOG}, 0')
    p.I('\n'.join(chain_bases(RO)))
    p.I(f'''
    global_store_dwordx4 v{A_L16}, {vr(C_SENT,4)}, s[{S_PP}:{S_PP+1}] {st}
    global_store_dwordx4 v{A_L16}, {vr(C_SENT,4)}, s[{S_PP}:{S_PP+1}] offset:1024 {st}
    s_add_u32 s{S_PPO}, s{S_PP}, 0x40000
    s_addc_u32 s{S_PPO+1}, s{S_PP+1}, 0
    global_store_dwordx4 v{A_L16}, {vr(C_SENT,4)}, s[{S_PPO}:{S_PPO+1}] {st}
    global_store_dwordx4 v{A_L16}, {vr(C_SENT,4)}, s[{S_PPO}:{S_PPO+1}] offset:1024 {st}
    global_store_dword v{A_MST}, v{C_SENT}, s[{S_MRS}:{S_MRS+1}] {st}
    ''')
    p.I(f'''
    global_load_dword v5, v30, s[{S_MEM0}:{S_MEM0+1}]
    s_waitcnt vmcnt(0)
    global_store_dword v{A_MST}, v5, s[{S_MS}:{S_MS+1}] {st}
    ''')
    vm0 = list(p.vm)
    for i in range(cfg.get('early', 4), 9): w_issue(i)
    arrive(p, lab, (1, 2), keep=4 * (9 - cfg.get('early', 4)))
    for i in range(32):
        w_process(i)
        if i + 9 < 32: w_issue(i + 9)
    p.I('s_waitcnt vmcnt(0) lgkmcnt(0)')
    wait_all(p, lab, (1, 2))
    nofl = cfg.get('noflags')
    def fl_ld(): p.I(f'global_load_dword v{V_FL}, v{A_FL}, s[{S_FLB}:{S_FLB+1}] sc1', tag='kv')
    def fl_spin(name, back):
        p.L(name)
        fl_ld()
        p.I(f'''
        s_waitcnt vmcnt(0)
        v_cmp_ge_u32 vcc, s{S_T1}, v{V_FL}
        s_cbranch_vccz {back}
        s_sleep 1
        s_sub_u32 s{S_SPIN}, s{S_SPIN}, 1
        s_cbranch_scc0 {name}
        s_branch L_end
        ''')
    p.I(f's_mov_b32 s{S_STEP}, 0\ns_mov_b32 s{S_T1}, 1')
    if not nofl:
        fl_spin('L_ch_fl0', 'L_ch_fl0ok')
        p.L('L_ch_fl0ok')
    p.reset_cnt()
    for i in range(4): kvld(i)()
    p.I('\n'.join(kv_adv))
    if cfg.get('stamps'):
        p.I('s_memrealtime s[92:93]\ns_waitcnt lgkmcnt(0)\ns_mov_b32 s33, s94\ns_mov_b32 s64, s92')
    p.I(f's_mov_b32 s{S_SRD+2}, 0x40000\ns_mov_b32 s{S_SRD+3}, 0x20000')
    pre_keys = [('k', 0, 0), ('k', 0, 1), ('k', 1, 0), ('k', 1, 1)]
    kvmove = [f'v_accvgpr_read_b32 v{KX+i}, a{ALAND+i}' for i in list(range(8)) + list(range(12, 16))]
    kvlate = [f'v_accvgpr_read_b32 v{KX+i}, a{ALAND+i}' for i in range(8, 12)]
    zacc = [f'v_mov_b64 {vr(Q0+2*i,2)}, 0' for i in range(12)]
    marks = cfg.get('marks', [])
    def mk(name):
        if name in marks:
            i = marks.index(name); p.I(f's_memtime s[{72+2*i}:{73+2*i}]')
    def MK(name): return lambda: mk(name)
    def emit(xs):
        for x in xs:
            if callable(x): x()
            else: p.I(x)
    def m_ld(i):
        p.I(f'global_load_dwordx4 {vr(MF+4*i,4)}, v{A_L16}, s[{S_MP}:{S_MP+1}] offset:{-2048+4096*i} sc1')
    def nops(n):
        while n > 0:
            q = min(n, 16); p.I(f's_nop {q-1}'); n -= q
    pubst = f'global_store_dwordx4 v{A_L16}, {vr(VX,4)}, s[{S_PUB}:{S_PUB+1}] sc1'
    p.reset_cnt()
    for x in zacc: p.I(x)
    for kk in pre_keys: wl(kk, 0)(); wl(kk, 1)()
    m_ld(0); m_ld(1)
    p.I('s_waitcnt vmcnt(0) lgkmcnt(0)')
    emit(kvmove)
    p.I(f'v_mov_b32 v{V_FL}, 0')
    p.I('s_branch L_ch_p2')
    p.L('L_ch_hop2')
    if cfg.get('stamps'):
        p.I(f's_cmp_eq_u32 s{S_STEP}, 3\ns_cbranch_scc0 L_ch_stskip')
        p.I(f's_mov_b32 s100, 0\ns_mov_b32 s101, 0')
        p.I(f's_memrealtime s[92:93]\ns_memtime s[94:95]\ns_waitcnt lgkmcnt(0)')
        p.L('L_ch_stskip')
    p.I(f's_add_u32 s{S_T1}, s{S_STEP}, 1\ns_min_u32 s{S_T1}, s{S_T1}, 63')
    if not nofl: p.I(f'v_cmp_ge_u32 vcc, s{S_T1}, v{V_FL}')
    emit(kvmove)
    if not nofl:
        p.I('s_cbranch_vccnz L_ch_fl')
        p.L('L_ch_flok')
    d2e, d2l = cfg.get('d2e', 56), cfg.get('d2l', 32)
    if d2e != d2l:
        p.I(f's_cmp_eq_u32 s{S_LATE}, 1\ns_cbranch_scc1 L_ch_h2l')
        nops(d2e - d2l)
        p.L('L_ch_h2l')
    nops(d2l)
    mk('h2a')
    m_ld(0)
    p.I(f's_sub_u32 s{S_T0}, s{S_STEP}, 1\nv_mov_b32 v{V_FL}, s{S_T0}')
    nops(cfg.get('g2', 14))
    m_ld(1)
    if cfg.get('tl'):
        p.I(f'''
        s_memrealtime s[90:91]
        s_lshl_b32 s{S_T0}, s{S_H}, 2
        s_add_u32 s{S_T0}, s{S_T0}, s{S_W}
        s_lshl_b32 s{S_T0}, s{S_T0}, 6
        s_add_u32 s{S_T0}, s{S_T0}, s{S_STEP}
        s_lshl_b32 s{S_T0}, s{S_T0}, 2
        s_add_u32 s{S_T0}, s{S_T0}, {TS + 65536}
        v_mov_b32 v30, s{S_T0}
        s_waitcnt lgkmcnt(0)
        v_mov_b32 v31, s90
        global_store_dword v30, v31, s[{S_WS}:{S_WS+1}]
        ''')
    p.I(f's_waitcnt vmcnt({1 if cfg.get("tl") else 0}) lgkmcnt(0)')
    p.L('L_ch_p2')
    p.reset_cnt()
    mk('qk0')
    Wr = lambda i: (lambda: p.I(f'ds_write_b128 v{A_STW}, {vr(MF+4*i,4)} offset:{L_STG+1024*i}', tag='stg'))
    Wr(0)()
    smf(Q0, MF, ('q', 0, 0), Wr(1), 'v_max3_u32 v28, v0, v1, v2')
    smf(Q1, MF, ('q', 0, 1), 'v_max3_u32 v29, v3, v4, v5')
    smf(K0, MF, ('k', 0, 0), 'v_max3_u32 v28, v28, v6, v7')
    smf(K1, MF, ('k', 0, 1), 'v_max_u32 v28, v28, v29')
    smf(Q0, MF + 4, ('q', 1, 0), f'v_cmp_le_u32 vcc, s{S_THR}, v28')
    smf(Q1, MF + 4, ('q', 1, 1))
    smf(K0, MF + 4, ('k', 1, 0), 's_cbranch_vccnz L_ch_p2fail')
    p.wait(lg='all')
    mk('b1a')
    p.I('s_barrier')
    mk('b1b')
    areg = {1: A_ST1, 2: A_ST2, 3: A_ST3}
    def mf(sg):
        return lambda: p.I(f'ds_read_b128 {vr(MF+4*sg,4)}, v{areg[sg>>1]} offset:{L_STG+(sg&1)*1024}', tag=('mf', sg))
    sal = [f's_xor_b32 s{S_MTOG}, s{S_MTOG}, 0x2000'] + chain_bases(RO)
    def S(n):
        o = sal[:n]; del sal[:n]; return o
    mf(2)(); mf(3)()
    smf(K1, MF + 4, ('k', 1, 1), mf(4))
    smf(V0, MF, ('v', 0, 0), mf(5))
    smf(V1, MF, ('v', 0, 1), mf(6))
    smf(V0, MF + 4, ('v', 1, 0), mf(7))
    if cfg.get('v4', 1): smf(V1, MF + 4, ('v', 1, 1), wl(('k', 4, 0), 0))
    else: wl(('k', 4, 0), 0)()
    p.wait(lg=('mf', 2))
    smf(Q0, MF + 8, ('q', 2, 0), wl(('k', 4, 0), 1), MK('s2'))
    smf(Q1, MF + 8, ('q', 2, 1), wl(('k', 4, 1), 0), *([] if cfg.get('nopub') else [pubst]))
    smf(K0, MF + 8, ('k', 2, 0), wl(('k', 4, 1), 1), *S(1))
    smf(K1, MF + 8, ('k', 2, 1), wl(('k', 5, 0), 0), kvld(0))
    p.wait(lg=('mf', 3))
    smf(Q0, MF + 12, ('q', 3, 0), wl(('k', 5, 0), 1), *S(1), kvlate[0])
    smf(Q1, MF + 12, ('q', 3, 1), wl(('k', 5, 1), 0), *S(1), kvlate[1])
    smf(K0, MF + 12, ('k', 3, 0), wl(('k', 5, 1), 1), *S(1), kvlate[2])
    smf(K1, MF + 12, ('k', 3, 1), kvld(1), *S(1), kvlate[3])
    p.wait(lg=('mf', 7))
    smf(Q0, MF + 16, ('q', 4, 0), *([] if cfg.get('nofst') else ['s_mov_b64 exec, 1', f'global_store_dword v{A_L16}, v{V_FL}, s[{S_FLC}:{S_FLC+1}] sc1', 's_mov_b64 exec, -1']))
    smf(Q1, MF + 16, ('q', 4, 1), MK('s4'), *S(2))
    smf(K0, MF + 16, ('k', 4, 0), wl(('v', 2, 0), 0), *S(1))
    smf(K1, MF + 16, ('k', 4, 1), wl(('v', 2, 0), 1), kvld(2))
    smf(Q0, MF + 20, ('q', 5, 0), wl(('v', 2, 1), 0), *S(2))
    smf(Q1, MF + 20, ('q', 5, 1), wl(('v', 2, 1), 1), *([] if nofl else [fl_ld]))
    smf(K0, MF + 20, ('k', 5, 0), wl(('v', 3, 0), 0), *S(1))
    smf(K1, MF + 20, ('k', 5, 1), wl(('v', 3, 0), 1), kvld(3))
    smf(Q0, MF + 24, ('q', 6, 0), wl(('v', 3, 1), 0), MK('s6'), *S(2))
    smf(K0, MF + 24, ('k', 6, 0), wl(('v', 3, 1), 1), *S(2))
    smf(Q0, MF + 28, ('q', 7, 0), f's_cmp_lt_u32 s{S_STEP}, {NSTEP-2}', f's_cselect_b32 s{S_T1}, {0 if cfg.get("kvsame") else 32*16384}, 0')
    smf(K0, MF + 28, ('k', 7, 0), *add64(S_KV, S_KV, f's{S_T1}'))
    smf(Q1, MF + 24, ('q', 6, 1), f's_mov_b64 vcc, s[{S_MQ1}:{S_MQ1+1}]', f'v_add_f32 v{Q0}, v{Q0}, v{Q0+2}')
    smf(K1, MF + 24, ('k', 6, 1), f'v_add_f32 v{Q0+1}, v{Q0+1}, v{Q0+3}', f'v_add_f32 v{K0}, v{K0}, v{K0+2}')
    smf(Q1, MF + 28, ('q', 7, 1), f'v_cvt_pk_bf16_f32 v{Q0+2}, v{Q0}, v{Q0+1}', f'v_add_f32 v{K0+1}, v{K0+1}, v{K0+3}')
    smf(K1, MF + 28, ('k', 7, 1), MK('qk1'), f'v_cvt_pk_bf16_f32 v{Q0+3}, v{K0}, v{K0+1}')
    vq = [(sg, tt) for sg in range(2, 8) for tt in range(2)]
    if not cfg.get('v4', 1): vq.append((1, 1))
    def V(*shadow):
        sg, tt = vq.pop(0)
        smf(V0 + 4 * tt, MF + 4 * sg, ('v', sg, tt), *shadow)
    rst = lambda i: f'global_store_dwordx4 v{A_L16}, {vr(C_SENT,4)}, s[{S_PPO}:{S_PPO+1}] offset:{1024*i} {st}'
    p.I(f"""
    v_add_f32 v{Q1}, v{Q1}, v{Q1+2}
    v_add_f32 v{Q1+1}, v{Q1+1}, v{Q1+3}
    v_mfma_f32_16x16x16_bf16 {vr(K0,4)}, {vr(Q0+2,2)}, {vr(C_SELT,2)}, 0
    v_cvt_pk_bf16_f32 v{Q1+2}, v{Q1}, v{Q1+1}
    v_add_f32 v{K1}, v{K1}, v{K1+2}
    v_add_f32 v{K1+1}, v{K1+1}, v{K1+3}
    v_cvt_pk_bf16_f32 v{Q1+3}, v{K1}, v{K1+1}
    v_mfma_f32_16x16x16_bf16 {vr(K1,4)}, {vr(Q1+2,2)}, {vr(C_SELT,2)}, 0
    v_cvt_pk_bf16_f32 v{Q0}, v{K0}, v{K0+1}
    v_cvt_pk_bf16_f32 v{Q0+1}, v{K0+2}, v{K0+3}
    {rst(0)}
    v_cvt_pk_bf16_f32 v{Q0+2}, v{K1}, v{K1+1}
    v_cvt_pk_bf16_f32 v{Q0+3}, v{K1+2}, v{K1+3}
    v_mfma_f32_16x16x32_bf16 {vr(K0,4)}, {vr(KX,4)}, {vr(Q0,4)}, 0
    """)
    mk('sc')
    p.I(f"""
    v_mfma_f32_16x16x32_bf16 {vr(K1,4)}, {vr(KX+4,4)}, {vr(Q0,4)}, 0
    v_mfma_f32_16x16x32_bf16 {vr(Q1,4)}, {vr(Q0,4)}, {vr(Q0,4)}, 0
    {rst(1)}
    """)
    for r in range(4):
        p.I(f'v_cndmask_b32_dpp v{K0+r}, v{K1+r}, v{K0+r}, vcc quad_perm:[2,3,2,3] {DPP}')
    p.I(f'ds_write_b128 v{A_STW}, {vr(K0,4)} offset:{L_XCH}', tag='sx')
    p.I(f'v_cndmask_b32_dpp v{Q1}, v{Q1+1}, v{Q1}, vcc quad_perm:[2,3,2,3] {DPP}')
    p.I(f'ds_write_b32 v{A_MW}, v{Q1} offset:{L_XCH+1024}', tag='sx')
    mk('sw')
    sal.extend([f's_cmp_eq_u32 s{S_STEP}, 0', f's_cselect_b32 s{S_T1}, 0, {32*4096}'] + add64(S_PUB, S_PUB, f's{S_T1}'))
    for _ in range(cfg.get('nva', 6)): V(*S(2))
    assert not sal
    p.wait(lg='all')
    mk('b2a')
    p.I('s_barrier')
    mk('b2b')
    p.I(f'ds_read_b128 {vr(K1,4)}, v{A_ST1} offset:{L_XCH}', tag='s1')
    p.I(f'ds_read_b128 {vr(KX,4)}, v{A_ST2} offset:{L_XCH}', tag='s2')
    V(lambda: p.I(f'ds_read_b128 {vr(KX+4,4)}, v{A_ST3} offset:{L_XCH}', tag='s3'),
      lambda: p.I(f'ds_read_b128 {vr(Q1,4)}, v{A_L16} offset:{L_XCH+1024}', tag='sm'))
    ol = [wl(('o', t, 0), hh) for t in range(4) for hh in range(2)]
    while vq: V(ol.pop(0))
    p.wait(lg='sm')
    mk('sm0')
    T0, T1 = Q1 + 1, Q1 + 2
    def OL():
        if ol: ol.pop(0)()
    p.I(f"""
    v_add_f32 v{K0}, v{K0}, v{K1}
    v_add_f32 v{K0+1}, v{K0+1}, v{K1+1}
    v_add_f32 v{K0+2}, v{K0+2}, v{K1+2}
    v_add_f32 v{K0+3}, v{K0+3}, v{K1+3}
    v_pk_add_f32 {vr(KX,2)}, {vr(KX,2)}, {vr(KX+4,2)}
    v_pk_add_f32 {vr(KX+2,2)}, {vr(KX+2,2)}, {vr(KX+6,2)}
    v_pk_add_f32 {vr(Q1,2)}, {vr(Q1,2)}, {vr(Q1+2,2)}
    v_pk_add_f32 {vr(K0,2)}, {vr(K0,2)}, {vr(KX,2)}
    v_pk_add_f32 {vr(K0+2,2)}, {vr(K0+2,2)}, {vr(KX+2,2)}
    v_add_f32 v{Q1}, v{Q1}, v{Q1+1}
    v_max3_f32 v{T0}, v{K0}, v{K0+1}, v{K0+2}
    v_max3_f32 v{T0}, v{T0}, v{K0+3}, v{Q1}
    v_pk_add_f32 {vr(V0,2)}, {vr(V0,2)}, {vr(V0+2,2)}
    v_pk_add_f32 {vr(V1,2)}, {vr(V1,2)}, {vr(V1+2,2)}
    v_max_f32_dpp v{T0}, v{T0}, v{T0} quad_perm:[2,3,0,1] {DPP}
    v_mov_b32 v{T1}, v{T0}
    v_cvt_pk_bf16_f32 v{V0+2}, v{V0}, v{V0+1}
    v_cvt_pk_bf16_f32 v{V0+3}, v{V1}, v{V1+1}
    v_permlane16_swap_b32 v{T0}, v{T1}
    v_max_f32 v{T0}, v{T0}, v{T1}
    v_mov_b32 v{T1}, v{T0}
    v_mov_b32 v{KX+5}, 0
    v_mov_b32 v{KX+6}, 0
    v_permlane32_swap_b32 v{T0}, v{T1}
    v_max_f32 v{T0}, v{T0}, v{T1}
    """)
    mk('mx')
    p.I(f"""
    v_mul_f32 v{T1}, s{S_SC}, v{T0}
    v_pk_fma_f32 {vr(K0,2)}, {vr(K0,2)}, s[{S_SC}:{S_SC+1}], {vr(T1,2)} op_sel_hi:[1,1,0] neg_lo:[0,0,1] neg_hi:[0,0,1]
    v_pk_fma_f32 {vr(K0+2,2)}, {vr(K0+2,2)}, s[{S_SC}:{S_SC+1}], {vr(T1,2)} op_sel_hi:[1,1,0] neg_lo:[0,0,1] neg_hi:[0,0,1]
    v_fma_f32 v{Q1}, v{Q1}, s{S_SC}, -v{T1}
    v_exp_f32 v{K0}, v{K0}
    v_exp_f32 v{K0+1}, v{K0+1}
    v_exp_f32 v{K0+2}, v{K0+2}
    v_cvt_pk_bf16_f32 v{KX}, v{K0}, v{K0+1}
    v_exp_f32 v{K0+3}, v{K0+3}
    v_exp_f32 v{Q1}, v{Q1}
    v_cvt_pk_bf16_f32 v{KX+1}, v{K0+2}, v{K0+3}
    v_mov_b32_dpp v{KX+2}, v{KX} quad_perm:[2,3,0,1] {DPP}
    v_mov_b32_dpp v{T0}, v{Q1} quad_perm:[2,3,0,1] {DPP}
    v_mov_b32_dpp v{KX+3}, v{KX+1} quad_perm:[2,3,0,1] {DPP}
    v_cvt_pk_bf16_f32 v{KX+4}, v{Q1}, v{T0}
    v_cvt_pk_bf16_f32 v{KX+7}, v{Q1}, v{T0}
    v_mfma_f32_16x16x32_bf16 {vr(K1,4)}, {vr(VX,4)}, {vr(KX,4)}, 0
    """)
    mk('pv'); OL()
    p.I(f"""
    v_add_f32 v{K0}, v{K0}, v{K0+1}
    v_add_f32 v{K0+2}, v{K0+2}, v{K0+3}
    v_mfma_f32_16x16x32_bf16 {vr(V1,4)}, {vr(VX+4,4)}, {vr(KX,4)}, 0
    """)
    OL()
    p.I(f"""
    v_add_f32 v{Q1}, v{Q1}, v{K0}
    v_add_f32 v{Q1}, v{Q1}, v{K0+2}
    v_mfma_f32_16x16x16_bf16 {vr(K1,4)}, {vr(V0+2,2)}, {vr(KX+4,2)}, {vr(K1,4)}
    s_not_b64 vcc, vcc
    v_add_f32_dpp v{Q1}, v{Q1}, v{Q1} quad_perm:[2,3,0,1] {DPP}
    v_mov_b32 v{T0}, v{Q1}
    v_mfma_f32_16x16x16_bf16 {vr(V1,4)}, {vr(V0+2,2)}, {vr(KX+6,2)}, {vr(V1,4)}
    s_cmp_ge_u32 s{S_STEP}, {NSTEP-1}
    v_permlane16_swap_b32 v{Q1}, v{T0}
    v_add_f32 v{Q1}, v{Q1}, v{T0}
    v_mov_b32 v{T0}, v{Q1}
    v_cndmask_b32 v{VX+0}, v{V0+2}, v{Q0+0}, vcc
    v_cndmask_b32 v{VX+1}, v{V0+3}, v{Q0+1}, vcc
    v_permlane32_swap_b32 v{Q1}, v{T0}
    v_add_f32 v{Q1}, v{Q1}, v{T0}
    v_rcp_f32 v{Q1}, v{Q1}
    v_cndmask_b32_dpp v{VX+2}, v{V0+2}, v{Q0+2}, vcc quad_perm:[2,3,0,1] {DPP}
    v_pk_mul_f32 {vr(K1,2)}, {vr(K1,2)}, {vr(Q1,2)} op_sel_hi:[1,0]
    v_pk_mul_f32 {vr(V1,2)}, {vr(V1,2)}, {vr(Q1,2)} op_sel_hi:[1,0]
    v_pk_mul_f32 {vr(K1+2,2)}, {vr(K1+2,2)}, {vr(Q1,2)} op_sel_hi:[1,0]
    v_pk_mul_f32 {vr(V1+2,2)}, {vr(V1+2,2)}, {vr(Q1,2)} op_sel_hi:[1,0]
    v_cvt_pk_bf16_f32 v{K0}, v{K1}, v{V1}
    v_cvt_pk_bf16_f32 v{K0+1}, v{K1+1}, v{V1+1}
    v_cvt_pk_bf16_f32 v{K0+2}, v{K1+2}, v{V1+2}
    v_cvt_pk_bf16_f32 v{K0+3}, v{K1+3}, v{V1+3}
    """)
    p.I(f'ds_write_b128 v{A_OW}, {vr(K0,4)}', tag='ow')
    mk('ow')
    while ol: OL()
    p.I(f"""
    v_cndmask_b32_dpp v{VX+3}, v{V0+3}, v{Q0+3}, vcc quad_perm:[2,3,0,1] {DPP}
    s_cbranch_scc1 L_ch_done
    """)
    zmf = [f'v_mov_b64 {vr(MF+2*i,2)}, 0' for i in range(16)]
    nz = cfg.get('nz', 6)
    for x in zmf[:nz]: p.I(x)
    p.wait(lg='ow')
    mk('b3a')
    p.I('s_barrier')
    mk('b3b')
    if cfg.get('vmw'):
        p.I(f'''
        s_memtime s[72:73]
        s_waitcnt lgkmcnt(0)
        s_waitcnt vmcnt(0)
        s_memtime s[74:75]
        s_waitcnt lgkmcnt(0)
        s_sub_u32 s74, s74, s72
        s_cmp_lt_u32 s{S_STEP}, 3
        s_cselect_b32 s76, 0, s76
        s_cselect_b32 s78, 0, s78
        s_cselect_b32 s80, 0, s80
        s_add_u32 s76, s76, s74
        s_max_u32 s78, s78, s74
        s_cmp_gt_u32 s74, 300
        s_addc_u32 s80, s80, 0
        ''')
    p.I(f'ds_read_b128 {vr(Q1,4)}, v{A_OR}', tag=('or', 0))
    p.I(f'ds_read_b128 {vr(K1,4)}, v{A_OR} offset:2048', tag=('or', 1))
    for x in zmf[nz:]: p.I(x)
    OA = [Q1, K1]
    def post(t):
        a = MF + 4 * t
        return [f'v_add_f32 v{a}, v{a}, v{a+2}', f'v_add_f32 v{a+1}, v{a+1}, v{a+3}', f'v_cvt_pk_bf16_f32 v{a}, v{a}, v{a+1}']
    def pst(t): return f'buffer_store_dword v{MF+4*t}, v{A_PST}, s[{S_SRD}:{S_SRD+3}], s{S_TO+t} offen {st}'
    def W(t, cc, *shadow): smf(MF + 4 * t, OA[cc], ('o', t, cc), *shadow)
    p.wait(lg=('or', 0))
    W(0, 0, MK('w0'), wl(('o', 6, 1), 0))
    p.wait(lg=('or', 1))
    W(0, 1, wl(('o', 6, 1), 1))
    W(1, 0, wl(('o', 7, 1), 0), f's_mov_b64 s[{S_PPO}:{S_PPO+1}], s[{S_PP}:{S_PP+1}]', f's_xor_b32 s{S_PTOG}, s{S_PTOG}, 0x40000')
    W(1, 1, wl(('o', 7, 1), 1), f's_add_u32 s{S_STEP}, s{S_STEP}, 1', post(0)[0])
    for t in range(2, 8):
        W(t, 0, post(t-2)[1], post(t-2)[2])
        W(t, 1, pst(t-2), *([f's_cmp_eq_u32 s{S_LATE}, 1', MK('w7')] if t == 7 else []), post(t-1)[0])
    a = MF + 28
    p.I(post(6)[1]); p.I(post(6)[2]); p.I(pst(6))
    p.I(f'v_pk_add_f32 {vr(a,2)}, {vr(a,2)}, {vr(a+2,2)}\nv_cvt_pk_bf16_f32 v{a}, v{a}, v{a+1}')
    p.I(pst(7))
    mk('we')
    def p_poll():
        p.I(f'global_load_dwordx4 v[8:11], v{A_L16}, s[{S_PP}:{S_PP+1}] sc1')
        p.I(f'global_load_dwordx4 v[12:15], v{A_L16}, s[{S_PP}:{S_PP+1}] offset:1024 sc1')
    fl = []
    for kk in pre_keys: fl += [wl(kk, 0), wl(kk, 1)]
    fl += zacc
    p.I('s_cbranch_scc1 L_ch_h1l')
    nops(cfg.get('d1e', 64))
    p_poll()
    emit(fl)
    p.I('s_branch L_ch_h1j')
    p.L('L_ch_h1l')
    n1 = cfg.get('n1l', 12)
    emit(fl[:n1]); nops(cfg.get('d1l', 64))
    p_poll()
    emit(fl[n1:])
    p.L('L_ch_h1j')
    def attempt():
        p.I(f"""
        s_waitcnt vmcnt(1)
        v_mfma_f32_16x16x32_bf16 v[16:19], {vr(C_SELR,4)}, v[8:11], 0
        s_waitcnt vmcnt(0)
        v_mfma_f32_16x16x32_bf16 v[16:19], {vr(C_SELR,4)}, v[12:15], v[16:19]
        """)
        mk('h1r')
        p.I(f"""
        v_add_f32_dpp v16, v16, v16 row_ror:4 {DPP}
        v_add_f32_dpp v17, v17, v17 row_ror:4 {DPP}
        v_cmp_u_f32 vcc, v18, v18
        v_add_f32_dpp v16, v16, v16 row_ror:8 {DPP}
        v_add_f32_dpp v17, v17, v17 row_ror:8 {DPP}
        v_cvt_pk_bf16_f32 v16, v16, v17
        global_store_dword v{A_MST}, v16, s[{S_MS}:{S_MS+1}] {st}
        """)
    attempt()
    p.I('s_cbranch_vccnz L_ch_p1fail')
    p.L('L_ch_p1ok')
    mk('ms')
    p.I(f'global_store_dword v{A_MST}, v{C_SENT}, s[{S_MRS}:{S_MRS+1}] {st}')
    p.I('s_branch L_ch_hop2')
    p.L('L_ch_p1fail')
    p_poll()
    if cfg.get('stamps'): p.I('s_add_u32 s100, s100, 1')
    attempt()
    p.I(f"""
    s_cbranch_vccz L_ch_p1ok
    s_sub_u32 s{S_SPIN}, s{S_SPIN}, 1
    s_cbranch_scc0 L_ch_p1fail
    s_branch L_end
L_ch_p2fail:
    s_waitcnt lgkmcnt(0)
    """)
    m_ld(0); m_ld(1)
    p.I('s_nop 4')
    for i in range(8): p.I(f'v_mov_b64 {vr(Q0+2*i,2)}, 0')
    if cfg.get('stamps'): p.I('s_add_u32 s101, s101, 1')
    p.I(f"""
    s_waitcnt vmcnt(0)
    s_sub_u32 s{S_SPIN}, s{S_SPIN}, 1
    s_cbranch_scc0 L_ch_p2
    s_branch L_end
    """)
    if not nofl: fl_spin('L_ch_fl', 'L_ch_flok')
    p.L('L_ch_done')
    p.I(pubst)
    p.I(f'''
    v_mov_b32 v29, 64
    s_waitcnt vmcnt(0)
    s_mov_b64 exec, 1
    global_store_dword v{A_L16}, v29, s[{S_FLC}:{S_FLC+1}] sc1
    s_mov_b64 exec, -1
    ''')
    if cfg.get('stamps'):
        p.I(f"""
        s_memtime s[60:61]
        s_memrealtime s[58:59]
        s_waitcnt lgkmcnt(0)
        s_sub_u32 s60, s60, s94
        v_mov_b32 v0, s60
        v_mov_b32 v1, s58
        v_mov_b32 v2, s92
        v_mov_b32 v3, s33
        v_mov_b32 v4, s64
        v_mov_b32 v5, s100
        v_mov_b32 v6, s101
        v_mov_b32 v7, 0
        s_lshl_b32 s{S_T0}, s{S_H}, 2
        s_add_u32 s{S_T0}, s{S_T0}, s{S_W}
        s_lshl_b32 s{S_T0}, s{S_T0}, 7
        s_add_u32 s{S_T0}, s{S_T0}, {TS}
        v_mov_b32 v30, s{S_T0}
        """)
        for i in range(10): p.I(f'v_mov_b32 v{8+i}, s{72+2*i}')
        p.I('s_mov_b64 exec, 1')
        for q in range(5): p.I(f'global_store_dwordx4 v30, {vr(4*q,4)}, s[{S_WS}:{S_WS+1}] offset:{16*q}')
    p.I('s_branch L_end')

def relabel(p, start, old, new):
    for i in range(start, len(p.items)):
        it = p.items[i]
        if isinstance(it, Inst):
            if it.kind == 'branch' and it.target.startswith(old):
                p.items[i] = Inst(it.text.replace(old, new))
        elif it[0] == 'label' and it[1].startswith(old):
            p.items[i] = ('label', it[1].replace(old, new))

def build(cfg):
    import workers as Wk
    p = Prog()
    only = cfg.get('only')
    NARR[0] = 64 if only == 'chain' else 256
    FORCE[0] = cfg.get('force_safe', 0)
    Wk.TL[0] = cfg.get('tl', 0)
    Wk.CFG.clear(); Wk.CFG.update(cfg)
    common_prologue(p, cfg)
    p.I(f"""
L_role:
    s_cmp_ge_u32 s{S_H}, 32
    s_cbranch_scc1 L_norole
    s_cmp_ge_u32 s{S_XCC}, 2
    s_cbranch_scc1 {'L_end' if only == 'chain' else 'L_worker'}
    {'s_branch L_norole' if only == 'kv' else ''}
    s_mov_b32 s{S_M}, s{S_XCC}
    """)
    select_model(p)
    p.I(f's_cmp_eq_u32 s{S_MODE}, 1\ns_cbranch_scc1 L_chain_safe')
    chain(p, cfg, '', 'L_ch')
    p.L('L_worker')
    p.I(f"""
    s_cmp_ge_u32 s{S_XCC}, 5
    s_cselect_b32 s{S_M}, 1, 0
    s_cselect_b32 s{S_T1}, 5, 2
    s_sub_u32 s{S_XCC}, s{S_XCC}, s{S_T1}
    """)
    if cfg.get('mix', 1):
        p.I(f"""
        s_lshl_b32 s{S_T0}, s{S_XCC}, 5
        s_add_u32 s{S_T0}, s{S_T0}, s{S_H}
        s_mul_i32 s{S_H}, s{S_T0}, 0x5556
        s_lshr_b32 s{S_H}, s{S_H}, 16
        s_mul_i32 s{S_T1}, s{S_H}, 3
        s_sub_u32 s{S_XCC}, s{S_T0}, s{S_T1}
        """)
    select_model(p)
    p.I(f"""
    s_cmp_eq_u32 s{S_XCC}, 1
    s_cbranch_scc1 L_vw
    s_cmp_eq_u32 s{S_XCC}, 2
    s_cbranch_scc1 {'L_norole' if only == 'kv' else 'L_qw'}
    """)
    p.reset_cnt(); Wk.kv_worker(p, cfg, 'k', 'L_k')
    p.I(f's_branch L_ow')
    p.L('L_vw')
    p.reset_cnt(); Wk.kv_worker(p, cfg, 'v', 'L_v')
    p.L('L_ow')
    if only == 'kv':
        Wk.ev_dump(p); p.I('s_branch L_end')
    p.reset_cnt(); Wk.o_worker(p, cfg, 'L_o')
    p.L('L_qw')
    p.reset_cnt(); Wk.q_worker(p, cfg, 'L_q')
    p.L('L_norole')
    arrive(p, 'L_n'); wait_all(p, 'L_n')
    p.I('s_branch L_end')
    p.L('L_safe')
    load_args(p)
    p.I(f"""
    s_mov_b32 s{S_MODE}, 1
    s_and_b32 s{S_XCC}, s2, 7
    s_lshr_b32 s{S_H}, s2, 3
    v_mbcnt_lo_u32_b32 v0, -1, 0
    v_mbcnt_hi_u32_b32 v0, -1, v0
    s_waitcnt vmcnt(0) lgkmcnt(0)
    s_barrier
    s_branch L_role
    """)
    p.L('L_chain_safe')
    n0 = len(p.items)
    p.reset_cnt(); chain(p, cfg, 'sc1', 'L_ch')
    relabel(p, n0, 'L_ch', 'L_cs')
    p.L('L_end')
    p.I('s_endpgm')
    n = p.fix_hazards(cfg.get('verbose', False))
    errs = p.check_branches()
    for e in errs: print(e)
    assert not errs
    head = f'''; @launch grid=(256,1,1) block=(256,1,1) lds=163840
.amdgcn_target "amdgcn-amd-amdhsa--gfx950"
.text
.globl {NAME}
.p2align 8
.type {NAME},@function
{NAME}:
'''
    tail = f'''.section .rodata,"a"
.p2align 6
.amdhsa_kernel {NAME}
  .amdhsa_next_free_vgpr 512
  .amdhsa_next_free_sgpr 102
  .amdhsa_accum_offset 256
  .amdhsa_group_segment_fixed_size 0
  .amdhsa_kernarg_size 136
  .amdhsa_user_sgpr_count 2
  .amdhsa_user_sgpr_kernarg_segment_ptr 1
  .amdhsa_system_sgpr_workgroup_id_x 1
  .amdhsa_float_denorm_mode_32 3
.end_amdhsa_kernel
'''
    return head + p.text() + tail

if __name__ == '__main__':
    cfg = eval(sys.argv[2]) if len(sys.argv) > 2 else {}
    open(sys.argv[1], 'w').write(build(cfg))
```

```python
from asmlib import *
import kern as K
MB = 1 << 20
S_W, S_H, S_M, S_WS, S_SRD, S_SPIN = K.S_W, K.S_H, K.S_M, K.S_WS, K.S_SRD, K.S_SPIN
T0, T1, T2, T3 = K.S_T0, K.S_T1, K.S_T2, K.S_T3
S_PL, S_PH = K.S_PL, K.S_PH
S_C4K = 32
S_KV, S_FLG, S_PUB, S_OF, S_FL2, S_FL3 = 40, 42, 44, 46, 48, 50
S_IT = 26
S_SC = 67
S_SRD2 = 52
RING, ACC, QF, MASK = 128, 160, 192, 224
V_L16, V_LHI, V_KA, V_VA, V_KM, V_VM, V_Z, V_T = 240, 241, 242, 243, 244, 245, 246, 248
add64 = K.add64

V_EV = 247
TL = [0]
CFG = {}
def ev(p, idx):
    if TL[0]:
        if isinstance(idx, tuple): p.I(f's_add_u32 m0, s{idx[0]}, {idx[1]}')
        else: p.I(f's_mov_b32 m0, {idx}')
        p.I(f's_memrealtime s[90:91]\ns_waitcnt lgkmcnt(0)\nv_writelane_b32 v{V_EV}, s90, m0')
        p.lg = []
def ev_dump(p):
    if TL[0]:
        p.I(f"""
        s_lshl_b32 s{T0}, s{K.S_XCC}, 5
        s_add_u32 s{T0}, s{T0}, s{S_H}
        s_lshl_b32 s{T0}, s{T0}, 2
        s_add_u32 s{T0}, s{T0}, s{S_W}
        s_lshl_b32 s{T0}, s{T0}, 8
        s_add_u32 s{T0}, s{T0}, {K.TS + 131072}
        v_lshrrev_b32 v1, 2, v{V_L16}
        v_add_u32 v1, s{T0}, v1
        global_store_dword v1, v{V_EV}, s[{S_WS}:{S_WS+1}]
        """)
def base_consts(p):
    if TL[0]:
        p.I(f'v_mov_b32 v{V_EV}, 0\ns_waitcnt lgkmcnt(0)\nv_writelane_b32 v{V_EV}, s94, 0')
        ev(p, 39)
    p.I(f'''
    v_lshlrev_b32 v{V_L16}, 4, v0
    v_add_u32 v{V_LHI}, 0x10000, v{V_L16}
    v_mov_b32 v{V_Z}, 0
    s_mov_b32 s{S_PL}, 0x05040100
    s_mov_b32 s{S_PH}, 0x07060302
    ''')
    for k in range(8): p.I(f's_mov_b32 s{S_C4K+k}, {4096*k}')
    p.I(f'''
    v_lshrrev_b32 v1, 5, v0
    v_lshlrev_b32 v1, 8, v1
    v_and_b32 v2, 8, v0
    v_lshl_add_u32 v2, v2, 7, v1
    v_and_b32 v3, 16, v0
    v_lshl_add_u32 v2, v3, 3, v2
    v_and_b32 v3, 7, v0
    v_lshl_add_u32 v{V_KA}, v3, 4, v2
    v_and_b32 v3, 16, v0
    v_lshl_add_u32 v2, v3, 6, v1
    v_and_b32 v3, 15, v0
    v_lshl_add_u32 v2, v3, 4, v2
    v_add_u32 v{V_VA}, 0x800, v2
    ''')

def xf_convert(p, half):
    p.I(f'''
    s_add_u32 s{T0}, s{S_H}, {32*half}
    s_lshl_b32 s{T0}, s{T0}, 15
    v_and_b32 v1, 31, v0
    v_lshlrev_b32 v1, 10, v1
    v_lshrrev_b32 v2, 5, v0
    v_lshl_add_u32 v1, v2, 4, v1
    s_lshl_b32 s{T1}, s{S_W}, 8
    s_add_u32 s{T1}, s{T1}, s{T0}
    v_add_u32 v1, s{T1}, v1
    ''')
    for i in range(8):
        p.I(f'global_load_dwordx4 {vr(160+4*i,4)}, v1, s[{K.S_X}:{K.S_X+1}] offset:{32*i}', tag=('xc', i))
    p.I(f'''
    s_lshl_b32 s{T1}, s{S_W}, 13
    s_add_u32 s{T0}, s{T0}, s{T1}
    s_add_u32 s{T0}, s{T0}, {K.XF + 4096}
    ''')
    p.I('\n'.join(add64(S_FL3, S_WS, f's{T0}')))
def xf_store(p):
    for i in range(8):
        p.wait(vm=('xc', i))
        p.I(f'global_store_dwordx4 v{V_L16}, {vr(160+4*i,4)}, s[{S_FL3}:{S_FL3+1}] offset:{1024*i-4096} sc1')

def projw_issue(p, wptr):
    p.I(f'''
    v_and_b32 v1, 15, v0
    v_lshrrev_b32 v2, 4, v0
    v_lshlrev_b32 v3, 16, v2
    v_lshl_add_u32 v3, v1, 4, v3
    s_lshl_b32 s{T0}, s{S_W}, 20
    s_lshl_b32 s{T1}, s{S_H}, 8
    s_add_u32 s{T0}, s{T0}, s{T1}
    v_add_u32 v{V_T}, s{T0}, v3
    v_mov_b32 v{V_T+1}, v0
    ''')
    K.set_srd(p, wptr, 4 * MB)
    for q in range(4):
        for i in range(8):
            p.I(f's_mov_b32 s{T3}, {(32*q+i)*8192}')
            p.I(f'buffer_load_dwordx4 {vr(32*q+4*i,4)}, v{V_T}, s[{S_SRD}:{S_SRD+3}], s{T3} offen', tag=('pw', q))

def projw_finish(p, kind):
    L = V_T + 1
    p.I(f'''
    v_and_b32 v{V_T+2}, 15, v{L}
    v_lshrrev_b32 v{V_T+3}, 2, v{V_T+2}
    v_lshlrev_b32 v{V_T+3}, 15, v{V_T+3}
    v_lshrrev_b32 v{V_T+4}, 4, v{L}
    v_lshl_add_u32 v{V_T+3}, v{V_T+4}, 9, v{V_T+3}
    s_lshl_b32 s{T0}, s{S_W}, 13
    v_add_u32 v{V_T+3}, s{T0}, v{V_T+3}
    ''')
    if kind == 'v':
        p.I(f'v_and_b32 v{V_T+4}, 3, v{L}\nv_lshl_add_u32 v{V_T+3}, v{V_T+4}, 7, v{V_T+3}')
    else:
        p.I(f'''
        v_and_b32 v{V_T+4}, 2, v{L}
        v_lshl_add_u32 v{V_T+3}, v{V_T+4}, 6, v{V_T+3}
        v_and_b32 v{V_T+4}, 1, v{L}
        v_lshl_add_u32 v{V_T+3}, v{V_T+4}, 8, v{V_T+3}
        ''')
    statc = lambda t: t
    for q in range(4):
        p.wait(vm=('pw', q))
        for t in range(8):
            o = 128 + 4 * t
            p.wait(lg=('pl', q - 1, t))
            for jj in range(4):
                a = 32 * q + 4 * (2 * jj) + (t >> 1); b = a + 4
                p.I(f'v_perm_b32 v{o+jj}, v{b}, v{a}, s{S_PH if t & 1 else S_PL}')
            p.I(f'ds_write_b128 v{V_T+3}, {vr(o,4)} offset:{q*2048 + statc(t)*16}', tag=('pl', q, t))
    p.wait(lg='all')

def xs(buf, ks): return vr(4 * ks, 4) if buf == 0 else ar(4 * ks, 4)
def xload(p, buf, ks):
    p.I(f'buffer_load_dwordx4 {xs(buf,ks)}, v{V_L16}, s[{S_SRD}:{S_SRD+3}], s{S_C4K+(ks>>2)} offen offset:{(ks&3)*1024} {CFG.get("xm","sc1")}', tag=('x', buf))
RD = 6
def wread(p, phi):
    phi %= 128
    a = V_L16 if phi < 64 else V_LHI
    p.I(f'ds_read_b128 {vr(RING+4*(phi%8),4)}, v{a} offset:{(phi%64)*1024}', tag=('w', phi))

def proj_setup(p):
    p.I(f'''
    s_lshl_b32 s{T0}, s{S_W}, 15
    s_add_u32 s{T0}, s{T0}, {K.XF}
    s_add_u32 s{S_SRD}, s{S_WS}, s{T0}
    s_addc_u32 s{S_SRD+1}, s{S_WS+1}, 0
    s_mov_b32 s{S_SRD+2}, 0x8000
    s_mov_b32 s{S_SRD+3}, 0x20000
    ''')
    for ks in range(32): xload(p, 0, ks)
    p.I('\n'.join(add64(S_SRD, S_SRD, 4 * 32768)))
    p.I(f'''
    s_lshl_b32 s{T0}, s{S_W}, 19
    s_lshl_b32 s{T1}, s{S_H}, 14
    s_add_u32 s{T0}, s{T0}, s{T1}
    s_add_u32 s{S_SRD2}, s{S_WS}, s{T0}
    s_addc_u32 s{S_SRD2+1}, s{S_WS+1}, 0
    s_mov_b32 s{S_SRD2+2}, 0x4000
    s_mov_b32 s{S_SRD2+3}, 0x20000
    s_mov_b32 s{S_IT}, 0
    ''')

def proj_body(p, kind, buf, extra, ringcont=True):
    nl = 0
    for et in range(4):
        acc = ACC + 16 * (et & 1)
        for ks in range(32):
            phi = 32 * et + ks
            if phi + RD < 128 or ringcont: wread(p, phi + RD)
            p.wait(lg=('w', phi))
            w = vr(RING + 4 * (phi % 8), 4)
            a, b = (xs(buf, ks), w) if kind == 'v' else (w, xs(buf, ks))
            p.I(f'v_mfma_f32_32x32x16_bf16 {vr(acc,16)}, {a}, {b}, {"0" if ks == 0 else vr(acc,16)}')
            if phi % 3 == 2 and nl < 32:
                if not CFG.get('nox'): xload(p, 1 - buf, nl)
                nl += 1
            for x in extra.get((et, ks), []):
                if callable(x): x()
                else: p.I(x)
    p.I('\n'.join(add64(S_SRD, S_SRD, 4 * 32768)))

def pack(dst, acc):
    return [f'v_cvt_pk_bf16_f32 v{dst+i}, v{acc+2*i}, v{acc+2*i+1}' for i in range(8)]

def kv_worker(p, cfg, kind, lab):
    half = 0 if kind == 'k' else 1
    base_consts(p)
    xf_convert(p, half)
    p.I(f'''
    s_lshl_b32 s{T0}, s{S_H}, 9
    s_lshl_b32 s{T1}, s{S_W}, 7
    s_add_u32 s{T0}, s{T0}, s{T1}
    s_add_u32 s{T0}, s{T0}, {K.FL + (K.F_K if kind == 'k' else K.F_V)}
    ''')
    p.I('\n'.join(add64(S_FLG, S_WS, f's{T0}')))
    p.I(f'v_mov_b32 v{V_T+5}, s{S_W}\ns_mov_b64 exec, 1\nglobal_store_dword v{V_Z}, v{V_T+5}, s[{S_FLG}:{S_FLG+1}] sc1\ns_mov_b64 exec, -1')
    xf_store(p)
    projw_issue(p, K.S_WK if kind == 'k' else K.S_WV)
    K.arrive(p, lab, keep=32)
    ev(p, 19)
    projw_finish(p, kind)
    ev(p, 1)
    p.I('s_barrier')
    K.wait_all(p, lab)
    ev(p, 2)
    p.reset_cnt()
    proj_setup(p)
    for phi in range(RD): wread(p, phi)
    va = V_KA if kind == 'k' else V_VA
    def epi(et, tag):
        acc = ACC + 16 * (et & 1); pk = pack(QF + 8 * (et & 1), acc)
        st = [lambda f=f: p.I(f'buffer_store_dwordx4 {vr(QF+8*(et&1)+4*f,4)}, v{va}, s[{S_SRD2}:{S_SRD2+3}], s{S_C4K+et} offen offset:{512*f} {CFG.get("stm","sc1")}', tag=tag) for f in range(2)]
        if CFG.get('nost'): st = [lambda: None, lambda: None]
        return pk, st
    def sched(extra, et_run, et, tag, post=()):
        pk, st = epi(et, tag)
        for i in range(4): extra.setdefault((et_run, 3 + i), []).extend(pk[2*i:2*i+2])
        extra.setdefault((et_run, 6), []).append(st[0]); extra.setdefault((et_run, 9), []).append(st[1])
        extra[(et_run, 9)].extend(post)
    def flag():
        p.wait(vm='e3')
        p.I(f's_lshl_b32 s{T0}, s{S_IT}, 2\ns_add_u32 s{T0}, s{T0}, s{S_W}\nv_mov_b32 v{V_T}, s{T0}')
        p.I(f's_mov_b64 exec, 1\nglobal_store_dword v{V_Z}, v{V_T}, s[{S_FLG}:{S_FLG+1}] sc1\ns_mov_b64 exec, -1')
    adv = add64(S_SRD2, S_SRD2, 4 * 32 * 16384)
    def body(buf, first):
        extra = {}
        if not first:
            sched(extra, 0, 3, 'e3', adv)
            extra.setdefault((1, 20), []).append(flag)
        for et in range(3): sched(extra, et + 1, et, 'e')
        proj_body(p, kind, buf, extra)
        p.I(f's_add_u32 s{S_IT}, s{S_IT}, 1')
        ev(p, (S_IT, 2))
    p.wait(vm='all')
    if TL[0]: p.I('s_memtime s[88:89]')
    ev(p, 37)
    body(0, True)
    lg0 = list(p.lg)
    p.L(f'{lab}_loop')
    p.I('s_waitcnt vmcnt(2)'); p.vm = []
    body(1, False)
    p.I(f's_cmp_ge_u32 s{S_IT}, 16\ns_cbranch_scc1 {lab}_fin')
    p.I('s_waitcnt vmcnt(2)'); p.vm = []
    body(0, False)
    assert p.lg == lg0
    p.I(f's_branch {lab}_loop')
    p.L(f'{lab}_fin')
    if TL[0]: p.I(f's_memtime s[86:87]\ns_waitcnt lgkmcnt(0)\ns_sub_u32 s86, s86, s88\nv_writelane_b32 v{V_EV}, s86, 38')
    pk, st = epi(3, 'e3')
    p.I('s_nop 12')
    for x in pk: p.I(x)
    for x in st: x()
    flag()
    p.I('s_waitcnt vmcnt(0) lgkmcnt(0)')
    p.reset_cnt()

def poll_flags(p, lab, sbase, nl, need_s, vaddr):
    p.I(f'''
{lab}:
    global_load_dword v{V_T}, v{vaddr}, s[{sbase}:{sbase+1}] sc1
    s_waitcnt vmcnt(0)
    v_cmp_gt_u32 vcc, s{need_s}, v{V_T}
    s_cbranch_vccz {lab}_ok
    s_sleep 2
    s_sub_u32 s{S_SPIN}, s{S_SPIN}, 1
    s_cbranch_scc0 {lab}
    s_branch L_end
{lab}_ok:
    ''')
    p.vm = []

def q_worker(p, cfg, lab):
    base_consts(p)
    L = V_T + 1
    p.I(f'''
    s_lshl_b32 s{T0}, s{S_W}, 12
    s_lshl_b32 s{T1}, s{S_H}, 7
    s_add_u32 s{T0}, s{T0}, s{T1}
    s_add_u32 s{T0}, s{T0}, {K.FL + K.F_O}
    ''')
    p.I('\n'.join(add64(S_FLG, S_WS, f's{T0}')))
    p.I(f's_mov_b64 exec, 1\nglobal_store_dword v{V_Z}, v{V_Z}, s[{S_FLG}:{S_FLG+1}] sc1\ns_mov_b64 exec, -1')
    projw_issue(p, K.S_WQ)
    K.arrive(p, lab, keep=32)
    ev(p, 19)
    p.I(f'''
    s_lshl_b32 s{T0}, s{S_H}, 9
    s_add_u32 s{T2}, s{T0}, {K.FL + K.F_C}
    s_lshl_b32 s{T1}, s{S_W}, 7
    s_add_u32 s{T0}, s{T0}, s{T1}
    s_add_u32 s{T0}, s{T0}, {K.FL + K.F_K}
    ''')
    p.I('\n'.join(add64(S_FL2, S_WS, f's{T0}') + add64(S_FL3, S_WS, f's{T2}')))
    V_FKV, V_FC = 254, 255
    p.I(f'''
    v_and_b32 v{V_FKV}, 1, v{L}
    v_mul_u32_u24 v{V_FKV}, {K.F_V - K.F_K}, v{V_FKV}
    v_and_b32 v{V_FC}, 3, v{L}
    v_lshlrev_b32 v{V_FC}, 7, v{V_FC}
    ''')
    p.I(f'''
    v_lshrrev_b32 v{V_T+2}, 5, v{L}
    v_lshlrev_b32 v{V_T+3}, 8, v{V_T+2}
    v_and_b32 v{V_T+4}, 6, v{L}
    v_lshl_add_u32 v{V_T+3}, v{V_T+4}, 5, v{V_T+3}
    v_and_b32 v{V_T+4}, 1, v{L}
    v_lshl_add_u32 v{V_KM}, v{V_T+4}, 4, v{V_T+3}
    v_lshlrev_b32 v{V_T+3}, 9, v{V_T+2}
    v_and_b32 v{V_T+4}, 15, v{L}
    v_or_b32 v{V_T+4}, 2, v{V_T+4}
    v_lshl_add_u32 v{V_T+3}, v{V_T+4}, 4, v{V_T+3}
    v_and_b32 v{V_T+4}, 16, v{L}
    v_lshrrev_b32 v{V_T+4}, 2, v{V_T+4}
    v_add_u32 v{V_T+3}, v{V_T+3}, v{V_T+4}
    v_and_b32 v{V_T+4}, 2, v{L}
    v_xor_b32 v{V_T+4}, 2, v{V_T+4}
    v_lshl_add_u32 v{V_VM}, v{V_T+4}, 2, v{V_T+3}
    ''')
    p.I(f'''
    v_and_b32 v{V_T+3}, 31, v{L}
    v_lshlrev_b32 v{V_T+2}, 2, v{V_T+2}
    v_sub_u32 v{V_T+3}, v{V_T+3}, v{V_T+2}
    v_mov_b32 v{V_T+4}, 0xf149f2ca
    s_mov_b32 s{S_SC}, 0x3e0293ee
    ''')
    for r in range(16):
        p.I(f'v_cmp_gt_i32 vcc, {8*(r>>2)+(r&3)}, v{V_T+3}\nv_cndmask_b32 v{MASK+r}, 0, v{V_T+4}, vcc')
    projw_finish(p, 'q')
    ev(p, 1)
    p.I('s_barrier')
    K.wait_all(p, lab)
    ev(p, 2)
    p.reset_cnt()
    proj_setup(p)
    p.I(f'''
    s_lshl_b32 s{T0}, s{S_W}, 17
    s_lshl_b32 s{T1}, s{S_H}, 12
    s_add_u32 s{T0}, s{T0}, s{T1}
    s_add_u32 s{T1}, s{T0}, {K.KVM}
    s_lshl_b32 s{T0}, s{T0}, 1
    s_add_u32 s{T0}, s{T0}, {K.OF + 4096}
    ''')
    p.I('\n'.join(add64(S_PUB, S_WS, f's{T1}') + add64(S_OF, S_WS, f's{T0}')))
    AK, AV, AM, AVM = 128, 160, 192, 224
    S, SM = ACC, ACC + 16
    P, PM, OP = RING, RING + 8, RING + 12
    TM, TN = V_T + 2, V_T + 3
    def body(buf, n):
        p.lg = []
        for phi in range(RD): wread(p, phi)
        p.I('s_waitcnt vmcnt(0)'); p.vm = []
        extra = {}
        for et in range(3):
            pk = pack(QF + 8 * et, ACC + 16 * (et & 1))
            for i in range(4): extra.setdefault((et + 1, 3 + i), []).extend(pk[2*i:2*i+2])
        proj_body(p, 'q', buf, extra, ringcont=False)
        p.I(f's_add_u32 s{S_IT}, s{S_IT}, 1')
        p.I(f's_lshl_b32 s{T2}, s{S_IT}, 2\ns_add_u32 s{T2}, s{T2}, s{S_W}\ns_sub_u32 s{T2}, s{T2}, 3')
        poll_flags(p, f'{lab}_pk{n}', S_FL2, 2, T2, V_FKV)
        for et in range(4):
            for f in range(2):
                p.I(f'buffer_load_dwordx4 {ar(AK+8*et+4*f,4)}, v{V_KA}, s[{S_SRD2}:{S_SRD2+3}], s{S_C4K+et} offen offset:{512*f} sc1', tag=('k', et, f))
        for et in range(4):
            for f in range(2):
                p.I(f'buffer_load_dwordx4 {ar(AV+8*et+4*f,4)}, v{V_VA}, s[{S_SRD2}:{S_SRD2+3}], s{S_C4K+et} offen offset:{512*f} sc1', tag='v')
        for x in pack(QF + 24, ACC + 16): p.I(x)
        p.I('\n'.join(add64(S_SRD2, S_SRD2, 4 * 32 * 16384)))
        for i in range(8):
            p.wait(vm=('k', i >> 1, i & 1))
            p.I(f'v_mfma_f32_32x32x16_bf16 {vr(S,16)}, {ar(AK+4*i,4)}, {vr(QF+4*i,4)}, {vr(MASK,16) if i == 0 else vr(S,16)}')
        ev(p, (S_IT, 2))
        poll_flags(p, f'{lab}_pc{n}', S_FL3, 4, T2, V_FC)
        ev(p, (S_IT, 20))
        for i in range(8):
            p.I(f'global_load_dwordx4 {ar(AM+4*i,4)}, v{V_KM}, s[{S_PUB}:{S_PUB+1}] offset:{512*i} sc1', tag=('m', i))
        for et in range(4):
            for d in range(2):
                p.I(f'global_load_dword a{AVM+2*et+d}, v{V_VM}, s[{S_PUB}:{S_PUB+1}] offset:{1024*et+256*d} sc1', tag='vm')
        p.I('\n'.join(add64(S_PUB, S_PUB, 4 * 32 * 4096)))
        p.I(f'v_max3_f32 v{TM}, v{S}, v{S+1}, v{S+2}')
        for i in range(3, 15, 2): p.I(f'v_max3_f32 v{TM}, v{TM}, v{S+i}, v{S+i+1}')
        p.I(f'v_max_f32 v{TM}, v{TM}, v{S+15}')
        for i in range(8):
            p.wait(vm=('m', i))
            p.I(f'v_mfma_f32_32x32x16_bf16 {vr(SM,16)}, {ar(AM+4*i,4)}, {vr(QF+4*i,4)}, {"0" if i == 0 else vr(SM,16)}')
        p.I(f'''
        v_max3_f32 v{TM}, v{TM}, v{SM}, v{SM+1}
        v_max3_f32 v{TM}, v{TM}, v{SM+2}, v{SM+3}
        v_mov_b32 v{TN}, v{TM}
        v_permlane32_swap_b32 v{TM}, v{TN}
        v_max_f32 v{TM}, v{TM}, v{TN}
        v_mul_f32 v{TM}, s{S_SC}, v{TM}
        ''')
        for r in range(20):
            p.I(f'v_fma_f32 v{S+r}, v{S+r}, s{S_SC}, -v{TM}')
        for r in range(20): p.I(f'v_exp_f32 v{S+r}, v{S+r}')
        for i in range(10): p.I(f'v_cvt_pk_bf16_f32 v{P+i}, v{S+2*i}, v{S+2*i+1}')
        for i in range(5): p.I(f'v_pk_add_f32 {vr(S+4*i,2)}, {vr(S+4*i,2)}, {vr(S+4*i+2,2)}')
        p.I(f'''
        v_pk_add_f32 {vr(S,2)}, {vr(S,2)}, {vr(S+4,2)}
        v_pk_add_f32 {vr(S+8,2)}, {vr(S+8,2)}, {vr(S+12,2)}
        v_pk_add_f32 {vr(S,2)}, {vr(S,2)}, {vr(S+16,2)}
        v_pk_add_f32 {vr(S,2)}, {vr(S,2)}, {vr(S+8,2)}
        v_add_f32 v{TM}, v{S}, v{S+1}
        v_mov_b32 v{TN}, v{TM}
        v_permlane32_swap_b32 v{TM}, v{TN}
        v_add_f32 v{TM}, v{TM}, v{TN}
        v_rcp_f32 v{TM}, v{TM}
        s_waitcnt vmcnt(0)
        ''')
        p.vm = []
        def fin(et):
            acc = ACC + 16 * (et & 1); o = OP + 8 * (et & 1)
            for i in range(16): p.I(f'v_mul_f32 v{acc+i}, v{acc+i}, v{TM}')
            for x in pack(o, acc): p.I(x)
            for f in range(2):
                p.I(f'global_store_dwordx4 v{V_L16}, {vr(o+4*f,4)}, s[{S_OF}:{S_OF+1}] offset:{2048*et+1024*f-4096} sc1')
        for et in range(4):
            acc = ACC + 16 * (et & 1)
            p.I(f'v_mfma_f32_32x32x16_bf16 {vr(acc,16)}, {ar(AV+8*et,4)}, {vr(P,4)}, 0')
            p.I(f'v_mfma_f32_32x32x16_bf16 {vr(acc,16)}, {ar(AV+8*et+4,4)}, {vr(P+4,4)}, {vr(acc,16)}')
            p.I(f'v_mfma_f32_32x32x8_bf16 {vr(acc,16)}, {ar(AVM+2*et,2)}, {vr(PM,2)}, {vr(acc,16)}')
            if et > 0: fin(et - 1)
        fin(3)
        p.I('\n'.join(add64(S_OF, S_OF, 4 * 32 * 8192)))
        p.I(f'''
        v_mov_b32 v{V_T}, s{S_IT}
        s_waitcnt vmcnt(0)
        s_mov_b64 exec, 1
        global_store_dword v{V_Z}, v{V_T}, s[{S_FLG}:{S_FLG+1}] sc1
        s_mov_b64 exec, -1
        ''')
        ev(p, (S_IT, 40))
    p.L(f'{lab}_loop')
    body(0, 0)
    body(1, 1)
    p.I(f's_cmp_lt_u32 s{S_IT}, 16\ns_cbranch_scc1 {lab}_loop')
    ev_dump(p)
    p.I('s_branch L_end')

def o_worker(p, cfg, lab):
    L = V_T + 1
    p.I('s_barrier')
    if cfg.get('mix', 1): p.I(f's_lshl_b32 s{S_H}, s{S_H}, 1\ns_add_u32 s{S_H}, s{S_H}, s{K.S_XCC}')
    else: p.I(f's_lshl_b32 s{T0}, s{K.S_XCC}, 5\ns_add_u32 s{S_H}, s{S_H}, s{T0}')
    if TL[0]: p.I(f's_mov_b32 s{K.S_XCC}, 0')
    S_LB = 56
    p.I(f"""
    v_lshrrev_b32 v1, 2, v{L}
    v_lshlrev_b32 v1, 10, v1
    v_and_b32 v2, 3, v{L}
    v_lshl_add_u32 v1, v2, 4, v1
    s_lshl_b32 s{T0}, s{S_W}, 20
    s_and_b32 s{T1}, s{S_H}, 15
    s_lshl_b32 s{T1}, s{T1}, 6
    s_add_u32 s{T0}, s{T0}, s{T1}
    v_add_u32 v{V_T}, s{T0}, v1
    s_mul_i32 s{S_LB}, s{S_W}, 40960
    v_lshrrev_b32 v1, 5, v{L}
    v_lshlrev_b32 v1, 8, v1
    v_and_b32 v3, 12, v{L}
    v_lshl_add_u32 v1, v3, 4, v1
    v_and_b32 v3, 16, v{L}
    v_lshl_add_u32 v1, v3, 1, v1
    v_lshl_add_u32 v1, v2, 3, v1
    v_add_u32 v{V_T+2}, s{S_LB}, v1
    """)
    K.set_srd(p, K.S_WO, 4 * MB)
    def issue(q):
        for i in range(8):
            p.I(f's_add_u32 m0, s{S_LB}, {(q%5)*8192 + i*1024}')
            p.I(f's_mov_b32 s{T3}, {q*131072 + i*16384}')
            p.I(f'buffer_load_dwordx4 v{V_T}, s[{S_SRD}:{S_SRD+3}], s{T3} offen lds', tag=('ow', q))
    for q in range(5): issue(q)
    for q in range(8):
        p.wait(vm=('ow', q))
        for fr in range(8):
            for x in range(2):
                p.I(f'ds_read_b64_tr_b16 {ar(32*q+4*fr+2*x,2)}, v{V_T+2} offset:{(q%5)*8192 + fr*1024 + x*512}')
            if fr == 3: p.wait(lg='all')
        p.wait(lg='all')
        if q + 5 < 8: issue(q + 5)
    p.I('s_barrier')
    p.I(f'''
    s_lshr_b32 s{T2}, s{S_H}, 4
    s_lshl_b32 s{T0}, s{T2}, 18
    s_lshl_b32 s{T1}, s{S_W}, 16
    s_add_u32 s{T0}, s{T0}, s{T1}
    s_add_u32 s{T0}, s{T0}, {K.OF}
    s_add_u32 s{S_SRD}, s{S_WS}, s{T0}
    s_addc_u32 s{S_SRD+1}, s{S_WS+1}, 0
    s_mov_b32 s{S_SRD+2}, 0x10000
    s_mov_b32 s{S_SRD+3}, 0x20000
    s_lshl_b32 s{T0}, s{T2}, 12
    s_lshl_b32 s{T1}, s{S_W}, 10
    s_add_u32 s{T0}, s{T0}, s{T1}
    s_add_u32 s{T0}, s{T0}, {K.FL + K.F_O}
    s_add_u32 s{S_FL2}, s{S_WS}, s{T0}
    s_addc_u32 s{S_FL2+1}, s{S_WS+1}, 0
    v_and_b32 v{V_KM}, 7, v{L}
    v_lshlrev_b32 v{V_KM}, 7, v{V_KM}
    s_lshl_b32 s{T0}, s{T2}, 16
    s_lshl_b32 s{T1}, s{S_M}, 10
    s_add_u32 s{T0}, s{T0}, s{T1}
    s_and_b32 s{T1}, s{S_H}, 15
    s_lshl_b32 s{T1}, s{T1}, 6
    s_add_u32 s{T0}, s{T0}, s{T1}
    s_lshl_b32 s{T1}, s{S_W}, 4
    s_add_u32 s{T0}, s{T0}, s{T1}
    s_add_u32 s{S_OF}, s{K.S_OUT}, s{T0}
    s_addc_u32 s{S_OF+1}, s{K.S_OUT+1}, 0
    v_and_b32 v1, 31, v{L}
    v_lshlrev_b32 v1, 11, v1
    v_lshrrev_b32 v2, 5, v{L}
    v_lshl_add_u32 v{V_VM}, v2, 3, v1
    v_add_u32 v{V_LHI}, 0x8000, v{V_L16}
    s_lshl_b32 s{T0}, s{S_W}, 12
    v_add_u32 v{V_KA}, s{T0}, v{V_L16}
    s_lshl_b32 s{T0}, s{S_W}, 10
    v_add_u32 v{V_VA}, s{T0}, v{V_L16}
    s_mov_b32 s{S_IT}, 0
    ''')
    ev(p, 20)
    NB = 52
    A = 208
    def old(k):
        va = V_L16 if k < 32 else V_LHI
        p.I(f'buffer_load_dwordx4 {vr(4*(k%NB),4)}, v{va}, s[{S_SRD}:{S_SRD+3}], s{S_C4K+((k%32)>>2)} offen offset:{(k&3)*1024} sc1', tag=('o', k))
    def body(par):
        p.I(f's_add_u32 s{S_IT}, s{S_IT}, 1')
        poll_flags(p, f'{lab}_pf{par}', S_FL2, 8, S_IT, V_KM)
        ev(p, (S_IT, 20))
        for k in range(NB): old(k)
        for k in range(64):
            p.wait(vm=('o', k))
            p.I(f'v_mfma_f32_32x32x16_bf16 {vr(A,16)}, {ar(4*k,4)}, {vr(4*(k%NB),4)}, {"0" if k == 0 else vr(A,16)}')
            if k + NB < 64: old(k + NB)
        p.I('\n'.join(add64(S_SRD, S_SRD, 4 * 32 * 8192)))
        p.lg = []
        for q in range(4):
            p.I(f'ds_write_b128 v{V_KA}, {vr(A+4*q,4)} offset:{par*16384 + q*1024}')
        p.I('s_waitcnt lgkmcnt(0)\ns_barrier')
        for q in range(4):
            p.I(f'ds_read_b128 {vr(A+4*q,4)}, v{V_VA} offset:{par*16384 + q*4096}')
        p.I(f'''
        s_waitcnt lgkmcnt(0)
        v_pk_add_f32 {vr(A,2)}, {vr(A,2)}, {vr(A+4,2)}
        v_pk_add_f32 {vr(A+2,2)}, {vr(A+2,2)}, {vr(A+6,2)}
        v_pk_add_f32 {vr(A+8,2)}, {vr(A+8,2)}, {vr(A+12,2)}
        v_pk_add_f32 {vr(A+10,2)}, {vr(A+10,2)}, {vr(A+14,2)}
        v_pk_add_f32 {vr(A,2)}, {vr(A,2)}, {vr(A+8,2)}
        v_pk_add_f32 {vr(A+2,2)}, {vr(A+2,2)}, {vr(A+10,2)}
        v_cvt_pk_bf16_f32 v{A+16}, v{A}, v{A+1}
        v_cvt_pk_bf16_f32 v{A+17}, v{A+2}, v{A+3}
        global_store_dwordx2 v{V_VM}, {vr(A+16,2)}, s[{S_OF}:{S_OF+1}]
        ''')
        p.I('\n'.join(add64(S_OF, S_OF, 4 * 32 * 2048)))
        ev(p, (S_IT, 40))
    p.L(f'{lab}_loop')
    body(0); body(1)
    p.I(f's_cmp_lt_u32 s{S_IT}, 16\ns_cbranch_scc1 {lab}_loop')
    ev_dump(p)
    p.I('s_branch L_end')
```

```python
import sys
sys.path.insert(0, 'gen')
from asmlib import *

NAME = 'concat_heads__memory_aug_recurrent_mem_tr__memory_aug_recurrent_mem_tr__prompt_kernel'
MB = 1 << 20
WS_MODEL = 64 * MB
KVF, OF, KVM, XF = 0, 32 * MB, 48 * MB, 56 * MB
PR = 58 * MB
MR = PR + 512 * 1024
FL = 59 * MB
TS = 60 * MB
SENT = 0xffc0ffc0
F_K, F_V, F_C, F_O = 0, 16384, 32768, 49152
SAFE_OFF = 3 * MB

S_X, S_MEM0, S_WQ, S_WK, S_WV, S_WO = 4, 6, 8, 10, 12, 14
S_OUT, S_DBG, S_WS = 16, 18, 20
S_XCC, S_W, S_H, S_M = 22, 23, 24, 25
S_STEP, S_SPIN = 26, 27
S_SRD = 28
S_PP, S_MS, S_MRS, S_MP, S_KV, S_PUB, S_PPO = 34, 36, 38, 40, 42, 44, 46
S_TO = 50
S_LATE = 32
S_KEY = 67
S_MQ1 = 48
S_T0, S_T1, S_T2, S_T3 = 58, 59, 60, 61
S_PTOG, S_MTOG = 62, 63
S_OPS, S_OPP, S_OMP = 64, 65, 66
S_SC = 98
S_MODE, S_FLB, S_FLC = 3, 96, 4
S_PL, S_PH = 68, 69
S_SENT, S_THR = 70, 71
S_ST = 72

MF, SB = 0, 32
Q0, Q1, K0, K1, V0, V1 = 64, 68, 72, 76, 80, 84
KX, VX = 88, 96
C_IDX, A_L16, C_SELT, C_SELR = 104, 105, 106, 108
A_PST, A_MST, A_STW, A_ST1, A_ST2, A_ST3, A_WL, A_MW, A_OW, A_OR = 112, 113, 114, 115, 116, 117, 118, 119, 120, 121
A_FL, V_FL = 122, 123
C_SENT = 124
ALAND = 240
L_STG, L_XCH, L_W = 0, 8192, 16384
HOME = {}
for sg in range(8):
    for tt in range(2): HOME[('q', sg, tt)] = ('a', 16 * sg + 8 * tt)
_l = 0
for key in [('k', 0, 0), ('k', 0, 1), ('k', 1, 0), ('k', 1, 1), ('k', 4, 0), ('k', 4, 1), ('k', 5, 0), ('k', 5, 1),
            ('v', 2, 0), ('v', 2, 1), ('v', 6, 0), ('v', 6, 1),
            ('o', 0, 0), ('o', 1, 0), ('o', 2, 0), ('o', 3, 0), ('o', 6, 1), ('o', 7, 1)]:
    HOME[key] = ('l', _l); _l += 1
_a = 128
for sg in (0, 1, 3, 4, 5, 7):
    for tt in range(2): HOME[('v', sg, tt)] = ('a', _a); _a += 8
for tt in range(2): HOME[('k', 7, tt)] = ('a', _a); _a += 8
assert _a == ALAND
_v = 128
for t in range(8):
    for cc in range(2):
        if ('o', t, cc) not in HOME: HOME[('o', t, cc)] = ('v', _v); _v += 8
for sg in (2, 3, 6):
    for tt in range(2): HOME[('k', sg, tt)] = ('v', _v); _v += 8
assert _v == 256
def sbslot(key): return SB + 8 * (HOME[key][1] % 4)

def add64(dst, base, off_s):
    return [f's_add_u32 s{dst}, s{base}, {off_s}', f's_addc_u32 s{dst+1}, s{base+1}, 0']

def load_args(p):
    p.I(f"""
    s_load_dwordx4 s[{S_X}:{S_X+3}], s[0:1], 0
    s_load_dwordx4 s[{S_WQ}:{S_WQ+3}], s[0:1], 16
    s_load_dwordx4 s[{S_WV}:{S_WV+3}], s[0:1], 32
    s_load_dwordx2 s[32:33], s[0:1], 56
    s_load_dwordx4 s[36:39], s[0:1], 64
    s_load_dwordx4 s[40:43], s[0:1], 80
    s_load_dwordx2 s[44:45], s[0:1], 96
    s_load_dwordx4 s[{S_OUT}:{S_OUT+3}], s[0:1], 112
    s_load_dwordx2 s[{S_WS}:{S_WS+1}], s[0:1], 128
    """)

def common_prologue(p, cfg):
    p.I("""
    s_cmp_ge_u32 s2, 256
    s_cbranch_scc1 L_end
    """)
    load_args(p)
    p.I(f"""
    s_getreg_b32 s{S_XCC}, hwreg(HW_REG_XCC_ID)
    s_and_b32 s{S_XCC}, s{S_XCC}, 7
    v_lshrrev_b32 v1, 6, v0
    v_and_b32 v0, 63, v0
    v_readfirstlane_b32 s{S_W}, v1
    s_mov_b32 s{S_SPIN}, {cfg.get('spin', 2000000)}
    s_mov_b32 s{S_MODE}, 0
    s_waitcnt lgkmcnt(0)
    """)
    if cfg.get('stamps'):
        p.I(f's_memrealtime s[94:95]')
    p.I(f"""
    s_cmp_eq_u32 s{S_W}, 0
    s_cbranch_scc0 L_noticket
    s_mov_b64 exec, 1
    s_lshl_b32 s{S_T0}, s{S_XCC}, 5
    v_mov_b32 v1, s{S_T0}
    v_mov_b32 v2, 1
    global_atomic_add v3, v1, v2, s[{S_DBG}:{S_DBG+1}] sc0
    v_mov_b32 v1, 0
    s_waitcnt vmcnt(0)
    ds_write_b32 v1, v3
    s_waitcnt lgkmcnt(0)
    s_mov_b64 exec, -1
L_noticket:
    s_barrier
    v_mov_b32 v1, 0
    ds_read_b32 v3, v1
    s_waitcnt lgkmcnt(0)
    v_readfirstlane_b32 s{S_H}, v3
    s_barrier
    """)

AV = (1, 2)
def arrive(p, lab, tv=(252, 253), keep=0):
    p.I(f"""
    s_waitcnt vmcnt({keep}) lgkmcnt(0)
    s_barrier
    s_cmp_eq_u32 s{S_W}, 0
    s_cbranch_scc0 {lab}_noarr
    s_mov_b64 exec, 1
    s_lshl_b32 s{S_T0}, s{S_MODE}, 5
    s_add_u32 s{S_T0}, s{S_T0}, 208
    v_mov_b32 v{tv[0]}, s{S_T0}
    v_mov_b32 v{tv[1]}, 1
    global_atomic_add v{tv[0]}, v{tv[1]}, s[{S_DBG}:{S_DBG+1}]
    s_mov_b64 exec, -1
{lab}_noarr:
    """)
    if keep: p.vm = p.vm[-keep-1:-1]
    else: p.reset_cnt()

NARR = [256]
FORCE = [0]
def wait_all(p, lab, tv=(252, 253)):
    p.I(f"""
    v_mbcnt_lo_u32_b32 v{tv[0]}, -1, 0
    v_and_b32 v{tv[0]}, 15, v{tv[0]}
    v_lshlrev_b32 v{tv[0]}, 4, v{tv[0]}
    s_lshl_b32 s{S_T1}, s{S_MODE}, 1
    s_add_u32 s{S_T1}, s{S_T1}, 13
{lab}_wa:
    global_load_dword v{tv[1]}, v{tv[0]}, s[{S_DBG}:{S_DBG+1}] sc1
    s_waitcnt vmcnt(0)
    v_readlane_b32 s{S_T0}, v{tv[1]}, s{S_T1}
    s_cmp_ge_u32 s{S_T0}, {NARR[0]}
    s_cbranch_scc1 {lab}_wb
    s_sleep 16
    s_sub_u32 s{S_SPIN}, s{S_SPIN}, 1
    s_cbranch_scc0 {lab}_wa
    s_branch L_end
{lab}_wb:
    s_cmp_eq_u32 s{S_MODE}, 1
    s_cbranch_scc1 {lab}_wc
    global_load_dword v{tv[1]}, v{tv[0]}, s[{S_DBG}:{S_DBG+1}] sc1
    s_waitcnt vmcnt(0)
    v_cmp_ne_u32 vcc, {32 + FORCE[0]}, v{tv[1]}
    s_and_b32 s{S_T0}, vcc_lo, 0x5555
    s_cbranch_scc1 L_safe
{lab}_wc:
    """)
    p.reset_cnt()

def select_model(p):
    p.I(f'''
    s_cmp_eq_u32 s{S_M}, 1
    s_cselect_b64 s[{S_X}:{S_X+1}], s[32:33], s[{S_X}:{S_X+1}]
    s_cselect_b64 s[{S_MEM0}:{S_MEM0+1}], s[36:37], s[{S_MEM0}:{S_MEM0+1}]
    s_cselect_b64 s[{S_WQ}:{S_WQ+1}], s[38:39], s[{S_WQ}:{S_WQ+1}]
    s_cselect_b64 s[{S_WK}:{S_WK+1}], s[40:41], s[{S_WK}:{S_WK+1}]
    s_cselect_b64 s[{S_WV}:{S_WV+1}], s[42:43], s[{S_WV}:{S_WV+1}]
    s_cselect_b64 s[{S_WO}:{S_WO+1}], s[44:45], s[{S_WO}:{S_WO+1}]
    s_lshl_b32 s{S_T0}, s{S_M}, 26
    s_add_u32 s{S_WS}, s{S_WS}, s{S_T0}
    s_addc_u32 s{S_WS+1}, s{S_WS+1}, 0
    ''')

def set_srd(p, ptr, nbytes):
    p.I(f'''
    s_mov_b32 s{S_SRD}, s{ptr}
    s_and_b32 s{S_SRD+1}, s{ptr+1}, 0xffff
    s_mov_b32 s{S_SRD+2}, {nbytes}
    s_mov_b32 s{S_SRD+3}, 0x20000
    ''')

def chain_consts(p, RO):
    p.I(f'''
    v_and_b32 v61, 15, v0
    v_lshrrev_b32 v62, 4, v0
    v_lshlrev_b32 v{A_L16}, 4, v0
    s_mov_b32 s{S_MQ1}, 0xcccccccc
    s_mov_b32 s{S_MQ1+1}, 0xcccccccc
    s_mov_b32 s{S_SC}, 0x3e0293ee
    s_mov_b32 s{S_PL}, 0x05040100
    s_mov_b32 s{S_PH}, 0x07060302
    s_mov_b32 s{S_SENT}, {SENT}
    s_mov_b32 s{S_THR}, 0xffc00000
    s_mov_b32 s{S_SC+1}, 0x3e0293ee
    v_mov_b32 v{C_SENT}, s{S_SENT}
    v_mov_b32 v{C_SENT+1}, s{S_SENT}
    v_mov_b32 v{C_SENT+2}, s{S_SENT}
    v_mov_b32 v{C_SENT+3}, s{S_SENT}
    v_mov_b32 v64, 0xeeee
    v_mov_b32 v65, 0x4444
    v_cndmask_b32 v{C_IDX}, v65, v64, s[{S_MQ1}:{S_MQ1+1}]
    ''')
    p.I(f'''
    v_and_b32 v63, 1, v61
    v_lshlrev_b32 v63, 4, v63
    v_mov_b32 v64, 0x3f80
    v_lshlrev_b32 v64, v63, v64
    v_lshrrev_b32 v65, 2, v61
    v_cmp_eq_u32 vcc, v65, v62
    v_cndmask_b32 v64, 0, v64, vcc
    v_mov_b32 v65, 0
    v_cndmask_b32 v{C_SELT}, v65, v64, s[{S_MQ1}:{S_MQ1+1}]
    v_cndmask_b32 v{C_SELT+1}, v64, v65, s[{S_MQ1}:{S_MQ1+1}]
    ''')
    p.I(f'''
    v_lshrrev_b32 v63, 2, v61
    v_and_b32 v63, 1, v63
    v_lshlrev_b32 v63, 4, v63
    v_mov_b32 v64, 0x3f80
    v_lshlrev_b32 v64, v63, v64
    v_and_b32 v65, 11, v61
    ''')
    for d, key in enumerate([0, 1, 8, 9]):
        p.I(f'v_cmp_eq_u32 vcc, {key}, v65\nv_cndmask_b32 v{C_SELR+d}, 0, v64, vcc')
    p.I(f'''
    v_lshrrev_b32 v63, 1, v62
    v_lshlrev_b32 v63, 13, v63
    v_and_b32 v64, 1, v62
    v_lshl_add_u32 v63, v64, 11, v63
    v_lshl_add_u32 v63, v61, 2, v63
    s_lshl_b32 s{S_T0}, s{S_W}, 16
    s_lshl_b32 s{S_T1}, s{S_H}, 6
    s_add_u32 s{S_T0}, s{S_T0}, s{S_T1}
    v_add_u32 v{A_PST}, s{S_T0}, v63
    ''')
    for t in range(8): p.I(f's_mov_b32 s{S_TO+t}, {(t&3)*16384 + (t>>2)*4096}')
    p.I(f'''
    v_and_b32 v63, 2, v0
    v_lshlrev_b32 v63, 4, v63
    v_and_b32 v64, 1, v62
    v_lshl_add_u32 v63, v64, 4, v63
    v_and_b32 v64, 1, v0
    v_lshl_add_u32 v63, v64, 3, v63
    v_lshrrev_b32 v64, 1, v62
    v_lshl_add_u32 v63, v64, 2, v63
    s_lshr_b32 s{S_LATE}, s{S_W}, 1
    s_lshr_b32 s{S_T2}, s{S_H}, 1
    s_and_b32 s{S_T2}, s{S_T2}, 3
    s_lshl_b32 s{S_T0}, s{S_LATE}, 2
    s_add_u32 s{S_T2}, s{S_T2}, s{S_T0}
    s_and_b32 s{S_T3}, s{S_H}, 1
    s_lshl_b32 s{S_T3}, s{S_T3}, 1
    s_and_b32 s{S_T0}, s{S_W}, 1
    s_add_u32 s{S_T3}, s{S_T3}, s{S_T0}
    s_lshl_b32 s{S_T0}, s{S_T2}, 10
    s_lshr_b32 s{S_T1}, s{S_H}, 3
    s_lshl_b32 s{S_T1}, s{S_T1}, 8
    s_add_u32 s{S_T0}, s{S_T0}, s{S_T1}
    s_lshl_b32 s{S_T1}, s{S_T3}, 6
    s_add_u32 s{S_T0}, s{S_T0}, s{S_T1}
    v_add_u32 v{A_MST}, s{S_T0}, v63
    ''')
    p.I(f'''
    v_and_b32 v63, 1, v62
    v_lshlrev_b32 v63, 10, v63
    v_lshrrev_b32 v64, 1, v62
    v_lshl_add_u32 v63, v64, 2, v63
    v_and_b32 v64, 3, v0
    v_lshl_add_u32 v63, v64, 3, v63
    s_lshl_b32 s{S_T0}, s{S_T3}, 11
    s_lshr_b32 s{S_T1}, s{S_H}, 3
    s_lshl_b32 s{S_T1}, s{S_T1}, 8
    s_add_u32 s{S_T0}, s{S_T0}, s{S_T1}
    s_lshl_b32 s{S_T1}, s{S_T2}, 5
    s_add_u32 s{S_T0}, s{S_T0}, s{S_T1}
    v_add_u32 v70, s{S_T0}, v63
    ''')
    p.I(f'''
    s_lshl_b32 s{S_T0}, s{S_KEY}, 11
    v_add_u32 v{A_STW}, s{S_T0}, v{A_L16}
    v_xor_b32 v{A_ST1}, 0x800, v{A_STW}
    v_xor_b32 v{A_ST2}, 0x1000, v{A_STW}
    v_xor_b32 v{A_ST3}, 0x1800, v{A_STW}
    s_mul_i32 s{S_T0}, s{S_W}, 36864
    s_add_u32 s{S_T0}, s{S_T0}, {L_W}
    v_add_u32 v{A_WL}, s{S_T0}, v{A_L16}
    s_lshl_b32 s{S_T0}, s{S_W}, 2
    v_add_u32 v{A_MW}, s{S_T0}, v{A_L16}
    ''')
    p.I(f'''
    v_lshrrev_b32 v64, 2, v61
    v_lshlrev_b32 v63, 5, v64
    v_and_b32 v64, 1, v0
    v_lshl_add_u32 v63, v64, 4, v63
    v_lshl_add_u32 v65, v62, 7, v63
    s_lshr_b32 s{S_T0}, s{S_W}, 1
    s_lshl_b32 s{S_T0}, s{S_T0}, 11
    s_and_b32 s{S_T1}, s{S_W}, 1
    s_lshl_b32 s{S_T1}, s{S_T1}, 9
    s_add_u32 s{S_T0}, s{S_T0}, s{S_T1}
    s_add_u32 s{S_T0}, s{S_T0}, {L_XCH + 2048 + 1024}
    v_add_u32 v68, s{S_T0}, v65
    v_add_u32 v69, {L_XCH + 6144 + 1024}, v65
    v_cndmask_b32 v{A_OW}, v69, v68, s[{S_MQ1}:{S_MQ1+1}]
    ''')
    p.I(f'''
    v_lshl_add_u32 v63, v62, 8, v63
    v_and_b32 v64, 2, v0
    v_lshl_add_u32 v63, v64, 6, v63
    v_add_u32 v{A_OR}, {L_XCH + 2048 + 1024}, v63
    ''')
    p.I(f'''
    s_lshl_b32 s{S_T2}, s{S_H}, 2
    s_add_u32 s{S_T2}, s{S_T2}, s{S_W}
    s_lshl_b32 s{S_OPP}, s{S_T2}, 11
    s_add_u32 s{S_OPP}, s{S_OPP}, {PR + RO}
    s_lshl_b32 s{S_OMP}, s{S_KEY}, 10
    s_add_u32 s{S_OMP}, s{S_OMP}, {MR + RO + 2048}
    s_lshl_b32 s{S_T0}, s{S_T2}, 12
    ''')
    p.I('\n'.join(add64(S_KV, S_WS, f's{S_T0}')))
    p.I(f's_lshl_b32 s{S_T0}, s{S_T2}, 10\ns_add_u32 s{S_T0}, s{S_T0}, {KVM}')
    p.I('\n'.join(add64(S_PUB, S_WS, f's{S_T0}')))

S_LB, S_SR2 = 72, 76
VA_QKV, VA_WO, VA_TR, VA_TQ, VA_TQ2 = 3, 4, 5, 6, 7
PARK = 8
def chain_weights_setup(p, mid):
    p.I(f"""
    v_and_b32 v1, 15, v0
    v_lshrrev_b32 v2, 5, v0
    v_lshlrev_b32 v2, 12, v2
    v_and_b32 v8, 16, v0
    v_lshl_add_u32 v2, v8, 10, v2
    v_lshl_add_u32 v2, v1, 4, v2
    s_lshl_b32 s{S_T0}, s{S_H}, 17
    s_lshl_b32 s{S_T1}, s{S_W}, 8
    s_add_u32 s{S_T0}, s{S_T0}, s{S_T1}
    v_add_u32 v{VA_WO}, s{S_T0}, v2
    s_mul_i32 s{S_LB}, s{S_W}, 36864
    s_add_u32 s{S_LB}, s{S_LB}, {L_W}
    """)
    b = S_SR2 + 12
    p.I(f's_mov_b32 s{b}, s{S_WO}\ns_and_b32 s{b+1}, s{S_WO+1}, 0xffff\ns_mov_b32 s{b+2}, {4*MB}\ns_mov_b32 s{b+3}, 0x20000')
    for blk in range(8):
        cc, jp = blk >> 2, blk & 3
        if blk == 2: mid()
        for gb in range(4):
            e = 64 * cc + 32 * (jp >> 1) + (jp & 1) + 8 * (gb >> 1) + 2 * (gb & 1)
            p.I(f's_add_u32 m0, s{S_LB}, {blk*4096 + gb*1024}\ns_mov_b32 s{S_T3}, {e*1024}')
            p.I(f'buffer_load_dwordx4 v{VA_WO}, s[{b}:{b+3}], s{S_T3} offen lds', tag=('wo', blk))
    p.I(f"""
    v_lshrrev_b32 v2, 5, v0
    v_lshlrev_b32 v2, 16, v2
    v_lshl_add_u32 v2, v8, 9, v2
    v_lshl_add_u32 v2, v1, 4, v2
    s_lshr_b32 s{S_T0}, s{S_W}, 1
    s_lshl_b32 s{S_T0}, s{S_T0}, 21
    s_and_b32 s{S_T1}, s{S_W}, 1
    s_lshl_b32 s{S_T1}, s{S_T1}, 14
    s_add_u32 s{S_T0}, s{S_T0}, s{S_T1}
    s_lshl_b32 s{S_T1}, s{S_H}, 8
    s_add_u32 s{S_T0}, s{S_T0}, s{S_T1}
    v_add_u32 v{VA_QKV}, s{S_T0}, v2
    v_lshrrev_b32 v2, 2, v0
    v_lshlrev_b32 v2, 8, v2
    v_and_b32 v1, 3, v0
    v_lshl_add_u32 v2, v1, 3, v2
    v_add_u32 v{VA_TR}, s{S_LB}, v2
    s_lshl_b32 s{S_T0}, s{S_W}, 6
    s_add_u32 s{S_T0}, s{S_T0}, {L_W}
    v_add_u32 v{VA_TQ}, s{S_T0}, v2
    v_add_u32 v{VA_TQ2}, {2*36864}, v{VA_TQ}
    """)
    for i, ptr in enumerate((S_WQ, S_WK, S_WV)):
        b = S_SR2 + 4 * i
        p.I(f's_mov_b32 s{b}, s{ptr}\ns_and_b32 s{b+1}, s{ptr+1}, 0xffff\ns_mov_b32 s{b+2}, {4*MB}\ns_mov_b32 s{b+3}, 0x20000')

def chain_weights_run(p, cfg, lab, mid):
    units = [(m, c) for m in cfg.get('worder', 'qvk') for c in range(8)]
    NS = 6
    def dest(key, jp):
        kind, idx = HOME[key]
        if kind == 'a': return ar(idx + 2 * jp, 2)
        if kind == 'v': return vr(idx + 2 * jp, 2)
        return vr(PARK + 8 * (idx % 12) + 2 * jp, 2)
    def issue(i):
        m, c = units[i]; srd = S_SR2 + 4 * 'qkv'.index(m)
        for gb in range(4):
            d = 16 * c + 128 * (gb >> 1) + 4 * (gb & 1)
            p.I(f's_add_u32 m0, s{S_LB}, {(i%NS)*4096 + gb*1024}\ns_mov_b32 s{S_T3}, {d*8192}')
            p.I(f'buffer_load_dwordx4 v{VA_QKV}, s[{srd}:{srd+3}], s{S_T3} offen lds', tag=('u', i))
    for blk in range(8):
        cc, jp = blk >> 2, blk & 3
        p.wait(vm=('wo', blk))
        for t in range(8):
            p.I(f'ds_read_b64_tr_b16 {dest(("o", t, cc), jp)}, v{VA_TR} offset:{blk*4096 + t*32}')
        p.wait(lg='all')
        if blk < NS: issue(blk)
    for idx in range(12, 18):
        for hh in range(2):
            p.I(f'ds_write_b128 v{A_WL}, {vr(PARK+8*(idx%12)+4*hh,4)} offset:{idx*2048 + hh*1024}')
    p.wait(lg='all')
    mid()
    vm0 = list(p.vm)
    for key in range(4):
        if key < 3: p.I(f's_cmp_eq_u32 s{S_KEY}, {key}\ns_cbranch_scc0 {lab}_wv{key+1}')
        p.vm = list(vm0)
        for i, (m, c) in enumerate(units):
            p.wait(vm=('u', i))
            p.I('s_barrier')
            if i >= 1 and i - 1 + NS < len(units): issue(i - 1 + NS)
            sg = 2 * ((c & 3) ^ key) + (c >> 2)
            for tt in range(2):
                for jp in range(4):
                    a = VA_TQ if jp < 2 else VA_TQ2
                    p.I(f'ds_read_b64_tr_b16 {dest((m, sg, tt), jp)}, v{a} offset:{(jp&1)*36864 + (i%NS)*4096 + tt*32}')
            p.wait(lg='all')
        if key < 3:
            p.I(f's_branch {lab}_wdone')
            p.L(f'{lab}_wv{key+1}')
    p.L(f'{lab}_wdone')
    p.I('s_barrier')
    for idx in range(12):
        for hh in range(2):
            p.I(f'ds_write_b128 v{A_WL}, {vr(PARK+8*idx+4*hh,4)} offset:{idx*2048 + hh*1024}')
        if idx % 4 == 3: p.wait(lg='all')

def stamp(p, cfg, i):
    if cfg.get('stamps') == 2:
        p.I(f'''
        s_memtime s[{S_ST+18}:{S_ST+19}]
        s_waitcnt lgkmcnt(0)
        s_sub_u32 s{S_ST+19}, s{S_ST+18}, s{S_ST+15}
        s_add_u32 s{S_ST+i}, s{S_ST+i}, s{S_ST+19}
        s_mov_b32 s{S_ST+15}, s{S_ST+18}
        ''')
        p.lg = []

def chain_bases(RO):
    o = [f's_add_u32 s{S_T0}, s{S_PTOG}, {PR + RO}'] + add64(S_SRD, S_WS, f's{S_T0}')
    o += [f's_add_u32 s{S_T0}, s{S_OPP}, s{S_PTOG}'] + add64(S_PP, S_WS, f's{S_T0}')
    o += [f's_add_u32 s{S_T0}, s{S_MTOG}, {MR + RO}'] + add64(S_MS, S_WS, f's{S_T0}')
    o += [f's_xor_b32 s{S_T0}, s{S_MTOG}, 0x2000', f's_add_u32 s{S_T0}, s{S_T0}, {MR + RO}'] + add64(S_MRS, S_WS, f's{S_T0}')
    o += [f's_add_u32 s{S_T0}, s{S_OMP}, s{S_MTOG}'] + add64(S_MP, S_WS, f's{S_T0}')
    return o

DPP = 'row_mask:0xf bank_mask:0xf'

def chain(p, cfg, st, lab):
    RO = SAFE_OFF if st else 0
    NSTEP = cfg.get('nstep', 64)
    depth1, depth2 = cfg.get('depth1', 2), cfg.get('depth2', 2)
    def frag(key):
        kind, idx = HOME[key]
        if kind == 'l':
            p.wait(lg=key); return vr(sbslot(key), 8)
        return (ar if kind == 'a' else vr)(idx, 8)
    def smf(acc, a, key, *shadow):
        b = frag(key)
        p.I(f'v_smfmac_f32_16x16x64_bf16 {vr(acc,4)}, {vr(a,4)}, {b}, v{C_IDX}')
        for x in shadow:
            if callable(x): x()
            else: p.I(x)
    def wl(key, hh):
        return lambda: p.I(f'ds_read_b128 {vr(sbslot(key)+4*hh,4)}, v{A_WL} offset:{HOME[key][1]*2048 + hh*1024}', tag=key)
    def kvld(i):
        if cfg.get('nokv'): return lambda: p.I('s_nop 0')
        return lambda: p.I(f'global_load_dwordx4 {ar(ALAND+4*i,4)}, v{A_L16}, s[{S_KV}:{S_KV+1}] offset:{1024*i} {cfg.get("kvm","sc1")}', tag='kv')
    kv_adv = add64(S_KV, S_KV, 32 * 16384)

    def init():
        p.I(f's_mov_b32 s{S_KEY}, s{S_W}')
        chain_consts(p, RO)
        p.I(f'''
        v_and_b32 v63, 3, v0
        v_lshlrev_b32 v63, 7, v63
        v_and_b32 v64, 4, v0
        v_lshl_add_u32 v{A_FL}, v64, 12, v63
        s_lshl_b32 s{S_T0}, s{S_H}, 9
        s_add_u32 s{S_T0}, s{S_T0}, {FL}
        s_add_u32 s{S_FLB}, s{S_WS}, s{S_T0}
        s_addc_u32 s{S_FLB+1}, s{S_WS+1}, 0
        s_lshl_b32 s{S_T0}, s{S_W}, 7
        s_add_u32 s{S_T0}, s{S_T0}, {F_C}
        s_add_u32 s{S_FLC}, s{S_FLB}, s{S_T0}
        s_addc_u32 s{S_FLC+1}, s{S_FLB+1}, 0
        v_mov_b32 v64, 0
        s_mov_b64 exec, 1
        global_store_dword v{A_L16}, v64, s[{S_FLC}:{S_FLC+1}] sc1
        s_mov_b64 exec, -1
        s_mov_b32 s{S_PTOG}, 0
        s_mov_b32 s{S_MTOG}, 0
        ''')
        p.I('\n'.join(chain_bases(RO)))
        p.I(f'''
        global_store_dwordx4 v{A_L16}, {vr(C_SENT,4)}, s[{S_PP}:{S_PP+1}] {st}
        global_store_dwordx4 v{A_L16}, {vr(C_SENT,4)}, s[{S_PP}:{S_PP+1}] offset:1024 {st}
        s_add_u32 s{S_PPO}, s{S_PP}, 0x40000
        s_addc_u32 s{S_PPO+1}, s{S_PP+1}, 0
        global_store_dwordx4 v{A_L16}, {vr(C_SENT,4)}, s[{S_PPO}:{S_PPO+1}] {st}
        global_store_dwordx4 v{A_L16}, {vr(C_SENT,4)}, s[{S_PPO}:{S_PPO+1}] offset:1024 {st}
        global_store_dword v{A_MST}, v{C_SENT}, s[{S_MRS}:{S_MRS+1}] {st}
        global_store_dword v{A_MST}, v{C_SENT}, s[{S_MS}:{S_MS+1}] {st}
        ''')
        p.I(f'global_load_dword v{V_FL}, v70, s[{S_MEM0}:{S_MEM0+1}]', tag='m0')
    chain_weights_setup(p, init)
    arrive(p, lab, (1, 2), keep=24)
    chain_weights_run(p, cfg, lab, lambda: None)
    p.I(f'global_store_dword v{A_MST}, v{V_FL}, s[{S_MS}:{S_MS+1}] {st}')
    p.I(f'v_mov_b32 v1, 1\ns_mov_b64 exec, 1\nglobal_store_dword v{A_L16}, v1, s[{S_FLC}:{S_FLC+1}] sc1\ns_mov_b64 exec, -1')
    p.I('s_waitcnt vmcnt(0) lgkmcnt(0)')
    wait_all(p, lab, (1, 2))
    nofl = cfg.get('noflags')
    def fl_ld(): p.I(f'global_load_dword v{V_FL}, v{A_FL}, s[{S_FLB}:{S_FLB+1}] sc1', tag='kv')
    def fl_spin(name, back):
        p.L(name)
        fl_ld()
        p.I(f'''
        s_waitcnt vmcnt(0)
        v_cmp_ge_u32 vcc, s{S_T1}, v{V_FL}
        s_cbranch_vccz {back}
        s_sleep 1
        s_sub_u32 s{S_SPIN}, s{S_SPIN}, 1
        s_cbranch_scc0 {name}
        s_branch L_end
        ''')
    p.I(f's_mov_b32 s{S_STEP}, 0\ns_mov_b32 s{S_T1}, 1')
    if not nofl:
        fl_spin('L_ch_fl0', 'L_ch_fl0ok')
        p.L('L_ch_fl0ok')
    p.reset_cnt()
    for i in range(4): kvld(i)()
    p.I('\n'.join(kv_adv))
    if cfg.get('stamps'):
        p.I('s_memrealtime s[92:93]\ns_waitcnt lgkmcnt(0)\ns_mov_b32 s33, s94\ns_mov_b32 s64, s92')
    p.I(f's_mov_b32 s{S_SRD+2}, 0x40000\ns_mov_b32 s{S_SRD+3}, 0x20000')
    pre_keys = [('k', 0, 0), ('k', 0, 1), ('k', 1, 0), ('k', 1, 1)]
    kvmove = [f'v_accvgpr_read_b32 v{KX+i}, a{ALAND+i}' for i in list(range(8)) + list(range(12, 16))]
    kvlate = [f'v_accvgpr_read_b32 v{KX+i}, a{ALAND+i}' for i in range(8, 12)]
    zacc = [f'v_mov_b64 {vr(Q0+2*i,2)}, 0' for i in range(12)]
    marks = cfg.get('marks', [])
    def mk(name):
        if name in marks:
            i = marks.index(name); p.I(f's_memtime s[{72+2*i}:{73+2*i}]')
    def MK(name): return lambda: mk(name)
    def emit(xs):
        for x in xs:
            if callable(x): x()
            else: p.I(x)
    def m_ld(i):
        p.I(f'global_load_dwordx4 {vr(MF+4*i,4)}, v{A_L16}, s[{S_MP}:{S_MP+1}] offset:{-2048+4096*i} sc1')
    def nops(n):
        while n > 0:
            q = min(n, 16); p.I(f's_nop {q-1}'); n -= q
    pubst = f'global_store_dwordx4 v{A_L16}, {vr(VX,4)}, s[{S_PUB}:{S_PUB+1}] sc1'
    p.reset_cnt()
    for x in zacc: p.I(x)
    for kk in pre_keys: wl(kk, 0)(); wl(kk, 1)()
    m_ld(0); m_ld(1)
    p.I('s_waitcnt vmcnt(0) lgkmcnt(0)')
    emit(kvmove)
    p.I(f'v_mov_b32 v{V_FL}, 1')
    p.I('s_branch L_ch_p2')
    p.L('L_ch_hop2')
    if cfg.get('stamps'):
        p.I(f's_cmp_eq_u32 s{S_STEP}, 3\ns_cbranch_scc0 L_ch_stskip')
        p.I(f's_mov_b32 s100, 0\ns_mov_b32 s101, 0')
        p.I(f's_memrealtime s[92:93]\ns_memtime s[94:95]\ns_waitcnt lgkmcnt(0)')
        p.L('L_ch_stskip')
    p.I(f's_add_u32 s{S_T1}, s{S_STEP}, 1\ns_min_u32 s{S_T1}, s{S_T1}, 63')
    if not nofl: p.I(f'v_cmp_ge_u32 vcc, s{S_T1}, v{V_FL}')
    emit(kvmove)
    if not nofl:
        p.I('s_cbranch_vccnz L_ch_fl')
        p.L('L_ch_flok')
    d2e, d2l = cfg.get('d2e', 56), cfg.get('d2l', 32)
    if d2e != d2l:
        p.I(f's_cmp_eq_u32 s{S_LATE}, 1\ns_cbranch_scc1 L_ch_h2l')
        nops(d2e - d2l)
        p.L('L_ch_h2l')
    nops(d2l)
    mk('h2a')
    m_ld(0)
    p.I(f'v_mov_b32 v{V_FL}, s{S_STEP}')
    nops(cfg.get('g2', 15))
    m_ld(1)
    if cfg.get('tl'):
        p.I(f'''
        s_memrealtime s[90:91]
        s_lshl_b32 s{S_T0}, s{S_H}, 2
        s_add_u32 s{S_T0}, s{S_T0}, s{S_W}
        s_lshl_b32 s{S_T0}, s{S_T0}, 6
        s_add_u32 s{S_T0}, s{S_T0}, s{S_STEP}
        s_lshl_b32 s{S_T0}, s{S_T0}, 2
        s_add_u32 s{S_T0}, s{S_T0}, {TS + 65536}
        v_mov_b32 v30, s{S_T0}
        s_waitcnt lgkmcnt(0)
        v_mov_b32 v31, s90
        global_store_dword v30, v31, s[{S_WS}:{S_WS+1}]
        ''')
    p.I(f's_waitcnt vmcnt({1 if cfg.get("tl") else 0}) lgkmcnt(0)')
    p.L('L_ch_p2')
    p.reset_cnt()
    mk('qk0')
    Wr = lambda i: (lambda: p.I(f'ds_write_b128 v{A_STW}, {vr(MF+4*i,4)} offset:{L_STG+1024*i}', tag='stg'))
    Wr(0)()
    smf(Q0, MF, ('q', 0, 0), Wr(1), 'v_max3_u32 v28, v0, v1, v2')
    smf(Q1, MF, ('q', 0, 1), 'v_max3_u32 v29, v3, v4, v5')
    smf(K0, MF, ('k', 0, 0), 'v_max3_u32 v28, v28, v6, v7')
    smf(K1, MF, ('k', 0, 1), 'v_max_u32 v28, v28, v29')
    smf(Q0, MF + 4, ('q', 1, 0), f'v_cmp_le_u32 vcc, s{S_THR}, v28')
    smf(Q1, MF + 4, ('q', 1, 1))
    smf(K0, MF + 4, ('k', 1, 0), 's_cbranch_vccnz L_ch_p2fail')
    p.wait(lg='all')
    mk('b1a')
    p.I('s_barrier')
    mk('b1b')
    areg = {1: A_ST1, 2: A_ST2, 3: A_ST3}
    def mf(sg):
        return lambda: p.I(f'ds_read_b128 {vr(MF+4*sg,4)}, v{areg[sg>>1]} offset:{L_STG+(sg&1)*1024}', tag=('mf', sg))
    sal = [f's_xor_b32 s{S_MTOG}, s{S_MTOG}, 0x2000'] + chain_bases(RO)
    def S(n):
        o = sal[:n]; del sal[:n]; return o
    mf(2)(); mf(3)()
    smf(K1, MF + 4, ('k', 1, 1), mf(4))
    smf(V0, MF, ('v', 0, 0), mf(5))
    smf(V1, MF, ('v', 0, 1), mf(6))
    smf(V0, MF + 4, ('v', 1, 0), mf(7))
    if cfg.get('v4', 1): smf(V1, MF + 4, ('v', 1, 1), wl(('k', 4, 0), 0))
    else: wl(('k', 4, 0), 0)()
    p.wait(lg=('mf', 2))
    smf(Q0, MF + 8, ('q', 2, 0), wl(('k', 4, 0), 1), MK('s2'))
    smf(Q1, MF + 8, ('q', 2, 1), wl(('k', 4, 1), 0), *([] if cfg.get('nopub') else [pubst]))
    smf(K0, MF + 8, ('k', 2, 0), wl(('k', 4, 1), 1), *S(1))
    smf(K1, MF + 8, ('k', 2, 1), wl(('k', 5, 0), 0), kvld(0))
    p.wait(lg=('mf', 3))
    smf(Q0, MF + 12, ('q', 3, 0), wl(('k', 5, 0), 1), *S(1), kvlate[0])
    smf(Q1, MF + 12, ('q', 3, 1), wl(('k', 5, 1), 0), *S(1), kvlate[1])
    smf(K0, MF + 12, ('k', 3, 0), wl(('k', 5, 1), 1), *S(1), kvlate[2])
    smf(K1, MF + 12, ('k', 3, 1), kvld(1), *S(1), kvlate[3])
    p.wait(lg=('mf', 7))
    smf(Q0, MF + 16, ('q', 4, 0), *([] if cfg.get('nofst') else ['s_mov_b64 exec, 1', f'global_store_dword v{A_L16}, v{V_FL}, s[{S_FLC}:{S_FLC+1}] sc1', 's_mov_b64 exec, -1']))
    smf(Q1, MF + 16, ('q', 4, 1), MK('s4'), *S(2))
    smf(K0, MF + 16, ('k', 4, 0), wl(('v', 2, 0), 0), *S(1))
    smf(K1, MF + 16, ('k', 4, 1), wl(('v', 2, 0), 1), kvld(2))
    smf(Q0, MF + 20, ('q', 5, 0), wl(('v', 2, 1), 0), *S(2))
    smf(Q1, MF + 20, ('q', 5, 1), wl(('v', 2, 1), 1), *([] if nofl else [fl_ld]))
    smf(K0, MF + 20, ('k', 5, 0), wl(('v', 6, 0), 0), *S(1))
    smf(K1, MF + 20, ('k', 5, 1), wl(('v', 6, 0), 1), kvld(3))
    smf(Q0, MF + 24, ('q', 6, 0), wl(('v', 6, 1), 0), MK('s6'), *S(2))
    smf(K0, MF + 24, ('k', 6, 0), wl(('v', 6, 1), 1), *S(2))
    smf(Q0, MF + 28, ('q', 7, 0), f's_cmp_lt_u32 s{S_STEP}, {NSTEP-2}', f's_cselect_b32 s{S_T1}, {0 if cfg.get("kvsame") else 32*16384}, 0')
    smf(K0, MF + 28, ('k', 7, 0), *add64(S_KV, S_KV, f's{S_T1}'))
    smf(Q1, MF + 24, ('q', 6, 1), f's_mov_b64 vcc, s[{S_MQ1}:{S_MQ1+1}]', f'v_add_f32 v{Q0}, v{Q0}, v{Q0+2}')
    smf(K1, MF + 24, ('k', 6, 1), f'v_add_f32 v{Q0+1}, v{Q0+1}, v{Q0+3}', f'v_add_f32 v{K0}, v{K0}, v{K0+2}')
    smf(Q1, MF + 28, ('q', 7, 1), f'v_cvt_pk_bf16_f32 v{Q0+2}, v{Q0}, v{Q0+1}', f'v_add_f32 v{K0+1}, v{K0+1}, v{K0+3}')
    smf(K1, MF + 28, ('k', 7, 1), MK('qk1'), f'v_cvt_pk_bf16_f32 v{Q0+3}, v{K0}, v{K0+1}')
    vq = [(sg, tt) for sg in (2, 6, 3, 4, 5, 7) for tt in range(2)]
    if not cfg.get('v4', 1): vq.append((1, 1))
    def V(*shadow):
        sg, tt = vq.pop(0)
        smf(V0 + 4 * tt, MF + 4 * sg, ('v', sg, tt), *shadow)
    rst = lambda i: f'global_store_dwordx4 v{A_L16}, {vr(C_SENT,4)}, s[{S_PPO}:{S_PPO+1}] offset:{1024*i} {st}'
    p.I(f"""
    v_add_f32 v{Q1}, v{Q1}, v{Q1+2}
    v_add_f32 v{Q1+1}, v{Q1+1}, v{Q1+3}
    v_mfma_f32_16x16x16_bf16 {vr(K0,4)}, {vr(Q0+2,2)}, {vr(C_SELT,2)}, 0
    v_cvt_pk_bf16_f32 v{Q1+2}, v{Q1}, v{Q1+1}
    v_add_f32 v{K1}, v{K1}, v{K1+2}
    v_add_f32 v{K1+1}, v{K1+1}, v{K1+3}
    v_cvt_pk_bf16_f32 v{Q1+3}, v{K1}, v{K1+1}
    v_mfma_f32_16x16x16_bf16 {vr(K1,4)}, {vr(Q1+2,2)}, {vr(C_SELT,2)}, 0
    v_cvt_pk_bf16_f32 v{Q0}, v{K0}, v{K0+1}
    v_cvt_pk_bf16_f32 v{Q0+1}, v{K0+2}, v{K0+3}
    {rst(0)}
    v_cvt_pk_bf16_f32 v{Q0+2}, v{K1}, v{K1+1}
    v_cvt_pk_bf16_f32 v{Q0+3}, v{K1+2}, v{K1+3}
    v_mfma_f32_16x16x32_bf16 {vr(K0,4)}, {vr(KX,4)}, {vr(Q0,4)}, 0
    """)
    mk('sc')
    p.I(f"""
    v_mfma_f32_16x16x32_bf16 {vr(K1,4)}, {vr(KX+4,4)}, {vr(Q0,4)}, 0
    v_mfma_f32_16x16x32_bf16 {vr(Q1,4)}, {vr(Q0,4)}, {vr(Q0,4)}, 0
    {rst(1)}
    """)
    for r in range(4):
        p.I(f'v_cndmask_b32_dpp v{K0+r}, v{K1+r}, v{K0+r}, vcc quad_perm:[2,3,2,3] {DPP}')
    p.I(f'ds_write_b128 v{A_STW}, {vr(K0,4)} offset:{L_XCH}', tag='sx')
    p.I(f'v_cndmask_b32_dpp v{Q1}, v{Q1+1}, v{Q1}, vcc quad_perm:[2,3,2,3] {DPP}')
    p.I(f'ds_write_b32 v{A_MW}, v{Q1} offset:{L_XCH+1024}', tag='sx')
    mk('sw')
    sal.extend([f's_cmp_eq_u32 s{S_STEP}, 0', f's_cselect_b32 s{S_T1}, 0, {32*4096}'] + add64(S_PUB, S_PUB, f's{S_T1}'))
    for _ in range(cfg.get('nva', 6)): V(*S(2))
    assert not sal
    p.wait(lg='all')
    mk('b2a')
    p.I('s_barrier')
    mk('b2b')
    p.I(f'ds_read_b128 {vr(K1,4)}, v{A_ST1} offset:{L_XCH}', tag='s1')
    p.I(f'ds_read_b128 {vr(KX,4)}, v{A_ST2} offset:{L_XCH}', tag='s2')
    V(lambda: p.I(f'ds_read_b128 {vr(KX+4,4)}, v{A_ST3} offset:{L_XCH}', tag='s3'),
      lambda: p.I(f'ds_read_b128 {vr(Q1,4)}, v{A_L16} offset:{L_XCH+1024}', tag='sm'))
    ol = [wl(('o', t, 0), hh) for t in range(4) for hh in range(2)]
    while vq: V(ol.pop(0))
    p.wait(lg='sm')
    mk('sm0')
    T0, T1 = Q1 + 1, Q1 + 2
    def OL():
        if ol: ol.pop(0)()
    p.I(f"""
    v_add_f32 v{K0}, v{K0}, v{K1}
    v_add_f32 v{K0+1}, v{K0+1}, v{K1+1}
    v_add_f32 v{K0+2}, v{K0+2}, v{K1+2}
    v_add_f32 v{K0+3}, v{K0+3}, v{K1+3}
    v_pk_add_f32 {vr(KX,2)}, {vr(KX,2)}, {vr(KX+4,2)}
    v_pk_add_f32 {vr(KX+2,2)}, {vr(KX+2,2)}, {vr(KX+6,2)}
    v_pk_add_f32 {vr(Q1,2)}, {vr(Q1,2)}, {vr(Q1+2,2)}
    v_pk_add_f32 {vr(K0,2)}, {vr(K0,2)}, {vr(KX,2)}
    v_pk_add_f32 {vr(K0+2,2)}, {vr(K0+2,2)}, {vr(KX+2,2)}
    v_add_f32 v{Q1}, v{Q1}, v{Q1+1}
    v_max3_f32 v{T0}, v{K0}, v{K0+1}, v{K0+2}
    v_max3_f32 v{T0}, v{T0}, v{K0+3}, v{Q1}
    v_pk_add_f32 {vr(V0,2)}, {vr(V0,2)}, {vr(V0+2,2)}
    v_pk_add_f32 {vr(V1,2)}, {vr(V1,2)}, {vr(V1+2,2)}
    v_max_f32_dpp v{T0}, v{T0}, v{T0} quad_perm:[2,3,0,1] {DPP}
    v_mov_b32 v{T1}, v{T0}
    v_cvt_pk_bf16_f32 v{V0+2}, v{V0}, v{V0+1}
    v_cvt_pk_bf16_f32 v{V0+3}, v{V1}, v{V1+1}
    v_permlane16_swap_b32 v{T0}, v{T1}
    v_max_f32 v{T0}, v{T0}, v{T1}
    v_mov_b32 v{T1}, v{T0}
    v_mov_b32 v{KX+5}, 0
    v_mov_b32 v{KX+6}, 0
    v_permlane32_swap_b32 v{T0}, v{T1}
    v_max_f32 v{T0}, v{T0}, v{T1}
    """)
    mk('mx')
    p.I(f"""
    v_mul_f32 v{T1}, s{S_SC}, v{T0}
    v_pk_fma_f32 {vr(K0,2)}, {vr(K0,2)}, s[{S_SC}:{S_SC+1}], {vr(T1,2)} op_sel_hi:[1,1,0] neg_lo:[0,0,1] neg_hi:[0,0,1]
    v_pk_fma_f32 {vr(K0+2,2)}, {vr(K0+2,2)}, s[{S_SC}:{S_SC+1}], {vr(T1,2)} op_sel_hi:[1,1,0] neg_lo:[0,0,1] neg_hi:[0,0,1]
    v_fma_f32 v{Q1}, v{Q1}, s{S_SC}, -v{T1}
    v_exp_f32 v{K0}, v{K0}
    v_exp_f32 v{K0+1}, v{K0+1}
    v_exp_f32 v{K0+2}, v{K0+2}
    v_cvt_pk_bf16_f32 v{KX}, v{K0}, v{K0+1}
    v_exp_f32 v{K0+3}, v{K0+3}
    v_exp_f32 v{Q1}, v{Q1}
    v_cvt_pk_bf16_f32 v{KX+1}, v{K0+2}, v{K0+3}
    v_mov_b32_dpp v{KX+2}, v{KX} quad_perm:[2,3,0,1] {DPP}
    v_mov_b32_dpp v{T0}, v{Q1} quad_perm:[2,3,0,1] {DPP}
    v_mov_b32_dpp v{KX+3}, v{KX+1} quad_perm:[2,3,0,1] {DPP}
    v_cvt_pk_bf16_f32 v{KX+4}, v{Q1}, v{T0}
    v_cvt_pk_bf16_f32 v{KX+7}, v{Q1}, v{T0}
    v_mfma_f32_16x16x32_bf16 {vr(K1,4)}, {vr(VX,4)}, {vr(KX,4)}, 0
    """)
    mk('pv'); OL()
    p.I(f"""
    v_add_f32 v{K0}, v{K0}, v{K0+1}
    v_add_f32 v{K0+2}, v{K0+2}, v{K0+3}
    v_mfma_f32_16x16x32_bf16 {vr(V1,4)}, {vr(VX+4,4)}, {vr(KX,4)}, 0
    """)
    OL()
    p.I(f"""
    v_add_f32 v{Q1}, v{Q1}, v{K0}
    v_add_f32 v{Q1}, v{Q1}, v{K0+2}
    v_mfma_f32_16x16x16_bf16 {vr(K1,4)}, {vr(V0+2,2)}, {vr(KX+4,2)}, {vr(K1,4)}
    s_not_b64 vcc, vcc
    v_add_f32_dpp v{Q1}, v{Q1}, v{Q1} quad_perm:[2,3,0,1] {DPP}
    v_mov_b32 v{T0}, v{Q1}
    v_mfma_f32_16x16x16_bf16 {vr(V1,4)}, {vr(V0+2,2)}, {vr(KX+6,2)}, {vr(V1,4)}
    s_cmp_ge_u32 s{S_STEP}, {NSTEP-1}
    v_permlane16_swap_b32 v{Q1}, v{T0}
    v_add_f32 v{Q1}, v{Q1}, v{T0}
    v_mov_b32 v{T0}, v{Q1}
    v_cndmask_b32 v{VX+0}, v{V0+2}, v{Q0+0}, vcc
    v_cndmask_b32 v{VX+1}, v{V0+3}, v{Q0+1}, vcc
    v_permlane32_swap_b32 v{Q1}, v{T0}
    v_add_f32 v{Q1}, v{Q1}, v{T0}
    v_rcp_f32 v{Q1}, v{Q1}
    v_cndmask_b32_dpp v{VX+2}, v{V0+2}, v{Q0+2}, vcc quad_perm:[2,3,0,1] {DPP}
    v_pk_mul_f32 {vr(K1,2)}, {vr(K1,2)}, {vr(Q1,2)} op_sel_hi:[1,0]
    v_pk_mul_f32 {vr(V1,2)}, {vr(V1,2)}, {vr(Q1,2)} op_sel_hi:[1,0]
    v_pk_mul_f32 {vr(K1+2,2)}, {vr(K1+2,2)}, {vr(Q1,2)} op_sel_hi:[1,0]
    v_pk_mul_f32 {vr(V1+2,2)}, {vr(V1+2,2)}, {vr(Q1,2)} op_sel_hi:[1,0]
    v_cvt_pk_bf16_f32 v{K0}, v{K1}, v{V1}
    v_cvt_pk_bf16_f32 v{K0+1}, v{K1+1}, v{V1+1}
    v_cvt_pk_bf16_f32 v{K0+2}, v{K1+2}, v{V1+2}
    v_cvt_pk_bf16_f32 v{K0+3}, v{K1+3}, v{V1+3}
    """)
    p.I(f'ds_write_b128 v{A_OW}, {vr(K0,4)}', tag='ow')
    mk('ow')
    while ol: OL()
    p.I(f"""
    v_cndmask_b32_dpp v{VX+3}, v{V0+3}, v{Q0+3}, vcc quad_perm:[2,3,0,1] {DPP}
    s_cbranch_scc1 L_ch_done
    """)
    zmf = [f'v_mov_b64 {vr(MF+2*i,2)}, 0' for i in range(16)]
    nz = cfg.get('nz', 6)
    for x in zmf[:nz]: p.I(x)
    p.wait(lg='ow')
    mk('b3a')
    p.I('s_barrier')
    mk('b3b')
    if cfg.get('vmw'):
        p.I(f'''
        s_memtime s[72:73]
        s_waitcnt lgkmcnt(0)
        s_waitcnt vmcnt(0)
        s_memtime s[74:75]
        s_waitcnt lgkmcnt(0)
        s_sub_u32 s74, s74, s72
        s_cmp_lt_u32 s{S_STEP}, 3
        s_cselect_b32 s76, 0, s76
        s_cselect_b32 s78, 0, s78
        s_cselect_b32 s80, 0, s80
        s_add_u32 s76, s76, s74
        s_max_u32 s78, s78, s74
        s_cmp_gt_u32 s74, 300
        s_addc_u32 s80, s80, 0
        ''')
    p.I(f'ds_read_b128 {vr(Q1,4)}, v{A_OR}', tag=('or', 0))
    p.I(f'ds_read_b128 {vr(K1,4)}, v{A_OR} offset:2048', tag=('or', 1))
    for x in zmf[nz:]: p.I(x)
    OA = [Q1, K1]
    def post(t):
        a = MF + 4 * t
        return [f'v_add_f32 v{a}, v{a}, v{a+2}', f'v_add_f32 v{a+1}, v{a+1}, v{a+3}', f'v_cvt_pk_bf16_f32 v{a}, v{a}, v{a+1}']
    def pst(t): return f'buffer_store_dword v{MF+4*t}, v{A_PST}, s[{S_SRD}:{S_SRD+3}], s{S_TO+t} offen {st}'
    def W(t, cc, *shadow): smf(MF + 4 * t, OA[cc], ('o', t, cc), *shadow)
    p.wait(lg=('or', 0))
    W(0, 0, MK('w0'), wl(('o', 6, 1), 0))
    p.wait(lg=('or', 1))
    W(0, 1, wl(('o', 6, 1), 1))
    W(1, 0, wl(('o', 7, 1), 0), f's_mov_b64 s[{S_PPO}:{S_PPO+1}], s[{S_PP}:{S_PP+1}]', f's_xor_b32 s{S_PTOG}, s{S_PTOG}, 0x40000')
    W(1, 1, wl(('o', 7, 1), 1), f's_add_u32 s{S_STEP}, s{S_STEP}, 1', post(0)[0])
    for t in range(2, 8):
        W(t, 0, post(t-2)[1], post(t-2)[2])
        W(t, 1, pst(t-2), *([f's_cmp_eq_u32 s{S_LATE}, 1', MK('w7')] if t == 7 else []), post(t-1)[0])
    a = MF + 28
    p.I(post(6)[1]); p.I(post(6)[2]); p.I(pst(6))
    p.I(f'v_pk_add_f32 {vr(a,2)}, {vr(a,2)}, {vr(a+2,2)}\nv_cvt_pk_bf16_f32 v{a}, v{a}, v{a+1}')
    p.I(pst(7))
    mk('we')
    def p_poll():
        p.I(f'global_load_dwordx4 v[8:11], v{A_L16}, s[{S_PP}:{S_PP+1}] sc1')
        p.I(f'global_load_dwordx4 v[12:15], v{A_L16}, s[{S_PP}:{S_PP+1}] offset:1024 sc1')
    fl = []
    for kk in pre_keys: fl += [wl(kk, 0), wl(kk, 1)]
    fl += zacc
    p.I('s_cbranch_scc1 L_ch_h1l')
    nops(cfg.get('d1e', 64))
    p_poll()
    emit(fl)
    p.I('s_branch L_ch_h1j')
    p.L('L_ch_h1l')
    n1 = cfg.get('n1l', 12)
    emit(fl[:n1]); nops(cfg.get('d1l', 64))
    p_poll()
    emit(fl[n1:])
    p.L('L_ch_h1j')
    def attempt():
        p.I(f"""
        s_waitcnt vmcnt(1)
        v_mfma_f32_16x16x32_bf16 v[16:19], {vr(C_SELR,4)}, v[8:11], 0
        s_waitcnt vmcnt(0)
        v_mfma_f32_16x16x32_bf16 v[16:19], {vr(C_SELR,4)}, v[12:15], v[16:19]
        """)
        mk('h1r')
        p.I(f"""
        v_add_f32_dpp v16, v16, v16 row_ror:4 {DPP}
        v_add_f32_dpp v17, v17, v17 row_ror:4 {DPP}
        v_cmp_u_f32 vcc, v18, v18
        v_add_f32_dpp v16, v16, v16 row_ror:8 {DPP}
        v_add_f32_dpp v17, v17, v17 row_ror:8 {DPP}
        v_cvt_pk_bf16_f32 v16, v16, v17
        global_store_dword v{A_MST}, v16, s[{S_MS}:{S_MS+1}] {st}
        """)
    attempt()
    p.I('s_cbranch_vccnz L_ch_p1fail')
    p.L('L_ch_p1ok')
    mk('ms')
    p.I(f'global_store_dword v{A_MST}, v{C_SENT}, s[{S_MRS}:{S_MRS+1}] {st}')
    p.I('s_branch L_ch_hop2')
    p.L('L_ch_p1fail')
    p_poll()
    if cfg.get('stamps'): p.I('s_add_u32 s100, s100, 1')
    attempt()
    p.I(f"""
    s_cbranch_vccz L_ch_p1ok
    s_sub_u32 s{S_SPIN}, s{S_SPIN}, 1
    s_cbranch_scc0 L_ch_p1fail
    s_branch L_end
L_ch_p2fail:
    s_waitcnt lgkmcnt(0)
    """)
    m_ld(0); m_ld(1)
    p.I('s_nop 4')
    for i in range(8): p.I(f'v_mov_b64 {vr(Q0+2*i,2)}, 0')
    if cfg.get('stamps'): p.I('s_add_u32 s101, s101, 1')
    p.I(f"""
    s_waitcnt vmcnt(0)
    s_sub_u32 s{S_SPIN}, s{S_SPIN}, 1
    s_cbranch_scc0 L_ch_p2
    s_branch L_end
    """)
    if not nofl: fl_spin('L_ch_fl', 'L_ch_flok')
    p.L('L_ch_done')
    p.I(pubst)
    p.I(f'''
    v_mov_b32 v29, 65
    s_waitcnt vmcnt(0)
    s_mov_b64 exec, 1
    global_store_dword v{A_L16}, v29, s[{S_FLC}:{S_FLC+1}] sc1
    s_mov_b64 exec, -1
    ''')
    if cfg.get('stamps'):
        p.I(f"""
        s_memtime s[60:61]
        s_memrealtime s[58:59]
        s_waitcnt lgkmcnt(0)
        s_sub_u32 s60, s60, s94
        v_mov_b32 v0, s60
        v_mov_b32 v1, s58
        v_mov_b32 v2, s92
        v_mov_b32 v3, s33
        v_mov_b32 v4, s64
        v_mov_b32 v5, s100
        v_mov_b32 v6, s101
        v_mov_b32 v7, 0
        s_lshl_b32 s{S_T0}, s{S_H}, 2
        s_add_u32 s{S_T0}, s{S_T0}, s{S_W}
        s_lshl_b32 s{S_T0}, s{S_T0}, 7
        s_add_u32 s{S_T0}, s{S_T0}, {TS}
        v_mov_b32 v30, s{S_T0}
        """)
        for i in range(10): p.I(f'v_mov_b32 v{8+i}, s{72+2*i}')
        p.I('s_mov_b64 exec, 1')
        for q in range(5): p.I(f'global_store_dwordx4 v30, {vr(4*q,4)}, s[{S_WS}:{S_WS+1}] offset:{16*q}')
    p.I('s_branch L_end')

def relabel(p, start, old, new):
    for i in range(start, len(p.items)):
        it = p.items[i]
        if isinstance(it, Inst):
            if it.kind == 'branch' and it.target.startswith(old):
                p.items[i] = Inst(it.text.replace(old, new))
        elif it[0] == 'label' and it[1].startswith(old):
            p.items[i] = ('label', it[1].replace(old, new))

def build(cfg):
    import workers as Wk
    p = Prog()
    only = cfg.get('only')
    NARR[0] = 64 if only == 'chain' else 256
    FORCE[0] = cfg.get('force_safe', 0)
    Wk.TL[0] = cfg.get('tl', 0)
    Wk.CFG.clear(); Wk.CFG.update(cfg)
    common_prologue(p, cfg)
    p.I(f"""
L_role:
    s_cmp_ge_u32 s{S_H}, 32
    s_cbranch_scc1 L_norole
    s_cmp_ge_u32 s{S_XCC}, 2
    s_cbranch_scc1 {'L_end' if only == 'chain' else 'L_worker'}
    {'s_branch L_norole' if only == 'kv' else ''}
    s_mov_b32 s{S_M}, s{S_XCC}
    """)
    select_model(p)
    p.I(f's_cmp_eq_u32 s{S_MODE}, 1\ns_cbranch_scc1 L_chain_safe')
    chain(p, cfg, '', 'L_ch')
    p.L('L_worker')
    p.I(f"""
    s_cmp_ge_u32 s{S_XCC}, 5
    s_cselect_b32 s{S_M}, 1, 0
    s_cselect_b32 s{S_T1}, 5, 2
    s_sub_u32 s{S_XCC}, s{S_XCC}, s{S_T1}
    """)
    if cfg.get('mix', 1):
        p.I(f"""
        s_lshl_b32 s{S_T0}, s{S_XCC}, 5
        s_add_u32 s{S_T0}, s{S_T0}, s{S_H}
        s_mul_i32 s{S_H}, s{S_T0}, 0x5556
        s_lshr_b32 s{S_H}, s{S_H}, 16
        s_mul_i32 s{S_T1}, s{S_H}, 3
        s_sub_u32 s{S_XCC}, s{S_T0}, s{S_T1}
        """)
    select_model(p)
    p.I(f"""
    s_cmp_eq_u32 s{S_XCC}, 1
    s_cbranch_scc1 L_vw
    s_cmp_eq_u32 s{S_XCC}, 2
    s_cbranch_scc1 {'L_norole' if only == 'kv' else 'L_qw'}
    """)
    p.reset_cnt(); Wk.kv_worker(p, cfg, 'k', 'L_k')
    p.I(f's_branch L_ow')
    p.L('L_vw')
    p.reset_cnt(); Wk.kv_worker(p, cfg, 'v', 'L_v')
    p.L('L_ow')
    if only == 'kv':
        Wk.ev_dump(p); p.I('s_branch L_end')
    p.reset_cnt(); Wk.o_worker(p, cfg, 'L_o')
    p.L('L_qw')
    p.reset_cnt(); Wk.q_worker(p, cfg, 'L_q')
    p.L('L_norole')
    arrive(p, 'L_n'); wait_all(p, 'L_n')
    p.I('s_branch L_end')
    p.L('L_safe')
    load_args(p)
    p.I(f"""
    s_mov_b32 s{S_MODE}, 1
    s_and_b32 s{S_XCC}, s2, 7
    s_lshr_b32 s{S_H}, s2, 3
    v_mbcnt_lo_u32_b32 v0, -1, 0
    v_mbcnt_hi_u32_b32 v0, -1, v0
    s_waitcnt vmcnt(0) lgkmcnt(0)
    s_barrier
    s_branch L_role
    """)
    p.L('L_chain_safe')
    n0 = len(p.items)
    p.reset_cnt(); chain(p, cfg, 'sc1', 'L_ch')
    relabel(p, n0, 'L_ch', 'L_cs')
    p.L('L_end')
    p.I('s_endpgm')
    n = p.fix_hazards(cfg.get('verbose', False))
    errs = p.check_branches()
    for e in errs: print(e)
    assert not errs
    head = f'''; @launch grid=(256,1,1) block=(256,1,1) lds=163840
.amdgcn_target "amdgcn-amd-amdhsa--gfx950"
.text
.globl {NAME}
.p2align 8
.type {NAME},@function
{NAME}:
'''
    tail = f'''.section .rodata,"a"
.p2align 6
.amdhsa_kernel {NAME}
  .amdhsa_next_free_vgpr 512
  .amdhsa_next_free_sgpr 102
  .amdhsa_accum_offset 256
  .amdhsa_group_segment_fixed_size 0
  .amdhsa_kernarg_size 136
  .amdhsa_user_sgpr_count 2
  .amdhsa_user_sgpr_kernarg_segment_ptr 1
  .amdhsa_system_sgpr_workgroup_id_x 1
  .amdhsa_float_denorm_mode_32 3
.end_amdhsa_kernel
'''
    return head + p.text() + tail

if __name__ == '__main__':
    cfg = eval(sys.argv[2]) if len(sys.argv) > 2 else {}
    open(sys.argv[1], 'w').write(build(cfg))
```

```python
from asmlib import *
import kern as K
MB = 1 << 20
S_W, S_H, S_M, S_WS, S_SRD, S_SPIN = K.S_W, K.S_H, K.S_M, K.S_WS, K.S_SRD, K.S_SPIN
T0, T1, T2, T3 = K.S_T0, K.S_T1, K.S_T2, K.S_T3
S_PL, S_PH = K.S_PL, K.S_PH
S_C4K = 32
S_KV, S_FLG, S_PUB, S_OF, S_FL2, S_FL3 = 40, 42, 44, 46, 48, 50
S_IT = 26
S_SC = 67
S_SRD2 = 52
RING, ACC, QF, MASK = 128, 160, 192, 224
V_L16, V_LHI, V_KA, V_VA, V_KM, V_VM, V_Z, V_T = 240, 241, 242, 243, 244, 245, 246, 248
add64 = K.add64

V_EV = 247
TL = [0]
CFG = {}
def ev(p, idx):
    if TL[0]:
        if isinstance(idx, tuple): p.I(f's_add_u32 m0, s{idx[0]}, {idx[1]}')
        else: p.I(f's_mov_b32 m0, {idx}')
        p.I(f's_memrealtime s[90:91]\ns_waitcnt lgkmcnt(0)\nv_writelane_b32 v{V_EV}, s90, m0')
        p.lg = []
def ev_dump(p):
    if TL[0]:
        p.I(f"""
        s_lshl_b32 s{T0}, s{K.S_XCC}, 5
        s_add_u32 s{T0}, s{T0}, s{S_H}
        s_lshl_b32 s{T0}, s{T0}, 2
        s_add_u32 s{T0}, s{T0}, s{S_W}
        s_lshl_b32 s{T0}, s{T0}, 8
        s_add_u32 s{T0}, s{T0}, {K.TS + 131072}
        v_lshrrev_b32 v1, 2, v{V_L16}
        v_add_u32 v1, s{T0}, v1
        global_store_dword v1, v{V_EV}, s[{S_WS}:{S_WS+1}]
        """)
def base_consts(p):
    if TL[0]:
        p.I(f'v_mov_b32 v{V_EV}, 0\ns_waitcnt lgkmcnt(0)\nv_writelane_b32 v{V_EV}, s94, 0')
        ev(p, 39)
    p.I(f'''
    v_lshlrev_b32 v{V_L16}, 4, v0
    v_add_u32 v{V_LHI}, 0x10000, v{V_L16}
    v_mov_b32 v{V_Z}, 0
    s_mov_b32 s{S_PL}, 0x05040100
    s_mov_b32 s{S_PH}, 0x07060302
    ''')
    for k in range(8): p.I(f's_mov_b32 s{S_C4K+k}, {4096*k}')
    p.I(f'''
    v_lshrrev_b32 v1, 5, v0
    v_lshlrev_b32 v1, 8, v1
    v_and_b32 v2, 8, v0
    v_lshl_add_u32 v2, v2, 7, v1
    v_and_b32 v3, 16, v0
    v_lshl_add_u32 v2, v3, 3, v2
    v_and_b32 v3, 7, v0
    v_lshl_add_u32 v{V_KA}, v3, 4, v2
    v_and_b32 v3, 16, v0
    v_lshl_add_u32 v2, v3, 6, v1
    v_and_b32 v3, 15, v0
    v_lshl_add_u32 v2, v3, 4, v2
    v_add_u32 v{V_VA}, 0x800, v2
    ''')

def xf_convert(p, half, R, SB):
    p.I(f'''
    s_add_u32 s{T0}, s{S_H}, {32*half}
    s_lshl_b32 s{T0}, s{T0}, 15
    v_and_b32 v1, 31, v0
    v_lshlrev_b32 v1, 10, v1
    v_lshrrev_b32 v2, 5, v0
    v_lshl_add_u32 v1, v2, 4, v1
    s_lshl_b32 s{T1}, s{S_W}, 8
    s_add_u32 s{T1}, s{T1}, s{T0}
    v_add_u32 v1, s{T1}, v1
    ''')
    for i in range(8):
        p.I(f'global_load_dwordx4 {vr(R+4*i,4)}, v1, s[{K.S_X}:{K.S_X+1}] offset:{32*i}', tag=('xc', half, i))
    p.I(f'''
    s_lshl_b32 s{T1}, s{S_W}, 13
    s_add_u32 s{T0}, s{T0}, s{T1}
    s_add_u32 s{T0}, s{T0}, {K.XF + 4096}
    ''')
    p.I('\n'.join(add64(SB, S_WS, f's{T0}')))
def xf_store(p, half, R, SB):
    for i in range(8):
        p.wait(vm=('xc', half, i))
        p.I(f'global_store_dwordx4 v{V_L16}, {vr(R+4*i,4)}, s[{SB}:{SB+1}] offset:{1024*i-4096} sc1')

V_WA = 232
WA = [V_WA]
def projw_issue(p, wptr, kind, xd=False, mid=None):
    L = V_T + 1
    p.I(f"""
    v_mov_b32 v{L}, v0
    v_lshrrev_b32 v2, 4, v0
    v_lshlrev_b32 v3, 2, v2
    v_and_b32 v1, 15, v0
    v_xor_b32 v1, v1, v3
    v_lshlrev_b32 v3, 13, v2
    v_lshl_add_u32 v3, v1, 4, v3
    s_lshl_b32 s{T0}, s{S_W}, 15
    s_lshl_b32 s{T1}, s{S_H}, 8
    s_add_u32 s{T0}, s{T0}, s{T1}
    v_add_u32 v{V_T}, s{T0}, v3
    s_lshl_b32 s{T2}, s{S_W}, 10
    """)
    p.I(f"""
    v_lshrrev_b32 v1, 5, v0
    v_lshlrev_b32 v1, 11, v1
    v_and_b32 v2, 12, v0
    v_lshl_add_u32 v1, v2, 6, v1
    v_lshl_add_u32 v1, v2, 4, v1
    v_and_b32 v2, 1, v0
    v_lshl_add_u32 v1, v2, 3, v1
    v_and_b32 v2, 2, v0
    v_and_b32 v3, 16, v0
    """)
    if kind == 'v': p.I('v_lshl_add_u32 v1, v2, 3, v1\nv_lshl_add_u32 v1, v3, 1, v1')
    else: p.I('v_lshl_add_u32 v1, v2, 4, v1\nv_add_u32 v1, v3, v1')
    for et in range(4):
        p.I(f'v_xor_b32 v{WA[0]+2*et}, {64*et}, v1\nv_add_u32 v{WA[0]+2*et+1}, 0x10000, v{WA[0]+2*et}')
    K.set_srd(p, wptr, 4 * MB)
    if xd:
        p.I(f"""
        v_and_b32 v{V_T+2}, 31, v{V_T+1}
        v_lshlrev_b32 v{V_T+2}, 10, v{V_T+2}
        v_lshrrev_b32 v{V_T+3}, 5, v{V_T+1}
        v_lshl_add_u32 v{V_T+2}, v{V_T+3}, 4, v{V_T+2}
        s_lshl_b32 s{T0}, s{S_W}, 15
        v_add_u32 v{V_T+2}, s{T0}, v{V_T+2}
        """)
    for i in range(32):
        p.I(f's_add_u32 m0, s{T2}, {i*4096}\ns_mov_b32 s{T3}, {i*16*8192}')
        p.I(f'buffer_load_dwordx4 v{V_T}, s[{S_SRD}:{S_SRD+3}], s{T3} offen lds', tag='pw')
        if mid and i == 7: mid()
        if xd:
            if i >= 28: p.I('s_waitcnt vmcnt(56)')
            p.I(f'global_load_dwordx4 {vr(4*i,4)}, v{V_T+2}, s[{K.S_X}:{K.S_X+1}] offset:{32*i}', tag='pw')

def xs(buf, ks):
    if buf == 0 and WA[0] == 120 and ks >= 30: return ar(232 + 4 * (ks - 30), 4)
    return vr(4 * ks, 4) if buf == 0 else ar(4 * ks, 4)
def xload(p, buf, ks):
    p.I(f'buffer_load_dwordx4 {xs(buf,ks)}, v{V_L16}, s[{S_SRD}:{S_SRD+3}], s{S_C4K+(ks>>2)} offen offset:{(ks&3)*1024} {CFG.get("xm","sc1")}', tag=('x', buf))
RD = 6
def wread(p, phi):
    phi %= 128
    et, ks = phi >> 5, phi & 31
    for x2 in range(2):
        p.I(f'ds_read_b64_tr_b16 {vr(RING+4*(phi%8)+2*x2,2)}, v{WA[0]+2*et+(ks>>4)} offset:{(ks&15)*4096 + x2*1024}', tag=('w', phi))

def xdirect(p):
    p.I(f"""
    v_and_b32 v{V_T+2}, 31, v{V_T+1}
    v_lshlrev_b32 v{V_T+2}, 10, v{V_T+2}
    v_lshrrev_b32 v{V_T+3}, 5, v{V_T+1}
    v_lshl_add_u32 v{V_T+2}, v{V_T+3}, 4, v{V_T+2}
    s_lshl_b32 s{T0}, s{S_W}, 15
    v_add_u32 v{V_T+2}, s{T0}, v{V_T+2}
    """)
    for ks in range(32):
        p.I(f'global_load_dwordx4 {vr(4*ks,4)}, v{V_T+2}, s[{K.S_X}:{K.S_X+1}] offset:{32*ks}', tag=('x', 0))

def proj_setup(p):
    p.I(f'''
    s_lshl_b32 s{T0}, s{S_W}, 15
    s_add_u32 s{T0}, s{T0}, {K.XF}
    s_add_u32 s{S_SRD}, s{S_WS}, s{T0}
    s_addc_u32 s{S_SRD+1}, s{S_WS+1}, 0
    s_mov_b32 s{S_SRD+2}, 0x8000
    s_mov_b32 s{S_SRD+3}, 0x20000
    ''')
    p.I('\n'.join(add64(S_SRD, S_SRD, 4 * 32768)))
    p.I(f'''
    s_lshl_b32 s{T0}, s{S_W}, 19
    s_lshl_b32 s{T1}, s{S_H}, 14
    s_add_u32 s{T0}, s{T0}, s{T1}
    s_add_u32 s{S_SRD2}, s{S_WS}, s{T0}
    s_addc_u32 s{S_SRD2+1}, s{S_WS+1}, 0
    s_mov_b32 s{S_SRD2+2}, 0x4000
    s_mov_b32 s{S_SRD2+3}, 0x20000
    s_mov_b32 s{S_IT}, 0
    ''')

def proj_body(p, kind, buf, extra, ringcont=True, pf0=0, pfs=3):
    nl = 0
    for et in range(4):
        acc = ACC + 16 * (et & 1)
        for ks in range(32):
            phi = 32 * et + ks
            if phi + RD < 128 or ringcont: wread(p, phi + RD)
            p.wait(lg=('w', phi))
            w = vr(RING + 4 * (phi % 8), 4)
            a, b = (xs(buf, ks), w) if kind == 'v' else (w, xs(buf, ks))
            p.I(f'v_mfma_f32_32x32x16_bf16 {vr(acc,16)}, {a}, {b}, {"0" if ks == 0 else vr(acc,16)}')
            if phi >= pf0 and (phi - pf0) % pfs == pfs - 1 and nl < 32:
                if not CFG.get('nox'): xload(p, 1 - buf, nl)
                nl += 1
            for x in extra.get((et, ks), []):
                if callable(x): x()
                else: p.I(x)
    p.I('\n'.join(add64(S_SRD, S_SRD, 4 * 32768)))

def pack(dst, acc):
    return [f'v_cvt_pk_bf16_f32 v{dst+i}, v{acc+2*i}, v{acc+2*i+1}' for i in range(8)]

def kv_worker(p, cfg, kind, lab):
    half = 0 if kind == 'k' else 1
    base_consts(p)
    WA[0] = V_WA
    p.I(f"""
    s_lshl_b32 s{T0}, s{S_H}, 9
    s_lshl_b32 s{T1}, s{S_W}, 7
    s_add_u32 s{T0}, s{T0}, s{T1}
    s_add_u32 s{T0}, s{T0}, {K.FL + (K.F_K if kind == 'k' else K.F_V)}
    """)
    p.I('\n'.join(add64(S_FLG, S_WS, f's{T0}')))
    p.I(f'v_mov_b32 v{V_T+5}, s{S_W}\ns_mov_b64 exec, 1\nglobal_store_dword v{V_Z}, v{V_T+5}, s[{S_FLG}:{S_FLG+1}] sc1\ns_mov_b64 exec, -1')
    p.I(f"""
    s_mov_b32 s{S_SRD2}, s{K.S_X}
    s_and_b32 s{S_SRD2+1}, s{K.S_X+1}, 0xffff
    s_mov_b32 s{S_SRD2+2}, {2*MB}
    s_mov_b32 s{S_SRD2+3}, 0x20000
    s_lshl_b32 s{T2}, s{S_W}, 15
    """)
    for r in range(32):
        p.I(f'v_xor_b32 v{128+(r&15)}, {(r&15)*16}, v{V_L16}' if r < 16 else 's_nop 0')
        p.I(f's_add_u32 m0, s{T2}, {32768 + r*1024}\ns_add_u32 s{T3}, s{T2}, {r*1024}')
        p.I(f'buffer_load_dwordx4 v{128+(r&15)}, s[{S_SRD2}:{S_SRD2+3}], s{T3} offen lds', tag='x0')
    def mid():
        p.I(f"""
        v_and_b32 v144, 31, v{V_T+1}
        v_lshlrev_b32 v145, 10, v144
        v_and_b32 v144, 15, v144
        v_lshrrev_b32 v146, 5, v{V_T+1}
        v_xor_b32 v144, v144, v146
        v_lshl_add_u32 v145, v144, 4, v145
        s_lshl_b32 s{T0}, s{S_W}, 15
        s_add_u32 s{T0}, s{T0}, 0x8000
        v_add_u32 v145, s{T0}, v145
        """)
        for q in range(8): p.I(f'v_xor_b32 v{128+q}, {q*32}, v145')
        p.wait(vm='x0')
        for ks in range(32):
            p.I(f'ds_read_b128 {vr(4*ks,4)}, v{128+(ks&7)} offset:{(ks>>3)*256}')
            if ks % 8 == 7: p.wait(lg='all')
        K.arrive(p, lab, keep=8)
        ev(p, 19)
    projw_issue(p, K.S_WK if kind == 'k' else K.S_WV, kind, mid=mid)
    ev(p, 58)
    proj_setup(p)
    ev(p, 57)
    p.I('s_waitcnt vmcnt(0)\ns_barrier')
    ev(p, 59)
    p.reset_cnt()
    for phi in range(RD): wread(p, phi)
    va = V_KA if kind == 'k' else V_VA
    def epi(et, tag):
        acc = ACC + 16 * (et & 1); pk = pack(QF + 8 * (et & 1), acc)
        st = [lambda f=f: p.I(f'buffer_store_dwordx4 {vr(QF+8*(et&1)+4*f,4)}, v{va}, s[{S_SRD2}:{S_SRD2+3}], s{S_C4K+et} offen offset:{512*f} {CFG.get("stm","sc1")}', tag=tag) for f in range(2)]
        if CFG.get('nost'): st = [lambda: None, lambda: None]
        return pk, st
    def sched(extra, et_run, et, tag, post=()):
        pk, st = epi(et, tag)
        for i in range(4): extra.setdefault((et_run, 3 + i), []).extend(pk[2*i:2*i+2])
        extra.setdefault((et_run, 6), []).append(st[0]); extra.setdefault((et_run, 9), []).append(st[1])
        extra[(et_run, 9)].extend(post)
    def flag():
        p.wait(vm='e3')
        p.I(f's_lshl_b32 s{T0}, s{S_IT}, 2\ns_add_u32 s{T0}, s{T0}, s{S_W}\nv_mov_b32 v{V_T}, s{T0}')
        p.I(f's_mov_b64 exec, 1\nglobal_store_dword v{V_Z}, v{V_T}, s[{S_FLG}:{S_FLG+1}] sc1\ns_mov_b64 exec, -1')
    adv = add64(S_SRD2, S_SRD2, 4 * 32 * 16384)
    def body(buf, first):
        extra = {}
        if not first:
            sched(extra, 0, 3, 'e3', adv)
            extra.setdefault((1, 1), []).append(flag)
        for et in range(3): sched(extra, et + 1, et, 'e')
        if first:
            def wa():
                lg = list(p.lg); K.wait_all(p, lab); p.lg = lg
                ev(p, 2)
            extra.setdefault((1, 31), []).append(wa)
            proj_body(p, kind, buf, extra, pf0=64, pfs=1)
        else: proj_body(p, kind, buf, extra)
        p.I(f's_add_u32 s{S_IT}, s{S_IT}, 1')
        ev(p, (S_IT, 2))
    p.wait(vm='all')
    if TL[0]: p.I('s_memtime s[88:89]')
    ev(p, 1)
    ev(p, 37)
    body(0, True)
    lg0 = list(p.lg)
    p.L(f'{lab}_loop')
    p.I('s_waitcnt vmcnt(2)'); p.vm = []
    body(1, False)
    p.I(f's_cmp_ge_u32 s{S_IT}, 16\ns_cbranch_scc1 {lab}_fin')
    p.I('s_waitcnt vmcnt(2)'); p.vm = []
    body(0, False)
    assert p.lg == lg0
    p.I(f's_branch {lab}_loop')
    p.L(f'{lab}_fin')
    if TL[0]: p.I(f's_memtime s[86:87]\ns_waitcnt lgkmcnt(0)\ns_sub_u32 s86, s86, s88\nv_writelane_b32 v{V_EV}, s86, 38')
    pk, st = epi(3, 'e3')
    p.I('s_nop 12')
    for x in pk: p.I(x)
    for x in st: x()
    flag()
    p.I('s_waitcnt vmcnt(0) lgkmcnt(0)')
    p.reset_cnt()

def poll_flags(p, lab, sbase, nl, need_s, vaddr, sleep=2):
    p.I(f'''
{lab}:
    global_load_dword v{V_T}, v{vaddr}, s[{sbase}:{sbase+1}] sc1
    s_waitcnt vmcnt(0)
    v_cmp_gt_u32 vcc, s{need_s}, v{V_T}
    s_cbranch_vccz {lab}_ok
    s_sleep {sleep}
    s_sub_u32 s{S_SPIN}, s{S_SPIN}, 1
    s_cbranch_scc0 {lab}
    s_branch L_end
{lab}_ok:
    ''')
    p.vm = []

def q_worker(p, cfg, lab):
    base_consts(p)
    L = V_T + 1
    p.I(f'''
    s_lshl_b32 s{T0}, s{S_W}, 12
    s_lshl_b32 s{T1}, s{S_H}, 7
    s_add_u32 s{T0}, s{T0}, s{T1}
    s_add_u32 s{T0}, s{T0}, {K.FL + K.F_O}
    ''')
    p.I('\n'.join(add64(S_FLG, S_WS, f's{T0}')))
    p.I(f's_mov_b64 exec, 1\nglobal_store_dword v{V_Z}, v{V_Z}, s[{S_FLG}:{S_FLG+1}] sc1\ns_mov_b64 exec, -1')
    xf_convert(p, 0, 160, S_FL3)
    xf_convert(p, 1, 192, S_FL2)
    xf_store(p, 0, 160, S_FL3)
    xf_store(p, 1, 192, S_FL2)
    ev(p, 57)
    WA[0] = 120
    K.arrive(p, lab)
    ev(p, 19)
    p.I(f'v_mov_b32 v{L}, v0')
    if not cfg.get('qwait', 0): projw_issue(p, K.S_WQ, 'q')
    p.I(f'''
    s_lshl_b32 s{T0}, s{S_H}, 9
    s_add_u32 s{T2}, s{T0}, {K.FL + K.F_C}
    s_lshl_b32 s{T1}, s{S_W}, 7
    s_add_u32 s{T0}, s{T0}, s{T1}
    s_add_u32 s{T0}, s{T0}, {K.FL + K.F_K}
    ''')
    p.I('\n'.join(add64(S_FL2, S_WS, f's{T0}') + add64(S_FL3, S_WS, f's{T2}')))
    V_FKV, V_FC = 254, 255
    p.I(f'''
    v_and_b32 v{V_FKV}, 1, v{L}
    v_mul_u32_u24 v{V_FKV}, {K.F_V - K.F_K}, v{V_FKV}
    v_and_b32 v{V_FC}, 3, v{L}
    v_lshlrev_b32 v{V_FC}, 7, v{V_FC}
    ''')
    p.I(f'''
    v_lshrrev_b32 v{V_T+2}, 5, v{L}
    v_lshlrev_b32 v{V_T+3}, 8, v{V_T+2}
    v_and_b32 v{V_T+4}, 6, v{L}
    v_lshl_add_u32 v{V_T+3}, v{V_T+4}, 5, v{V_T+3}
    v_and_b32 v{V_T+4}, 1, v{L}
    v_lshl_add_u32 v{V_KM}, v{V_T+4}, 4, v{V_T+3}
    v_lshlrev_b32 v{V_T+3}, 9, v{V_T+2}
    v_and_b32 v{V_T+4}, 15, v{L}
    v_or_b32 v{V_T+4}, 2, v{V_T+4}
    v_lshl_add_u32 v{V_T+3}, v{V_T+4}, 4, v{V_T+3}
    v_and_b32 v{V_T+4}, 16, v{L}
    v_lshrrev_b32 v{V_T+4}, 2, v{V_T+4}
    v_add_u32 v{V_T+3}, v{V_T+3}, v{V_T+4}
    v_and_b32 v{V_T+4}, 2, v{L}
    v_xor_b32 v{V_T+4}, 2, v{V_T+4}
    v_lshl_add_u32 v{V_VM}, v{V_T+4}, 2, v{V_T+3}
    ''')
    p.I(f'''
    v_and_b32 v{V_T+3}, 31, v{L}
    v_lshlrev_b32 v{V_T+2}, 2, v{V_T+2}
    v_sub_u32 v{V_T+3}, v{V_T+3}, v{V_T+2}
    v_mov_b32 v{V_T+4}, 0xf149f2ca
    s_mov_b32 s{S_SC}, 0x3e0293ee
    ''')
    for r in range(16):
        p.I(f'v_cmp_gt_i32 vcc, {8*(r>>2)+(r&3)}, v{V_T+3}\nv_cndmask_b32 v{MASK+r}, 0, v{V_T+4}, vcc')
    if cfg.get('qwait', 0):
        K.wait_all(p, lab)
        p.I(f's_mov_b32 s{T2}, 1')
        poll_flags(p, f'{lab}_pw', S_FL3, 4, T2, V_FC, sleep=8)
        projw_issue(p, K.S_WQ, 'q')
        p.I('s_waitcnt vmcnt(0)\ns_barrier')
        ev(p, 1)
    else:
        p.I('s_waitcnt vmcnt(0)\ns_barrier')
        ev(p, 1)
        K.wait_all(p, lab)
    ev(p, 2)
    p.reset_cnt()
    proj_setup(p)
    p.I(f's_sub_u32 s{S_SRD}, s{S_SRD}, {4*32768}\ns_subb_u32 s{S_SRD+1}, s{S_SRD+1}, 0')
    for ks in range(32): xload(p, 0, ks)
    p.I('\n'.join(add64(S_SRD, S_SRD, 4 * 32768)))
    p.I(f'''
    s_lshl_b32 s{T0}, s{S_W}, 17
    s_lshl_b32 s{T1}, s{S_H}, 12
    s_add_u32 s{T0}, s{T0}, s{T1}
    s_add_u32 s{T1}, s{T0}, {K.KVM}
    s_lshl_b32 s{T0}, s{T0}, 1
    s_add_u32 s{T0}, s{T0}, {K.OF + 4096}
    ''')
    p.I('\n'.join(add64(S_PUB, S_WS, f's{T1}') + add64(S_OF, S_WS, f's{T0}')))
    AK, AV, AM, AVM = 128, 160, 192, 224
    S, SM = ACC, ACC + 16
    P, PM, OP = RING, RING + 8, RING + 12
    TM, TN = V_T + 2, V_T + 3
    def body(buf, n):
        p.lg = []
        for phi in range(RD): wread(p, phi)
        p.I('s_waitcnt vmcnt(0)'); p.vm = []
        extra = {}
        for et in range(3):
            pk = pack(QF + 8 * et, ACC + 16 * (et & 1))
            for i in range(4): extra.setdefault((et + 1, 3 + i), []).extend(pk[2*i:2*i+2])
        proj_body(p, 'q', buf, extra, ringcont=False)
        p.I(f's_add_u32 s{S_IT}, s{S_IT}, 1')
        p.I(f's_lshl_b32 s{T2}, s{S_IT}, 2\ns_add_u32 s{T2}, s{T2}, s{S_W}\ns_sub_u32 s{T2}, s{T2}, 3')
        poll_flags(p, f'{lab}_pk{n}', S_FL2, 2, T2, V_FKV)
        for et in range(4):
            for f in range(2):
                p.I(f'buffer_load_dwordx4 {ar(AK+8*et+4*f,4)}, v{V_KA}, s[{S_SRD2}:{S_SRD2+3}], s{S_C4K+et} offen offset:{512*f} sc1', tag=('k', et, f))
        for et in range(4):
            for f in range(2):
                p.I(f'buffer_load_dwordx4 {ar(AV+8*et+4*f,4)}, v{V_VA}, s[{S_SRD2}:{S_SRD2+3}], s{S_C4K+et} offen offset:{512*f} sc1', tag='v')
        for x in pack(QF + 24, ACC + 16): p.I(x)
        p.I('\n'.join(add64(S_SRD2, S_SRD2, 4 * 32 * 16384)))
        for i in range(8):
            p.wait(vm=('k', i >> 1, i & 1))
            p.I(f'v_mfma_f32_32x32x16_bf16 {vr(S,16)}, {ar(AK+4*i,4)}, {vr(QF+4*i,4)}, {vr(MASK,16) if i == 0 else vr(S,16)}')
        ev(p, (S_IT, 2))
        p.I(f's_add_u32 s{T2}, s{T2}, 1')
        poll_flags(p, f'{lab}_pc{n}', S_FL3, 4, T2, V_FC)
        ev(p, (S_IT, 20))
        for i in range(8):
            p.I(f'global_load_dwordx4 {ar(AM+4*i,4)}, v{V_KM}, s[{S_PUB}:{S_PUB+1}] offset:{512*i} sc1', tag=('m', i))
        for et in range(4):
            for d in range(2):
                p.I(f'global_load_dword a{AVM+2*et+d}, v{V_VM}, s[{S_PUB}:{S_PUB+1}] offset:{1024*et+256*d} sc1', tag='vm')
        p.I('\n'.join(add64(S_PUB, S_PUB, 4 * 32 * 4096)))
        p.I(f'v_max3_f32 v{TM}, v{S}, v{S+1}, v{S+2}')
        for i in range(3, 15, 2): p.I(f'v_max3_f32 v{TM}, v{TM}, v{S+i}, v{S+i+1}')
        p.I(f'v_max_f32 v{TM}, v{TM}, v{S+15}')
        for i in range(8):
            p.wait(vm=('m', i))
            p.I(f'v_mfma_f32_32x32x16_bf16 {vr(SM,16)}, {ar(AM+4*i,4)}, {vr(QF+4*i,4)}, {"0" if i == 0 else vr(SM,16)}')
        p.I(f'''
        v_max3_f32 v{TM}, v{TM}, v{SM}, v{SM+1}
        v_max3_f32 v{TM}, v{TM}, v{SM+2}, v{SM+3}
        v_mov_b32 v{TN}, v{TM}
        v_permlane32_swap_b32 v{TM}, v{TN}
        v_max_f32 v{TM}, v{TM}, v{TN}
        v_mul_f32 v{TM}, s{S_SC}, v{TM}
        ''')
        for r in range(20):
            p.I(f'v_fma_f32 v{S+r}, v{S+r}, s{S_SC}, -v{TM}')
        for r in range(20): p.I(f'v_exp_f32 v{S+r}, v{S+r}')
        for i in range(10): p.I(f'v_cvt_pk_bf16_f32 v{P+i}, v{S+2*i}, v{S+2*i+1}')
        for i in range(5): p.I(f'v_pk_add_f32 {vr(S+4*i,2)}, {vr(S+4*i,2)}, {vr(S+4*i+2,2)}')
        p.I(f'''
        v_pk_add_f32 {vr(S,2)}, {vr(S,2)}, {vr(S+4,2)}
        v_pk_add_f32 {vr(S+8,2)}, {vr(S+8,2)}, {vr(S+12,2)}
        v_pk_add_f32 {vr(S,2)}, {vr(S,2)}, {vr(S+16,2)}
        v_pk_add_f32 {vr(S,2)}, {vr(S,2)}, {vr(S+8,2)}
        v_add_f32 v{TM}, v{S}, v{S+1}
        v_mov_b32 v{TN}, v{TM}
        v_permlane32_swap_b32 v{TM}, v{TN}
        v_add_f32 v{TM}, v{TM}, v{TN}
        v_rcp_f32 v{TM}, v{TM}
        s_waitcnt vmcnt(0)
        ''')
        p.vm = []
        def fin(et):
            acc = ACC + 16 * (et & 1); o = OP + 8 * (et & 1)
            for i in range(16): p.I(f'v_mul_f32 v{acc+i}, v{acc+i}, v{TM}')
            for x in pack(o, acc): p.I(x)
            for f in range(2):
                p.I(f'global_store_dwordx4 v{V_L16}, {vr(o+4*f,4)}, s[{S_OF}:{S_OF+1}] offset:{2048*et+1024*f-4096} sc1')
        for et in range(4):
            acc = ACC + 16 * (et & 1)
            p.I(f'v_mfma_f32_32x32x16_bf16 {vr(acc,16)}, {ar(AV+8*et,4)}, {vr(P,4)}, 0')
            p.I(f'v_mfma_f32_32x32x16_bf16 {vr(acc,16)}, {ar(AV+8*et+4,4)}, {vr(P+4,4)}, {vr(acc,16)}')
            p.I(f'v_mfma_f32_32x32x8_bf16 {vr(acc,16)}, {ar(AVM+2*et,2)}, {vr(PM,2)}, {vr(acc,16)}')
            if et > 0: fin(et - 1)
        fin(3)
        p.I('\n'.join(add64(S_OF, S_OF, 4 * 32 * 8192)))
        p.I(f'''
        v_mov_b32 v{V_T}, s{S_IT}
        s_waitcnt vmcnt(0)
        s_mov_b64 exec, 1
        global_store_dword v{V_Z}, v{V_T}, s[{S_FLG}:{S_FLG+1}] sc1
        s_mov_b64 exec, -1
        ''')
        ev(p, (S_IT, 40))
    p.L(f'{lab}_loop')
    body(0, 0)
    body(1, 1)
    p.I(f's_cmp_lt_u32 s{S_IT}, 16\ns_cbranch_scc1 {lab}_loop')
    ev_dump(p)
    p.I('s_branch L_end')

def o_worker(p, cfg, lab):
    L = V_T + 1
    p.I('s_barrier')
    if cfg.get('mix', 1): p.I(f's_lshl_b32 s{S_H}, s{S_H}, 1\ns_add_u32 s{S_H}, s{S_H}, s{K.S_XCC}')
    else: p.I(f's_lshl_b32 s{T0}, s{K.S_XCC}, 5\ns_add_u32 s{S_H}, s{S_H}, s{T0}')
    if TL[0]: p.I(f's_mov_b32 s{K.S_XCC}, 0')
    S_LB = 56
    p.I(f"""
    v_lshrrev_b32 v1, 2, v{L}
    v_lshlrev_b32 v1, 10, v1
    v_and_b32 v2, 3, v{L}
    v_lshl_add_u32 v1, v2, 4, v1
    s_lshl_b32 s{T0}, s{S_W}, 20
    s_and_b32 s{T1}, s{S_H}, 15
    s_lshl_b32 s{T1}, s{T1}, 6
    s_add_u32 s{T0}, s{T0}, s{T1}
    v_add_u32 v{V_T}, s{T0}, v1
    s_mul_i32 s{S_LB}, s{S_W}, 40960
    v_lshrrev_b32 v1, 5, v{L}
    v_lshlrev_b32 v1, 8, v1
    v_and_b32 v3, 12, v{L}
    v_lshl_add_u32 v1, v3, 4, v1
    v_and_b32 v3, 16, v{L}
    v_lshl_add_u32 v1, v3, 1, v1
    v_lshl_add_u32 v1, v2, 3, v1
    v_add_u32 v{V_T+2}, s{S_LB}, v1
    """)
    K.set_srd(p, K.S_WO, 4 * MB)
    def issue(q):
        for i in range(8):
            p.I(f's_add_u32 m0, s{S_LB}, {(q%5)*8192 + i*1024}')
            p.I(f's_mov_b32 s{T3}, {q*131072 + i*16384}')
            p.I(f'buffer_load_dwordx4 v{V_T}, s[{S_SRD}:{S_SRD+3}], s{T3} offen lds', tag=('ow', q))
    for q in range(5): issue(q)
    for q in range(8):
        p.wait(vm=('ow', q))
        for fr in range(8):
            for x in range(2):
                p.I(f'ds_read_b64_tr_b16 {ar(32*q+4*fr+2*x,2)}, v{V_T+2} offset:{(q%5)*8192 + fr*1024 + x*512}')
            if fr == 3: p.wait(lg='all')
        p.wait(lg='all')
        if q + 5 < 8: issue(q + 5)
    p.I('s_barrier')
    p.I(f'''
    s_lshr_b32 s{T2}, s{S_H}, 4
    s_lshl_b32 s{T0}, s{T2}, 18
    s_lshl_b32 s{T1}, s{S_W}, 16
    s_add_u32 s{T0}, s{T0}, s{T1}
    s_add_u32 s{T0}, s{T0}, {K.OF}
    s_add_u32 s{S_SRD}, s{S_WS}, s{T0}
    s_addc_u32 s{S_SRD+1}, s{S_WS+1}, 0
    s_mov_b32 s{S_SRD+2}, 0x10000
    s_mov_b32 s{S_SRD+3}, 0x20000
    s_lshl_b32 s{T0}, s{T2}, 12
    s_lshl_b32 s{T1}, s{S_W}, 10
    s_add_u32 s{T0}, s{T0}, s{T1}
    s_add_u32 s{T0}, s{T0}, {K.FL + K.F_O}
    s_add_u32 s{S_FL2}, s{S_WS}, s{T0}
    s_addc_u32 s{S_FL2+1}, s{S_WS+1}, 0
    v_and_b32 v{V_KM}, 7, v{L}
    v_lshlrev_b32 v{V_KM}, 7, v{V_KM}
    s_lshl_b32 s{T0}, s{T2}, 16
    s_lshl_b32 s{T1}, s{S_M}, 10
    s_add_u32 s{T0}, s{T0}, s{T1}
    s_and_b32 s{T1}, s{S_H}, 15
    s_lshl_b32 s{T1}, s{T1}, 6
    s_add_u32 s{T0}, s{T0}, s{T1}
    s_lshl_b32 s{T1}, s{S_W}, 4
    s_add_u32 s{T0}, s{T0}, s{T1}
    s_add_u32 s{S_OF}, s{K.S_OUT}, s{T0}
    s_addc_u32 s{S_OF+1}, s{K.S_OUT+1}, 0
    v_and_b32 v1, 31, v{L}
    v_lshlrev_b32 v1, 11, v1
    v_lshrrev_b32 v2, 5, v{L}
    v_lshl_add_u32 v{V_VM}, v2, 3, v1
    v_add_u32 v{V_LHI}, 0x8000, v{V_L16}
    s_lshl_b32 s{T0}, s{S_W}, 12
    v_add_u32 v{V_KA}, s{T0}, v{V_L16}
    s_lshl_b32 s{T0}, s{S_W}, 10
    v_add_u32 v{V_VA}, s{T0}, v{V_L16}
    s_mov_b32 s{S_IT}, 0
    ''')
    ev(p, 20)
    NB = 52
    A = 208
    def old(k):
        va = V_L16 if k < 32 else V_LHI
        p.I(f'buffer_load_dwordx4 {vr(4*(k%NB),4)}, v{va}, s[{S_SRD}:{S_SRD+3}], s{S_C4K+((k%32)>>2)} offen offset:{(k&3)*1024} sc1', tag=('o', k))
    def body(par):
        p.I(f's_add_u32 s{S_IT}, s{S_IT}, 1')
        poll_flags(p, f'{lab}_pf{par}', S_FL2, 8, S_IT, V_KM)
        ev(p, (S_IT, 20))
        for k in range(NB): old(k)
        for k in range(64):
            p.wait(vm=('o', k))
            p.I(f'v_mfma_f32_32x32x16_bf16 {vr(A,16)}, {ar(4*k,4)}, {vr(4*(k%NB),4)}, {"0" if k == 0 else vr(A,16)}')
            if k + NB < 64: old(k + NB)
        p.I('\n'.join(add64(S_SRD, S_SRD, 4 * 32 * 8192)))
        p.lg = []
        for q in range(4):
            p.I(f'ds_write_b128 v{V_KA}, {vr(A+4*q,4)} offset:{par*16384 + q*1024}')
        p.I('s_waitcnt lgkmcnt(0)\ns_barrier')
        for q in range(4):
            p.I(f'ds_read_b128 {vr(A+4*q,4)}, v{V_VA} offset:{par*16384 + q*4096}')
        p.I(f'''
        s_waitcnt lgkmcnt(0)
        v_pk_add_f32 {vr(A,2)}, {vr(A,2)}, {vr(A+4,2)}
        v_pk_add_f32 {vr(A+2,2)}, {vr(A+2,2)}, {vr(A+6,2)}
        v_pk_add_f32 {vr(A+8,2)}, {vr(A+8,2)}, {vr(A+12,2)}
        v_pk_add_f32 {vr(A+10,2)}, {vr(A+10,2)}, {vr(A+14,2)}
        v_pk_add_f32 {vr(A,2)}, {vr(A,2)}, {vr(A+8,2)}
        v_pk_add_f32 {vr(A+2,2)}, {vr(A+2,2)}, {vr(A+10,2)}
        v_cvt_pk_bf16_f32 v{A+16}, v{A}, v{A+1}
        v_cvt_pk_bf16_f32 v{A+17}, v{A+2}, v{A+3}
        global_store_dwordx2 v{V_VM}, {vr(A+16,2)}, s[{S_OF}:{S_OF+1}]
        ''')
        p.I('\n'.join(add64(S_OF, S_OF, 4 * 32 * 2048)))
        ev(p, (S_IT, 40))
    p.L(f'{lab}_loop')
    body(0); body(1)
    p.I(f's_cmp_lt_u32 s{S_IT}, 16\ns_cbranch_scc1 {lab}_loop')
    ev_dump(p)
    p.I('s_branch L_end')
```

```python
import sys
sys.path.insert(0, 'gen')
from asmlib import *

NAME = 'concat_heads__memory_aug_recurrent_mem_tr__memory_aug_recurrent_mem_tr__prompt_kernel'
MB = 1 << 20
WS_MODEL = 64 * MB
KVF, OF, KVM, XF = 0, 32 * MB, 48 * MB, 56 * MB
PR = 58 * MB
MR = PR + 512 * 1024
HB = MR + 65536
FL = 59 * MB
TS = 60 * MB
SENT = 0xffc0ffc0
F_K, F_V, F_C, F_O = 0, 16384, 32768, 49152
SAFE_OFF = 3 * MB

S_X, S_MEM0, S_WQ, S_WK, S_WV, S_WO = 4, 6, 8, 10, 12, 14
S_OUT, S_DBG, S_WS = 16, 18, 20
S_XCC, S_W, S_H, S_M = 22, 23, 24, 25
S_STEP, S_SPIN = 26, 27
S_SRD = 28
S_PP, S_MS, S_MRS, S_MP, S_KV, S_PUB, S_PPO = 34, 36, 38, 40, 42, 44, 46
S_TO = 50
S_LATE = 32
S_ONE = 12
S_HBW, S_HBR = 8, 10
S_KEY = 67
S_MQ1 = 48
S_T0, S_T1, S_T2, S_T3 = 58, 59, 60, 61
S_PTOG, S_MTOG = 62, 63
S_OPS, S_OPP, S_OMP = 64, 65, 66
S_SC = 98
S_MODE, S_FLB, S_FLC = 3, 96, 4
S_PL, S_PH = 68, 69
S_SENT, S_THR = 70, 71
S_ST = 72

MF, SB = 0, 32
Q0, Q1, K0, K1, V0, V1 = 64, 68, 72, 76, 80, 84
KX, VX = 88, 96
C_IDX, A_L16, C_SELT, C_SELR = 104, 105, 106, 108
A_PST, A_MST, A_STW, A_ST1, A_ST2, A_ST3, A_WL, A_MW, A_OW, A_OR = 112, 113, 114, 115, 116, 117, 118, 119, 120, 121
A_FL, V_FL, V_FS = 122, 123, 121
S_NEED, S_W0 = 14, 8
C_SENT = 124
ALAND = 240
L_STG, L_XCH, L_W = 0, 8192, 16384
HOME = {}
for sg in range(8):
    for tt in range(2): HOME[('q', sg, tt)] = ('a', 16 * sg + 8 * tt)
_l = 0
for key in [('k', 0, 0), ('k', 0, 1), ('k', 2, 0), ('k', 2, 1), ('k', 1, 0), ('k', 1, 1), ('k', 3, 0), ('k', 3, 1),
            ('v', 5, 0), ('v', 5, 1), ('v', 7, 0), ('v', 7, 1),
            ('o', 0, 0), ('o', 1, 0), ('o', 2, 0), ('o', 3, 0), ('o', 3, 2), ('o', 3, 3)]:
    HOME[key] = ('l', _l); _l += 1
_a = 128
for sg in (0, 1, 2, 3, 4, 6):
    for tt in range(2): HOME[('v', sg, tt)] = ('a', _a); _a += 8
for tt in range(2): HOME[('k', 7, tt)] = ('a', _a); _a += 8
assert _a == ALAND
_v = 128
for t in range(4):
    for cc in range(4):
        if ('o', t, cc) not in HOME: HOME[('o', t, cc)] = ('v', _v); _v += 8
for sg in (4, 5, 6):
    for tt in range(2): HOME[('k', sg, tt)] = ('v', _v); _v += 8
assert _v == 256
def sbslot(key): return SB + 8 * (HOME[key][1] % 4)

def add64(dst, base, off_s):
    return [f's_add_u32 s{dst}, s{base}, {off_s}', f's_addc_u32 s{dst+1}, s{base+1}, 0']

def load_args(p):
    p.I(f"""
    s_load_dwordx4 s[{S_X}:{S_X+3}], s[0:1], 0
    s_load_dwordx4 s[{S_WQ}:{S_WQ+3}], s[0:1], 16
    s_load_dwordx4 s[{S_WV}:{S_WV+3}], s[0:1], 32
    s_load_dwordx2 s[32:33], s[0:1], 56
    s_load_dwordx4 s[36:39], s[0:1], 64
    s_load_dwordx4 s[40:43], s[0:1], 80
    s_load_dwordx2 s[44:45], s[0:1], 96
    s_load_dwordx4 s[{S_OUT}:{S_OUT+3}], s[0:1], 112
    s_load_dwordx2 s[{S_WS}:{S_WS+1}], s[0:1], 128
    """)

def common_prologue(p, cfg):
    p.I("""
    s_cmp_ge_u32 s2, 256
    s_cbranch_scc1 L_end
    """)
    load_args(p)
    p.I(f"""
    s_getreg_b32 s{S_XCC}, hwreg(HW_REG_XCC_ID)
    s_and_b32 s{S_XCC}, s{S_XCC}, 7
    v_lshrrev_b32 v1, 6, v0
    v_and_b32 v0, 63, v0
    v_readfirstlane_b32 s{S_W}, v1
    s_mov_b32 s{S_SPIN}, {cfg.get('spin', 2000000)}
    s_mov_b32 s{S_MODE}, 0
    s_waitcnt lgkmcnt(0)
    """)
    if cfg.get('stamps'):
        p.I(f's_memrealtime s[94:95]')
    dbgt(p, cfg, 1, True)
    dbgt(p, cfg, 5)
    p.I(f"""
    s_cmp_eq_u32 s{S_W}, 0
    s_cbranch_scc0 L_noticket
    s_mov_b64 exec, 1
    s_lshl_b32 s{S_T0}, s{S_XCC}, 5
    v_mov_b32 v1, s{S_T0}
    v_mov_b32 v2, 1
    global_atomic_add v3, v1, v2, s[{S_DBG}:{S_DBG+1}] sc0
    v_mov_b32 v1, 0
    s_waitcnt vmcnt(0)
    ds_write_b32 v1, v3
    s_waitcnt lgkmcnt(0)
    s_mov_b64 exec, -1
L_noticket:
    s_barrier
    v_mov_b32 v1, 0
    ds_read_b32 v3, v1
    s_waitcnt lgkmcnt(0)
    v_readfirstlane_b32 s{S_H}, v3
    s_barrier
    """)

AV = (1, 2)
def arrive(p, lab, tv=(252, 253), keep=0):
    p.I(f"""
    s_waitcnt vmcnt({keep}) lgkmcnt(0)
    s_barrier
    s_cmp_eq_u32 s{S_W}, 0
    s_cbranch_scc0 {lab}_noarr
    s_mov_b64 exec, 1
    s_lshl_b32 s{S_T0}, s{S_MODE}, 5
    s_add_u32 s{S_T0}, s{S_T0}, 208
    v_mov_b32 v{tv[0]}, s{S_T0}
    v_mov_b32 v{tv[1]}, 1
    global_atomic_add v{tv[0]}, v{tv[1]}, s[{S_DBG}:{S_DBG+1}]
    s_mov_b64 exec, -1
{lab}_noarr:
    """)
    if keep: p.vm = p.vm[-keep-1:-1]
    else: p.reset_cnt()

NARR = [256]
FORCE = [0]
def wait_all(p, lab, tv=(252, 253)):
    p.I(f"""
    v_mbcnt_lo_u32_b32 v{tv[0]}, -1, 0
    v_and_b32 v{tv[0]}, 15, v{tv[0]}
    v_lshlrev_b32 v{tv[0]}, 4, v{tv[0]}
    s_lshl_b32 s{S_T1}, s{S_MODE}, 1
    s_add_u32 s{S_T1}, s{S_T1}, 13
{lab}_wa:
    global_load_dword v{tv[1]}, v{tv[0]}, s[{S_DBG}:{S_DBG+1}] sc1
    s_waitcnt vmcnt(0)
    v_readlane_b32 s{S_T0}, v{tv[1]}, s{S_T1}
    s_cmp_ge_u32 s{S_T0}, {NARR[0]}
    s_cbranch_scc1 {lab}_wb
    s_sleep 16
    s_sub_u32 s{S_SPIN}, s{S_SPIN}, 1
    s_cbranch_scc0 {lab}_wa
    s_branch L_end
{lab}_wb:
    s_cmp_eq_u32 s{S_MODE}, 1
    s_cbranch_scc1 {lab}_wc
    global_load_dword v{tv[1]}, v{tv[0]}, s[{S_DBG}:{S_DBG+1}] sc1
    s_waitcnt vmcnt(0)
    v_cmp_ne_u32 vcc, {32 + FORCE[0]}, v{tv[1]}
    s_and_b32 s{S_T0}, vcc_lo, 0x5555
    s_cbranch_scc1 L_safe
{lab}_wc:
    """)
    p.reset_cnt()

def dbgt(p, cfg, word, neg=False, v=(1, 2)):
    if cfg.get('dbgt'):
        p.I(f"""
        s_memrealtime s[90:91]
        s_waitcnt lgkmcnt(0)
        {'s_not_b32 s90, s90' if neg else ''}
        s_mov_b64 exec, 1
        v_mov_b32 v{v[0]}, {4*word}
        v_mov_b32 v{v[1]}, s90
        global_atomic_umax v{v[0]}, v{v[1]}, s[{S_DBG}:{S_DBG+1}]
        s_mov_b64 exec, -1
        """)

def select_model(p):
    p.I(f'''
    s_cmp_eq_u32 s{S_M}, 1
    s_cselect_b64 s[{S_X}:{S_X+1}], s[32:33], s[{S_X}:{S_X+1}]
    s_cselect_b64 s[{S_MEM0}:{S_MEM0+1}], s[36:37], s[{S_MEM0}:{S_MEM0+1}]
    s_cselect_b64 s[{S_WQ}:{S_WQ+1}], s[38:39], s[{S_WQ}:{S_WQ+1}]
    s_cselect_b64 s[{S_WK}:{S_WK+1}], s[40:41], s[{S_WK}:{S_WK+1}]
    s_cselect_b64 s[{S_WV}:{S_WV+1}], s[42:43], s[{S_WV}:{S_WV+1}]
    s_cselect_b64 s[{S_WO}:{S_WO+1}], s[44:45], s[{S_WO}:{S_WO+1}]
    s_lshl_b32 s{S_T0}, s{S_M}, 26
    s_add_u32 s{S_WS}, s{S_WS}, s{S_T0}
    s_addc_u32 s{S_WS+1}, s{S_WS+1}, 0
    ''')

def set_srd(p, ptr, nbytes):
    p.I(f'''
    s_mov_b32 s{S_SRD}, s{ptr}
    s_and_b32 s{S_SRD+1}, s{ptr+1}, 0xffff
    s_mov_b32 s{S_SRD+2}, {nbytes}
    s_mov_b32 s{S_SRD+3}, 0x20000
    ''')

def chain_consts(p, RO):
    p.I(f'''
    v_and_b32 v61, 15, v0
    v_lshrrev_b32 v62, 4, v0
    v_lshlrev_b32 v{A_L16}, 4, v0
    s_mov_b32 s{S_MQ1}, 0xcccccccc
    s_mov_b32 s{S_MQ1+1}, 0xcccccccc
    s_mov_b32 s{S_SC}, 0x3e0293ee
    s_mov_b32 s{S_PL}, 0x05040100
    s_mov_b32 s{S_PH}, 0x07060302
    s_mov_b32 s{S_SENT}, {SENT}
    s_mov_b32 s{S_THR}, 0xffc00000
    s_mov_b32 s{S_SC+1}, 0x3e0293ee
    v_mov_b32 v{C_SENT}, s{S_SENT}
    v_mov_b32 v{C_SENT+1}, s{S_SENT}
    v_mov_b32 v{C_SENT+2}, s{S_SENT}
    v_mov_b32 v{C_SENT+3}, s{S_SENT}
    v_mov_b32 v64, 0xeeee
    v_mov_b32 v65, 0x4444
    v_cndmask_b32 v{C_IDX}, v65, v64, s[{S_MQ1}:{S_MQ1+1}]
    ''')
    p.I(f'''
    v_and_b32 v63, 1, v61
    v_lshlrev_b32 v63, 4, v63
    v_mov_b32 v64, 0x3f80
    v_lshlrev_b32 v64, v63, v64
    v_lshrrev_b32 v65, 2, v61
    v_cmp_eq_u32 vcc, v65, v62
    v_cndmask_b32 v64, 0, v64, vcc
    v_mov_b32 v65, 0
    v_cndmask_b32 v{C_SELT}, v65, v64, s[{S_MQ1}:{S_MQ1+1}]
    v_cndmask_b32 v{C_SELT+1}, v64, v65, s[{S_MQ1}:{S_MQ1+1}]
    ''')
    p.I(f'''
    v_lshrrev_b32 v63, 2, v61
    v_and_b32 v63, 1, v63
    v_lshlrev_b32 v63, 4, v63
    v_mov_b32 v64, 0x3f80
    v_lshlrev_b32 v64, v63, v64
    v_and_b32 v65, 11, v61
    ''')
    for d, key in enumerate([0, 1, 8, 9]):
        p.I(f'v_cmp_eq_u32 vcc, {key}, v65\nv_cndmask_b32 v{C_SELR+d}, 0, v64, vcc')
    p.I(f'''
    v_lshrrev_b32 v63, 1, v62
    v_lshlrev_b32 v63, 13, v63
    v_and_b32 v64, 1, v62
    v_lshl_add_u32 v63, v64, 11, v63
    v_lshl_add_u32 v63, v61, 2, v63
    s_lshl_b32 s{S_T0}, s{S_W}, 16
    s_lshl_b32 s{S_T1}, s{S_H}, 6
    s_add_u32 s{S_T0}, s{S_T0}, s{S_T1}
    v_add_u32 v{A_PST}, s{S_T0}, v63
    ''')
    for t in range(8): p.I(f's_mov_b32 s{S_TO+t}, {(t&3)*16384 + (t>>2)*4096}')
    p.I(f'''
    v_and_b32 v63, 2, v0
    v_lshlrev_b32 v63, 4, v63
    v_and_b32 v64, 1, v62
    v_lshl_add_u32 v63, v64, 4, v63
    v_and_b32 v64, 1, v0
    v_lshl_add_u32 v63, v64, 3, v63
    v_lshrrev_b32 v64, 1, v62
    v_lshl_add_u32 v63, v64, 2, v63
    s_lshr_b32 s{S_LATE}, s{S_W}, 1
    s_lshr_b32 s{S_T2}, s{S_H}, 1
    s_and_b32 s{S_T2}, s{S_T2}, 3
    s_lshl_b32 s{S_T0}, s{S_LATE}, 2
    s_add_u32 s{S_T2}, s{S_T2}, s{S_T0}
    s_and_b32 s{S_T3}, s{S_H}, 1
    s_lshl_b32 s{S_T3}, s{S_T3}, 1
    s_and_b32 s{S_T0}, s{S_W}, 1
    s_add_u32 s{S_T3}, s{S_T3}, s{S_T0}
    s_lshl_b32 s{S_T0}, s{S_T2}, 10
    s_lshr_b32 s{S_T1}, s{S_H}, 3
    s_lshl_b32 s{S_T1}, s{S_T1}, 8
    s_add_u32 s{S_T0}, s{S_T0}, s{S_T1}
    s_lshl_b32 s{S_T1}, s{S_T3}, 6
    s_add_u32 s{S_T0}, s{S_T0}, s{S_T1}
    v_add_u32 v{A_MST}, s{S_T0}, v63
    ''')
    p.I(f'''
    v_and_b32 v63, 1, v62
    v_lshlrev_b32 v63, 10, v63
    v_lshrrev_b32 v64, 1, v62
    v_lshl_add_u32 v63, v64, 2, v63
    v_and_b32 v64, 3, v0
    v_lshl_add_u32 v63, v64, 3, v63
    s_lshl_b32 s{S_T0}, s{S_T3}, 11
    s_lshr_b32 s{S_T1}, s{S_H}, 3
    s_lshl_b32 s{S_T1}, s{S_T1}, 8
    s_add_u32 s{S_T0}, s{S_T0}, s{S_T1}
    s_lshl_b32 s{S_T1}, s{S_T2}, 5
    s_add_u32 s{S_T0}, s{S_T0}, s{S_T1}
    v_add_u32 v70, s{S_T0}, v63
    ''')
    p.I(f'''
    s_lshl_b32 s{S_T0}, s{S_KEY}, 11
    v_add_u32 v{A_STW}, s{S_T0}, v{A_L16}
    v_xor_b32 v{A_ST1}, 0x800, v{A_STW}
    v_xor_b32 v{A_ST2}, 0x1000, v{A_STW}
    v_xor_b32 v{A_ST3}, 0x1800, v{A_STW}
    s_mul_i32 s{S_T0}, s{S_W}, 36864
    s_add_u32 s{S_T0}, s{S_T0}, {L_W}
    v_add_u32 v{A_WL}, s{S_T0}, v{A_L16}
    s_lshl_b32 s{S_T0}, s{S_W}, 2
    v_add_u32 v{A_MW}, s{S_T0}, v{A_L16}
    ''')
    p.I(f'''
    s_lshl_b32 s{S_T2}, s{S_H}, 2
    s_add_u32 s{S_T2}, s{S_T2}, s{S_W}
    s_lshl_b32 s{S_OPP}, s{S_T2}, 11
    s_add_u32 s{S_OPP}, s{S_OPP}, {PR + RO}
    s_lshl_b32 s{S_OMP}, s{S_KEY}, 10
    s_add_u32 s{S_OMP}, s{S_OMP}, {MR + RO + 2048}
    s_lshl_b32 s{S_T0}, s{S_T2}, 12
    ''')
    p.I('\n'.join(add64(S_KV, S_WS, f's{S_T0}')))
    p.I(f's_lshl_b32 s{S_T0}, s{S_T2}, 10\ns_add_u32 s{S_T0}, s{S_T0}, {KVM}')
    p.I('\n'.join(add64(S_PUB, S_WS, f's{S_T0}')))

S_LB, S_SR2 = 72, 76
VA_QKV, VA_WO, VA_TR, VA_TQ, VA_TQ2 = 3, 4, 5, 6, 7
PARK = 8
def chain_weights_setup(p, mid):
    p.I(f"""
    v_and_b32 v1, 15, v0
    v_lshrrev_b32 v2, 4, v0
    v_lshlrev_b32 v2, 10, v2
    v_and_b32 v8, 16, v0
    v_lshl_add_u32 v2, v1, 4, v2
    s_lshl_b32 s{S_T0}, s{S_H}, 17
    s_lshl_b32 s{S_T1}, s{S_W}, 8
    s_add_u32 s{S_T0}, s{S_T0}, s{S_T1}
    v_add_u32 v{VA_WO}, s{S_T0}, v2
    s_mul_i32 s{S_LB}, s{S_W}, 36864
    s_add_u32 s{S_LB}, s{S_LB}, {L_W}
    """)
    b = S_SR2 + 12
    p.I(f's_mov_b32 s{b}, s{S_WO}\ns_and_b32 s{b+1}, s{S_WO+1}, 0xffff\ns_mov_b32 s{b+2}, {4*MB}\ns_mov_b32 s{b+3}, 0x20000')
    for blk in range(8):
        if blk == 2: mid()
        p.I(f's_xor_b32 s{S_T2}, s{S_W}, {blk>>1}\ns_lshl_b32 s{S_T2}, s{S_T2}, 15')
        for gb in range(4):
            p.I(f's_add_u32 m0, s{S_LB}, {blk*4096 + gb*1024}\ns_add_u32 s{S_T3}, s{S_T2}, {((blk&1)*16 + 4*gb)*1024}')
            p.I(f'buffer_load_dwordx4 v{VA_WO}, s[{b}:{b+3}], s{S_T3} offen lds', tag=('wo', blk))
    p.I(f"""
    v_lshrrev_b32 v2, 5, v0
    v_lshlrev_b32 v2, 16, v2
    v_lshl_add_u32 v2, v8, 9, v2
    v_lshl_add_u32 v2, v1, 4, v2
    s_lshr_b32 s{S_T0}, s{S_W}, 1
    s_lshl_b32 s{S_T0}, s{S_T0}, 21
    s_and_b32 s{S_T1}, s{S_W}, 1
    s_lshl_b32 s{S_T1}, s{S_T1}, 14
    s_add_u32 s{S_T0}, s{S_T0}, s{S_T1}
    s_lshl_b32 s{S_T1}, s{S_H}, 8
    s_add_u32 s{S_T0}, s{S_T0}, s{S_T1}
    v_add_u32 v{VA_QKV}, s{S_T0}, v2
    v_lshrrev_b32 v2, 2, v0
    v_lshlrev_b32 v2, 8, v2
    v_and_b32 v1, 3, v0
    v_lshl_add_u32 v2, v1, 3, v2
    v_lshlrev_b32 v9, 3, v1
    v_and_b32 v10, 4, v0
    v_lshl_add_u32 v9, v10, 10, v9
    v_and_b32 v10, 8, v0
    v_lshl_add_u32 v9, v10, 2, v9
    v_lshrrev_b32 v10, 4, v0
    v_lshl_add_u32 v9, v10, 9, v9
    v_add_u32 v{VA_TR}, s{S_LB}, v9
    s_lshl_b32 s{S_T0}, s{S_W}, 6
    s_add_u32 s{S_T0}, s{S_T0}, {L_W}
    v_add_u32 v{VA_TQ}, s{S_T0}, v2
    v_add_u32 v{VA_TQ2}, {2*36864}, v{VA_TQ}
    """)
    for i, ptr in enumerate((S_WQ, S_WK, S_WV)):
        b = S_SR2 + 4 * i
        p.I(f's_mov_b32 s{b}, s{ptr}\ns_and_b32 s{b+1}, s{ptr+1}, 0xffff\ns_mov_b32 s{b+2}, {4*MB}\ns_mov_b32 s{b+3}, 0x20000')

def chain_weights_run(p, cfg, lab, mid):
    units = [(m, c) for m in cfg.get('worder', 'qvk') for c in range(8)]
    NS = 6
    def dest(key, jp):
        kind, idx = HOME[key]
        if kind == 'a': return ar(idx + 2 * jp, 2)
        if kind == 'v': return vr(idx + 2 * jp, 2)
        return vr(PARK + 8 * (idx % 12) + 2 * jp, 2)
    def issue(i):
        m, c = units[i]; srd = S_SR2 + 4 * 'qkv'.index(m)
        for gb in range(4):
            d = 16 * c + 128 * (gb >> 1) + 4 * (gb & 1)
            p.I(f's_add_u32 m0, s{S_LB}, {(i%NS)*4096 + gb*1024}\ns_mov_b32 s{S_T3}, {d*8192}')
            p.I(f'buffer_load_dwordx4 v{VA_QKV}, s[{srd}:{srd+3}], s{S_T3} offen lds', tag=('u', i))
    for kap in range(4):
        p.wait(vm=('wo', 2 * kap + 1))
        for pr in range(4):
            for jp in range(4):
                p.I(f'ds_read_b64_tr_b16 {dest(("o", pr, kap), jp)}, v{VA_TR} offset:{kap*8192 + (8*(jp>>1) + (jp&1))*256 + pr*64}')
            if pr & 1: p.wait(lg='all')
        for blk in (2 * kap, 2 * kap + 1):
            if blk < NS: issue(blk)
    for idx in range(12, 18):
        for hh in range(2):
            p.I(f'ds_write_b128 v{A_WL}, {vr(PARK+8*(idx%12)+4*hh,4)} offset:{idx*2048 + hh*1024}')
    p.wait(lg='all')
    mid()
    vm0 = list(p.vm)
    for key in range(4):
        if key < 3: p.I(f's_cmp_eq_u32 s{S_KEY}, {key}\ns_cbranch_scc0 {lab}_wv{key+1}')
        p.vm = list(vm0)
        for i, (m, c) in enumerate(units):
            p.wait(vm=('u', i))
            p.I('s_barrier')
            if i >= 1 and i - 1 + NS < len(units): issue(i - 1 + NS)
            sg = 2 * ((c & 3) ^ key) + (c >> 2)
            for tt in range(2):
                for jp in range(4):
                    a = VA_TQ if jp < 2 else VA_TQ2
                    p.I(f'ds_read_b64_tr_b16 {dest((m, sg, tt), jp)}, v{a} offset:{(jp&1)*36864 + (i%NS)*4096 + tt*32}')
            p.wait(lg='all')
        if key < 3:
            p.I(f's_branch {lab}_wdone')
            p.L(f'{lab}_wv{key+1}')
    p.L(f'{lab}_wdone')
    p.I('s_barrier')
    for idx in range(12):
        for hh in range(2):
            p.I(f'ds_write_b128 v{A_WL}, {vr(PARK+8*idx+4*hh,4)} offset:{idx*2048 + hh*1024}')
        if idx % 4 == 3: p.wait(lg='all')

def stamp(p, cfg, i):
    if cfg.get('stamps') == 2:
        p.I(f'''
        s_memtime s[{S_ST+18}:{S_ST+19}]
        s_waitcnt lgkmcnt(0)
        s_sub_u32 s{S_ST+19}, s{S_ST+18}, s{S_ST+15}
        s_add_u32 s{S_ST+i}, s{S_ST+i}, s{S_ST+19}
        s_mov_b32 s{S_ST+15}, s{S_ST+18}
        ''')
        p.lg = []

def chain_bases(RO):
    o = [f's_add_u32 s{S_T0}, s{S_PTOG}, {PR + RO}'] + add64(S_SRD, S_WS, f's{S_T0}')
    o += [f's_add_u32 s{S_T0}, s{S_OPP}, s{S_PTOG}'] + add64(S_PP, S_WS, f's{S_T0}')
    o += [f's_add_u32 s{S_T0}, s{S_MTOG}, {MR + RO}'] + add64(S_MS, S_WS, f's{S_T0}')
    o += [f's_xor_b32 s{S_T0}, s{S_MTOG}, 0x2000', f's_add_u32 s{S_T0}, s{S_T0}, {MR + RO}'] + add64(S_MRS, S_WS, f's{S_T0}')
    o += [f's_add_u32 s{S_T0}, s{S_OMP}, s{S_MTOG}'] + add64(S_MP, S_WS, f's{S_T0}')
    return o

DPP = 'row_mask:0xf bank_mask:0xf'

def chain(p, cfg, st, lab):
    RO = SAFE_OFF if st else 0
    NSTEP = cfg.get('nstep', 64)
    depth1, depth2 = cfg.get('depth1', 2), cfg.get('depth2', 2)
    def frag(key):
        kind, idx = HOME[key]
        if kind == 'l':
            p.wait(lg=key); return vr(sbslot(key), 8)
        return (ar if kind == 'a' else vr)(idx, 8)
    def smf(acc, a, key, *shadow):
        b = frag(key)
        p.I(f'v_smfmac_f32_16x16x64_bf16 {vr(acc,4)}, {vr(a,4)}, {b}, v{C_IDX}')
        for x in shadow:
            if callable(x): x()
            else: p.I(x)
    def wl(key, hh):
        return lambda: p.I(f'ds_read_b128 {vr(sbslot(key)+4*hh,4)}, v{A_WL} offset:{HOME[key][1]*2048 + hh*1024}', tag=key)
    def kvld(i):
        if cfg.get('nokv'): return lambda: p.I('s_nop 0')
        return lambda: p.I(f'global_load_dwordx4 {ar(ALAND+4*i,4)}, v{A_L16}, s[{S_KV}:{S_KV+1}] offset:{1024*i} {cfg.get("kvm","sc1")}', tag='kv')
    kv_adv = add64(S_KV, S_KV, 32 * 16384)

    def init():
        p.I(f's_mov_b32 s{S_KEY}, s{S_W}')
        chain_consts(p, RO)
        p.I(f'''
        v_and_b32 v63, 3, v0
        v_lshlrev_b32 v63, 7, v63
        v_and_b32 v64, 4, v0
        v_lshl_add_u32 v{A_FL}, v64, 12, v63
        s_lshl_b32 s{S_T0}, s{S_H}, 9
        s_add_u32 s{S_T0}, s{S_T0}, {FL}
        s_add_u32 s{S_FLB}, s{S_WS}, s{S_T0}
        s_addc_u32 s{S_FLB+1}, s{S_WS+1}, 0
        s_lshl_b32 s{S_T0}, s{S_W}, 7
        s_add_u32 s{S_T0}, s{S_T0}, {F_C}
        s_add_u32 s{S_FLC}, s{S_FLB}, s{S_T0}
        s_addc_u32 s{S_FLC+1}, s{S_FLB+1}, 0
        v_mov_b32 v64, 0
        s_mov_b64 exec, 1
        global_store_dword v{A_L16}, v64, s[{S_FLC}:{S_FLC+1}] sc1
        s_mov_b64 exec, -1
        s_mov_b32 s{S_PTOG}, 0
        s_mov_b32 s{S_MTOG}, 0
        ''')
        p.I('\n'.join(chain_bases(RO)))
        p.I(f'''
        global_store_dwordx4 v{A_L16}, {vr(C_SENT,4)}, s[{S_PP}:{S_PP+1}] {st}
        global_store_dwordx4 v{A_L16}, {vr(C_SENT,4)}, s[{S_PP}:{S_PP+1}] offset:1024 {st}
        s_add_u32 s{S_PPO}, s{S_PP}, 0x40000
        s_addc_u32 s{S_PPO+1}, s{S_PP+1}, 0
        global_store_dwordx4 v{A_L16}, {vr(C_SENT,4)}, s[{S_PPO}:{S_PPO+1}] {st}
        global_store_dwordx4 v{A_L16}, {vr(C_SENT,4)}, s[{S_PPO}:{S_PPO+1}] offset:1024 {st}
        global_store_dword v{A_MST}, v{C_SENT}, s[{S_MRS}:{S_MRS+1}] {st}
        global_store_dword v{A_MST}, v{C_SENT}, s[{S_MS}:{S_MS+1}] {st}
        ''')
        p.I(f'global_load_dword v{V_FL}, v70, s[{S_MEM0}:{S_MEM0+1}]', tag='m0')
    chain_weights_setup(p, init)
    arrive(p, lab, (1, 2), keep=24)
    chain_weights_run(p, cfg, lab, lambda: None)
    p.I(f'global_store_dword v{A_MST}, v{V_FL}, s[{S_MS}:{S_MS+1}] {st}')
    p.I(f'v_mov_b32 v1, 1\ns_mov_b64 exec, 1\nglobal_store_dword v{A_L16}, v1, s[{S_FLC}:{S_FLC+1}] sc1\ns_mov_b64 exec, -1')
    p.I('s_waitcnt vmcnt(0) lgkmcnt(0)')
    wait_all(p, lab, (1, 2))
    nofl = cfg.get('noflags')
    def fl_ld(): p.I(f'global_load_dword v{V_FL}, v{A_FL}, s[{S_FLB}:{S_FLB+1}] sc1', tag='kv')
    def fl_spin(name, back):
        p.L(name)
        fl_ld()
        p.I(f'''
        s_waitcnt vmcnt(0)
        v_cmp_ge_u32 vcc, s{S_T1}, v{V_FL}
        s_cbranch_vccz {back}
        s_sleep 1
        s_sub_u32 s{S_SPIN}, s{S_SPIN}, 1
        s_cbranch_scc0 {name}
        s_branch L_end
        ''')
    p.I(f's_mov_b32 s{S_STEP}, 0\ns_mov_b32 s{S_T1}, 1')
    if not nofl:
        fl_spin('L_ch_fl0', 'L_ch_fl0ok')
        p.L('L_ch_fl0ok')
    p.reset_cnt()
    for i in range(4): kvld(i)()
    p.I('\n'.join(kv_adv))
    if cfg.get('stamps'):
        p.I('s_memrealtime s[92:93]\ns_waitcnt lgkmcnt(0)\ns_mov_b32 s33, s94\ns_mov_b32 s64, s92')
    dbgt(p, cfg, 2)
    p.I(f's_mov_b32 s{S_SRD+2}, 0x40000\ns_mov_b32 s{S_SRD+3}, 0x20000')
    p.I(f's_mov_b32 s{S_ONE}, 0x3f803f80\ns_mov_b32 s{S_ONE+1}, 0x3f803f80')
    pre_keys = [('k', 0, 0), ('k', 0, 1), ('k', 2, 0), ('k', 2, 1)]
    mv = lambda i: f'v_accvgpr_read_b32 v{KX+i}, a{ALAND+i}'
    kvmove = [mv(i) for i in list(range(8)) + list(range(12, 16))]
    kvlate = [mv(i) for i in range(8, 12)]
    zacc = [f'v_mov_b64 {vr(Q0+2*i,2)}, 0' for i in range(12)]
    marks = cfg.get('marks', [])
    def mk(name):
        if name in marks:
            i = marks.index(name); p.I(f's_mem{"real" if cfg.get("rt") else ""}time s[{72+2*i}:{73+2*i}]')
    def MK(name): return lambda: mk(name)
    def emit(xs):
        for x in xs:
            if callable(x): x()
            else: p.I(x)
    def m_ld(i):
        p.I(f'global_load_dwordx4 {vr(MF+4*i,4)}, v{A_L16}, s[{S_MP}:{S_MP+1}] offset:{-2048+4096*i} sc1', tag=('m', i))
    def nops(n):
        while n > 0:
            q = min(n, 16); p.I(f's_nop {q-1}'); n -= q
    pubst = f'global_store_dwordx4 v{A_L16}, {vr(VX,4)}, s[{S_PUB}:{S_PUB+1}] sc1'
    p.reset_cnt()
    for x in zacc: p.I(x)
    for kk in pre_keys: wl(kk, 0)(); wl(kk, 1)()
    m_ld(0)
    p.I(f'v_mov_b32 v{V_FS}, 1\ns_mov_b64 s[{S_NEED}:{S_NEED+1}], -1\ns_cmp_eq_u32 s{S_W}, 0\ns_cselect_b64 s[{S_W0}:{S_W0+1}], 1, 0\ns_waitcnt vmcnt(0) lgkmcnt(0)')
    emit(kvmove)
    Wr = lambda i: (lambda: p.I(f'ds_write_b128 v{A_STW}, {vr(MF+4*i,4)} offset:{L_STG+1024*i}', tag='stg'))
    chk = f"""
    v_max3_u32 v28, v0, v1, v2
    v_max_u32 v28, v28, v3
    v_cmp_le_u32 vcc, s{S_THR}, v28
    """
    cad = cfg.get('cad', 2)
    p.I('s_branch L_ch_chk')
    p.L('L_ch_mefail')
    if cad == 2: p.I('s_mov_b64 exec, vcc')
    p.L('L_ch_mestart')
    m_ld(0)
    if cad == 2: p.I('s_mov_b64 exec, -1')
    if cfg.get('stamps'): p.I('s_add_u32 s101, s101, 1')
    for _ in range(cfg.get('nchk', 2) - 1):
        p.I(chk); p.I('s_cbranch_vccz L_ch_go')
    p.I(f's_sub_u32 s{S_SPIN}, s{S_SPIN}, 1\ns_cbranch_scc1 L_end')
    p.L('L_ch_chk')
    p.I(chk)
    p.I('s_cbranch_vccnz L_ch_mefail')
    p.L('L_ch_go')
    p.reset_cnt()
    Wr(0)()
    mk('qk0')
    areg = {1: A_ST1, 2: A_ST2, 3: A_ST3}
    def mf(sg):
        return lambda: p.I(f'ds_read_b128 {vr(MF+4*sg,4)}, v{areg[sg>>1]} offset:{L_STG+(sg&1)*1024}', tag=('mf', sg))
    sal = [f's_xor_b32 s{S_MTOG}, s{S_MTOG}, 0x2000'] + chain_bases(RO)
    def S(n):
        o = sal[:n]; del sal[:n]; return o
    rst = lambda i: f'global_store_dwordx4 v{A_L16}, {vr(C_SENT,4)}, s[{S_PPO}:{S_PPO+1}] offset:{1024*i} {st}'
    flst = [f's_mov_b64 exec, s[{S_W0}:{S_W0+1}]', f'global_store_dword v{A_L16}, v{V_FS}, s[{S_FLC}:{S_FLC+1}] sc1', 's_mov_b64 exec, -1']
    flld = [f's_mov_b64 exec, s[{S_NEED}:{S_NEED+1}]', fl_ld, 's_mov_b64 exec, -1']
    vp = dict(ml=3, fs=17, k0=4, pub=5, fl=18, k1=9, k3=12, k2=19, r0=22, r1=27)
    vp.update(cfg.get('vp', {}))
    place = {}
    for name, ops in (('ml', [lambda: m_ld(1)]), ('pub', [] if cfg.get('nopub') else [pubst]), ('k0', [kvld(0)]), ('k1', [kvld(1)]), ('k3', [kvld(3)]), ('k2', [kvld(2)]),
                      ('fs', [] if cfg.get('nofst') else flst), ('fl', [] if nofl else flld), ('r0', [rst(0)]), ('r1', [rst(1)])):
        place.setdefault(vp[name], []).extend(ops)
    two = vp.get('ml2') is not None
    if two: place.setdefault(vp['ml2'], []).insert(0, lambda: m_ld(1))
    lastml = vp['ml2'] if two else vp['ml']
    assert min(vp['k0'], vp['k1'], vp['k3'], vp['fl'], vp['fs'], vp['pub']) > max(lastml, 3)
    lpos = cfg.get('lpos') or ((7, 8, 10, 11) if vp['pub'] < 7 else tuple(vp['k2'] - 4 + i for i in range(4)))
    assert vp['pub'] < min(lpos) and max(lpos) < vp['k2']
    slot = [0]
    def Q(acc, sg, key, *shadow):
        ex = place.pop(slot[0], [])
        tail = [kvlate[lpos.index(slot[0])]] if slot[0] in lpos else []
        slot[0] += 1
        smf(acc, MF + 4 * sg, key, *ex, *shadow, *tail)
    mrst = f'global_store_dword v{A_MST}, v{C_SENT}, s[{S_MRS}:{S_MRS+1}] {st}'
    Q(Q0, 0, ('q', 0, 0), mrst)
    Q(Q1, 0, ('q', 0, 1))
    Q(K0, 0, ('k', 0, 0))
    Q(K1, 0, ('k', 0, 1))
    p.wait(lg='all')
    mk('b1a')
    p.I('s_barrier')
    mk('b1b')
    mf(2)()
    Q(V0, 0, ('v', 0, 0), mf(4), mf(6))
    Q(V1, 0, ('v', 0, 1), wl(('k', 1, 0), 0))
    p.wait(lg=('mf', 2))
    Q(Q0, 2, ('q', 2, 0), wl(('k', 1, 0), 1), MK('s2'))
    Q(Q1, 2, ('q', 2, 1), wl(('k', 1, 1), 0))
    Q(K0, 2, ('k', 2, 0), wl(('k', 1, 1), 1))
    Q(K1, 2, ('k', 2, 1), wl(('k', 3, 0), 0))
    p.wait(lg=('mf', 6))
    Q(Q0, 4, ('q', 4, 0), wl(('k', 3, 0), 1))
    Q(Q1, 4, ('q', 4, 1), wl(('k', 3, 1), 0))
    rest = [(K0, 4, ('k', 4, 0), wl(('k', 3, 1), 1)), (K1, 4, ('k', 4, 1)), (Q0, 6, ('q', 6, 0)), (Q1, 6, ('q', 6, 1)), (K0, 6, ('k', 6, 0)), (K1, 6, ('k', 6, 1))]
    vfill = [(V0, 4, ('v', 4, 0)), (V1, 4, ('v', 4, 1)), (V0, 6, ('v', 6, 0)), (V1, 6, ('v', 6, 1)), (V0, 2, ('v', 2, 0)), (V1, 2, ('v', 2, 1))]
    nxt = lambda: (rest.pop(0) if rest else vfill.pop(0))
    while slot[0] < cfg.get('mlat', 13): Q(*nxt())
    def mlwait():
        first = p.vm.index(('m', 1))
        p.I(f's_waitcnt vmcnt({len(p.vm) - 1 - first})')
    if two:
        Q(*nxt(), MK('mla'), mlwait, MK('mlb'), 'v_max3_u32 v28, v4, v5, v6')
        Q(*nxt(), 'v_max_u32 v28, v28, v7', Wr(1))
        Q(*nxt(), f'v_cmp_le_u32 vcc, s{S_THR}, v28')
        Q(*nxt())
    else:
        Q(*nxt(), MK('mla'), mlwait, MK('mlb'), Wr(1))
        Q(*nxt(), 'v_max3_u32 v28, v4, v5, v6')
        Q(*nxt(), 'v_max_u32 v28, v28, v7')
        Q(*nxt(), f'v_cmp_le_u32 vcc, s{S_THR}, v28')
        Q(*nxt())
    while rest: Q(*rest.pop(0))
    for _ in range(cfg.get('nb4', 1)): Q(*nxt())
    p.I(f's_cbranch_vccnz L_ch_mlfail{"2" if two else ""}')
    n2 = p.vm[::-1].index(('m', 1))
    p.L('L_ch_mlok')
    p.wait(lg='all')
    mk('b4a')
    p.I('s_barrier')
    mk('b4b')
    mf(3)()
    Q(Q0, 1, ('q', 1, 0), mf(5), *S(1))
    Q(Q1, 1, ('q', 1, 1), mf(7), *S(1))
    Q(K0, 1, ('k', 1, 0), wl(('v', 5, 0), 0), *S(1))
    Q(K1, 1, ('k', 1, 1), wl(('v', 5, 0), 1))
    for _ in range(cfg.get('nvf', 0)): Q(*nxt(), *S(2))
    p.wait(lg=('mf', 3))
    Q(Q0, 3, ('q', 3, 0), MK('s3'), wl(('v', 5, 1), 0), *S(1))
    Q(Q1, 3, ('q', 3, 1), wl(('v', 5, 1), 1), *S(1))
    Q(K0, 3, ('k', 3, 0), wl(('v', 7, 0), 0), *S(1))
    Q(K1, 3, ('k', 3, 1), wl(('v', 7, 0), 1))
    p.wait(lg=('mf', 7))
    Q(Q0, 5, ('q', 5, 0), wl(('v', 7, 1), 0))
    Q(K0, 5, ('k', 5, 0), wl(('v', 7, 1), 1), *S(1))
    Q(Q0, 7, ('q', 7, 0), *S(3))
    Q(K0, 7, ('k', 7, 0), f's_mov_b64 vcc, s[{S_MQ1}:{S_MQ1+1}]', *S(2))
    Q(Q1, 5, ('q', 5, 1), *S(2), f'v_add_f32 v{Q0}, v{Q0}, v{Q0+2}')
    Q(K1, 5, ('k', 5, 1), *S(2), f'v_add_f32 v{Q0+1}, v{Q0+1}, v{Q0+3}', f'v_add_f32 v{K0}, v{K0}, v{K0+2}')
    Q(Q1, 7, ('q', 7, 1), *S(2), f'v_cvt_pk_bf16_f32 v{Q0+2}, v{Q0}, v{Q0+1}')
    Q(K1, 7, ('k', 7, 1), MK('qk1'), f'v_add_f32 v{K0+1}, v{K0+1}, v{K0+3}', f'v_cvt_pk_bf16_f32 v{Q0+3}, v{K0}, v{K0+1}')
    assert not place
    vq = [(5, 0), (5, 1), (7, 0), (7, 1)] + [(x[1], x[2][2]) for x in vfill] + [(sg, tt) for sg in (1, 3) for tt in range(2)]
    sal.extend([f's_cmp_lt_u32 s{S_STEP}, {NSTEP-2}', f's_cselect_b32 s{S_T1}, {0 if cfg.get("kvsame") else 32*16384}, 0'] + add64(S_KV, S_KV, f's{S_T1}'))
    sal.extend([f's_cmp_eq_u32 s{S_STEP}, 0', f's_cselect_b32 s{S_T1}, 0, {32*4096}'] + add64(S_PUB, S_PUB, f's{S_T1}'))
    WA = 16
    zq = [('z', f'v_mov_b32 v1, 0', None), ('z', f'v_mov_b32 v2, 0', None)] + [('z', f'v_mov_b64 {vr(MF+4*sg+2*h,2)}, 0', sg) for sg in (5, 7, 4, 6) for h in range(2)]
    ol = [wl(('o', t, 0), hh) for t in range(4) for hh in range(2)]
    nld = [0]
    def V(*shadow, auto=True):
        sg, tt = vq.pop(0)
        if HOME[('v', sg, tt)][0] == 'l': nld[0] += 1
        ex = list(shadow)
        if auto:
            z = None
            for i, (_, ins, need) in enumerate(zq):
                if need is None or not any(s_ == need for s_, _t in vq): z = zq.pop(i)[1]; break
            canl = ol and (8 - len(ol)) // 2 < nld[0]
            nextl = vq and HOME[('v',) + vq[0]][0] == 'l'
            if z:
                if canl and not nextl: ex.append(ol.pop(0))
                elif not nextl: ex += S(1)
                ex.append(z)
            else:
                if canl: ex.append(ol.pop(0))
                ex += S(3 - len(ex) - (1 if nextl else 0))
        smf(V0 + 4 * tt, MF + 4 * sg, ('v', sg, tt), *ex)
    p.I(f"""
    v_add_f32 v{Q1}, v{Q1}, v{Q1+2}
    v_add_f32 v{Q1+1}, v{Q1+1}, v{Q1+3}
    v_mfma_f32_16x16x16_bf16 {vr(K0,4)}, {vr(Q0+2,2)}, {vr(C_SELT,2)}, 0
    v_cvt_pk_bf16_f32 v{Q1+2}, v{Q1}, v{Q1+1}
    v_add_f32 v{K1}, v{K1}, v{K1+2}
    v_add_f32 v{K1+1}, v{K1+1}, v{K1+3}
    v_cvt_pk_bf16_f32 v{Q1+3}, v{K1}, v{K1+1}
    """)
    emit(S(2))
    p.I(f"""
    v_mfma_f32_16x16x16_bf16 {vr(K1,4)}, {vr(Q1+2,2)}, {vr(C_SELT,2)}, 0
    """)
    if cfg.get('vt', 1):
        emit(S(2)); V(auto=False)
    p.I(f"""
    v_cvt_pk_bf16_f32 v{Q0}, v{K0}, v{K0+1}
    v_cvt_pk_bf16_f32 v{Q0+1}, v{K0+2}, v{K0+3}
    v_cvt_pk_bf16_f32 v{Q0+2}, v{K1}, v{K1+1}
    v_cvt_pk_bf16_f32 v{Q0+3}, v{K1+2}, v{K1+3}
    """)
    emit(S(2))
    p.I(f'v_mfma_f32_16x16x32_bf16 {vr(K0,4)}, {vr(KX,4)}, {vr(Q0,4)}, 0')
    mk('sc')
    emit(S(2))
    p.I(f"""
    v_mfma_f32_16x16x32_bf16 {vr(K1,4)}, {vr(KX+4,4)}, {vr(Q0,4)}, 0
    v_mfma_f32_16x16x32_bf16 {vr(Q1,4)}, {vr(Q0,4)}, {vr(Q0,4)}, 0
    """)
    if cfg.get('vs', 1): V(auto=False)
    for r in range(4):
        p.I(f'v_cndmask_b32_dpp v{K0+r}, v{K1+r}, v{K0+r}, vcc quad_perm:[2,3,2,3] {DPP}')
    p.I(f'v_cndmask_b32_dpp v{Q1}, v{Q1+1}, v{Q1}, vcc quad_perm:[2,3,2,3] {DPP}')
    p.I(f'ds_write_b128 v{A_STW}, {vr(K0,4)} offset:{L_XCH}', tag='sx')
    p.I(f'ds_write_b32 v{A_MW}, v{Q1} offset:{L_XCH+1024}', tag='sx')
    mk('sw')
    for i in range(cfg.get('nva', 5)): V()
    p.wait(lg='sx', vm=('m', 1) if two else None)
    mk('b2a')
    p.I('s_barrier')
    mk('b2b')
    p.I(f'ds_read_b128 {vr(K1,4)}, v{A_ST1} offset:{L_XCH}', tag='s1')
    V(lambda: p.I(f'ds_read_b128 {vr(KX,4)}, v{A_ST2} offset:{L_XCH}', tag='s2'),
      lambda: p.I(f'ds_read_b128 {vr(KX+4,4)}, v{A_ST3} offset:{L_XCH}', tag='s3'),
      lambda: p.I(f'ds_read_b128 {vr(Q1,4)}, v{A_L16} offset:{L_XCH+1024}', tag='sm'), auto=False)
    while len(vq) > 1: V()
    V('s_not_b64 vcc, vcc', lambda: p.wait(lg='sm'), auto=False)
    emit(S(99))
    zl = [x[1] for x in zq]
    mk('sm0')
    T0, T1 = Q1 + 1, Q1 + 2
    def OL():
        if ol: ol.pop(0)()
    def Z(): return zl.pop(0) if zl else ''
    QH, QL = f'quad_perm:[2,3,2,3] {DPP}', f'quad_perm:[0,1,0,1] {DPP}'
    cm = [f'v_cndmask_b32 v{VX}, v{V0+2}, v{Q0}, vcc', f'v_cndmask_b32 v{VX+1}, v{V0+3}, v{Q0+1}, vcc',
          f'v_cndmask_b32_dpp v{VX+2}, v{V0+2}, v{Q0+2}, vcc quad_perm:[2,3,0,1] {DPP}', f'v_cndmask_b32_dpp v{VX+3}, v{V0+3}, v{Q0+3}, vcc quad_perm:[2,3,0,1] {DPP}']
    p.I(f"""
    v_add_f32 v{K0}, v{K0}, v{K1}
    v_add_f32 v{K0+1}, v{K0+1}, v{K1+1}
    v_add_f32 v{K0+2}, v{K0+2}, v{K1+2}
    v_add_f32 v{K0+3}, v{K0+3}, v{K1+3}
    v_pk_add_f32 {vr(KX,2)}, {vr(KX,2)}, {vr(KX+4,2)}
    v_pk_add_f32 {vr(KX+2,2)}, {vr(KX+2,2)}, {vr(KX+6,2)}
    v_pk_add_f32 {vr(Q1,2)}, {vr(Q1,2)}, {vr(Q1+2,2)}
    v_pk_add_f32 {vr(K0,2)}, {vr(K0,2)}, {vr(KX,2)}
    v_pk_add_f32 {vr(K0+2,2)}, {vr(K0+2,2)}, {vr(KX+2,2)}
    v_add_f32 v{Q1}, v{Q1}, v{Q1+1}
    v_max3_f32 v{T0}, v{K0}, v{K0+1}, v{K0+2}
    v_max3_f32 v{T0}, v{T0}, v{K0+3}, v{Q1}
    v_pk_add_f32 {vr(V0,2)}, {vr(V0,2)}, {vr(V0+2,2)}
    v_pk_add_f32 {vr(V1,2)}, {vr(V1,2)}, {vr(V1+2,2)}
    v_max_f32_dpp v{T0}, v{T0}, v{T0} quad_perm:[2,3,0,1] {DPP}
    v_mov_b32 v{T1}, v{T0}
    v_cvt_pk_bf16_f32 v{V0+2}, v{V0}, v{V0+1}
    v_cvt_pk_bf16_f32 v{V0+3}, v{V1}, v{V1+1}
    v_permlane16_swap_b32 v{T0}, v{T1}
    v_max_f32 v{T0}, v{T0}, v{T1}
    v_mov_b32 v{T1}, v{T0}
    v_mov_b64 {vr(K1,2)}, s[{S_ONE}:{S_ONE+1}]
    v_mov_b64 {vr(K1+2,2)}, s[{S_ONE}:{S_ONE+1}]
    v_permlane32_swap_b32 v{T0}, v{T1}
    v_max_f32 v{T0}, v{T0}, v{T1}
    """)
    mk('mx')
    p.I(f"""
    v_mul_f32 v{T1}, s{S_SC}, v{T0}
    v_pk_fma_f32 {vr(K0,2)}, {vr(K0,2)}, s[{S_SC}:{S_SC+1}], {vr(T1,2)} op_sel_hi:[1,1,0] neg_lo:[0,0,1] neg_hi:[0,0,1]
    v_pk_fma_f32 {vr(K0+2,2)}, {vr(K0+2,2)}, s[{S_SC}:{S_SC+1}], {vr(T1,2)} op_sel_hi:[1,1,0] neg_lo:[0,0,1] neg_hi:[0,0,1]
    v_fma_f32 v{Q1}, v{Q1}, s{S_SC}, -v{T1}
    v_exp_f32 v{K0}, v{K0}
    v_exp_f32 v{K0+1}, v{K0+1}
    v_exp_f32 v{K0+2}, v{K0+2}
    v_cvt_pk_bf16_f32 v{K0}, v{K0}, v{K0+1}
    v_exp_f32 v{K0+3}, v{K0+3}
    v_exp_f32 v{Q1}, v{Q1}
    v_cvt_pk_bf16_f32 v{K0+2}, v{K0+2}, v{K0+3}
    v_mov_b32_dpp v{KX}, v{K0} {QH}
    v_mov_b32_dpp v{KX+2}, v{K0} {QL}
    v_mov_b32_dpp v{KX+1}, v{K0+2} {QH}
    v_mov_b32_dpp v{KX+3}, v{K0+2} {QL}
    v_mov_b32_dpp v{T0}, v{Q1} {QH}
    v_mov_b32_dpp v{T1}, v{Q1} {QL}
    v_mfma_f32_16x16x32_bf16 {vr(KX+4,4)}, {vr(K1,4)}, {vr(KX,4)}, 0
    """)
    mk('pv')
    p.I(f"""
    v_cvt_pk_bf16_f32 v0, v{T0}, v{T1}
    v_cvt_pk_bf16_f32 v3, v{T0}, v{T1}
    v_mfma_f32_16x16x32_bf16 {vr(V1,4)}, {vr(VX+4,4)}, {vr(KX,4)}, 0
    """)
    OL(); p.I(Z())
    p.I(f'v_mfma_f32_16x16x32_bf16 {vr(K0,4)}, {vr(VX,4)}, {vr(KX,4)}, 0')
    OL(); p.I(Z() or cm.pop(0))
    p.I(f'v_mfma_f32_16x16x16_bf16 {vr(KX+4,4)}, {vr(K1,2)}, v[0:1], {vr(KX+4,4)}')
    OL(); p.I(Z() or cm.pop(0)); p.I(cm.pop(0))
    p.I(f'v_mfma_f32_16x16x16_bf16 {vr(V1,4)}, {vr(V0+2,2)}, v[2:3], {vr(V1,4)}')
    p.I(cm.pop(0))
    p.I(f'v_mfma_f32_16x16x16_bf16 {vr(K0,4)}, {vr(V0+2,2)}, v[0:1], {vr(K0,4)}')
    p.I(f'v_rcp_f32 v{Q1}, v{KX+4}')
    while ol: OL()
    while zl: p.I(Z())
    for x in cm: p.I(x)
    p.I(f"""
    s_cmp_ge_u32 s{S_STEP}, {NSTEP-1}
    v_mul_f32 v{V1}, v{V1}, v{Q1}
    v_mul_f32 v{V1+1}, v{V1+1}, v{Q1}
    v_pk_mul_f32 {vr(V1+2,2)}, {vr(V1+2,2)}, {vr(Q1,2)} op_sel_hi:[1,0]
    v_pk_mul_f32 {vr(K0,2)}, {vr(K0,2)}, {vr(Q1,2)} op_sel_hi:[1,0]
    v_pk_mul_f32 {vr(K0+2,2)}, {vr(K0+2,2)}, {vr(Q1,2)} op_sel_hi:[1,0]
    v_cvt_pk_bf16_f32 v{K0}, v{K0}, v{V1}
    v_cvt_pk_bf16_f32 v{K0+1}, v{K0+1}, v{V1+1}
    v_cvt_pk_bf16_f32 v{K0+2}, v{K0+2}, v{V1+2}
    v_cvt_pk_bf16_f32 v{K0+3}, v{K0+3}, v{V1+3}
    """)
    p.I(f'ds_write_b128 v{A_STW}, {vr(K0,4)} offset:{L_STG}', tag='ow')
    mk('ow')
    OA = [K0, Q1, K1, V0]
    def cv(t):
        a = WA + 2 * t
        return f'v_cvt_pk_bf16_f32 v{a}, v{a}, v{a+1}'
    def pst(t): return lambda: p.I(f'buffer_store_dword v{WA+2*t}, v{A_PST}, s[{S_SRD}:{S_SRD+3}], s{S_TO+t} offen {st}', tag='ps')
    def p_poll(tag=None):
        p.I(f'global_load_dwordx4 v[4:7], v{A_L16}, s[{S_PP}:{S_PP+1}] sc1', tag=tag)
        p.I(f'global_load_dwordx4 v[12:15], v{A_L16}, s[{S_PP}:{S_PP+1}] offset:1024 sc1', tag=tag)
    def W(pr, kap, *shadow): smf(WA + 4 * pr, OA[kap], ('o', pr, kap), *shadow)
    sent = [f'v_mov_b64 v[0:1], {vr(C_SENT,2)}', f'v_mov_b64 v[2:3], {vr(C_SENT,2)}']
    W(0, 0, MK('w0'), 's_cbranch_scc1 L_ch_done')
    W(1, 0, wl(('o', 3, 2), 0), sent[0])
    nw = cfg.get('nw', 3)
    def obar():
        p.wait(lg='ow')
        mk('b3a')
        p.I('s_barrier')
        mk('b3b')
        for kap in (1, 2, 3):
            p.I(f'ds_read_b128 {vr(OA[kap],4)}, v{areg[kap]} offset:{L_STG}', tag=('or', kap))
    if nw == 2: obar()
    W(2, 0, wl(('o', 3, 2), 1), sent[1])
    if nw == 3: obar()
    W(3, 0, wl(('o', 3, 3), 0), wl(('o', 3, 3), 1))
    if nw == 4: obar()
    p.I(f"""
    s_add_u32 s{S_STEP}, s{S_STEP}, 1
    s_mov_b64 s[{S_PPO}:{S_PPO+1}], s[{S_PP}:{S_PP+1}]
    s_xor_b32 s{S_PTOG}, s{S_PTOG}, 0x40000
    s_add_u32 s{S_T1}, s{S_STEP}, 1
    s_min_u32 s{S_T1}, s{S_T1}, 63
    s_cmp_eq_u32 s{S_LATE}, 1
    """)
    zw = [zacc[0], zacc[1], zacc[10], zacc[11]]
    emit(zw[:2])
    p.wait(lg=('or', 1)); W(0, 1, MK('w1'))
    p.wait(lg=('or', 2)); W(0, 2)
    p.wait(lg=('or', 3)); W(0, 3, zw[2])
    W(1, 1, zw[3])
    W(1, 2, cv(0))
    W(1, 3, pst(0), cv(1))
    W(2, 1, pst(1))
    W(2, 2, cv(2))
    W(2, 3, pst(2), cv(3))
    W(3, 1, pst(3))
    dl = cfg.get('dl', 0)
    fl = []
    for kk in pre_keys: fl += [wl(kk, 0), wl(kk, 1)]
    fl = [x for pr in zip(fl, zacc[2:10]) for x in pr]
    ep = 0
    W(3, 2, cv(4))
    if dl:
        if dl == 4: W(3, 3, MK('w7'), cv(5))
        else: W(3, 3, pst(4), cv(5), pst(5), MK('w7'))
        n0 = cfg.get('n0', 4)
        emit([fl[0], fl[2], zacc[2], zacc[3], zacc[4]])
        p.I(cv(6)); p.I(cv(7))
        mk('we')
        fl = [fl[4], zacc[5], fl[6], zacc[6], fl[8], zacc[7], fl[10], zacc[8], fl[12], zacc[9], fl[14]]
        emit(fl[:n0]); nops(cfg.get('d1e', 0))
        p.I('s_cbranch_scc1 L_ch_noe'); p_poll('pe'); p.L('L_ch_noe')
        p.I('s_barrier')
        for t in range(8 - dl, 8): pst(t)()
        emit(fl[n0:]); fl = []
    else:
        W(3, 3, pst(4), cv(5), pst(5), MK('w7'))
        p.I(cv(6)); p.I(cv(7)); pst(6)(); pst(7)()
        mk('we')
    p.I('s_cbranch_scc1 L_ch_late')
    def kvpart(n, lab2):
        p.I(f's_waitcnt vmcnt({n})')
        if not nofl: p.I(f'v_cmp_ge_u32 vcc, s{S_T1}, v{V_FL}')
        emit(kvmove)
        if not nofl:
            p.I(f's_cbranch_vccnz L_ch_fl{lab2}'); p.L(f'L_ch_flok{lab2}')
        p.I(f'v_mov_b32 v{V_FS}, s{S_STEP}')
        if not nofl:
            p.I(f's_add_u32 s{S_T1}, s{S_T1}, {cfg.get("fla", 2)}\ns_min_u32 s{S_T1}, s{S_T1}, 63\nv_cmp_ge_u32 vcc, s{S_T1}, v{V_FL}\ns_cmp_lg_u64 vcc, 0\ns_cselect_b64 s[{S_NEED}:{S_NEED+1}], -1, 0')
    def diag():
        if cfg.get('stamps'):
            l = p.lab('L_ch_st')
            p.I(f's_cmp_eq_u32 s{S_STEP}, 3\ns_cbranch_scc0 {l}')
            p.I(f's_mov_b32 s100, 0\ns_mov_b32 s101, 0')
            if not marks: p.I('s_mov_b32 s73, 0')
            p.I(f's_memrealtime s[92:93]\ns_memtime s[94:95]\ns_waitcnt lgkmcnt(0)')
            p.L(l)
            if cfg.get('mid'):
                l = p.lab('L_ch_st')
                p.I(f's_cmp_eq_u32 s{S_STEP}, {cfg["mid"]}\ns_cbranch_scc0 {l}')
                p.I(f's_memrealtime s[74:75]\ns_memtime s[76:77]\ns_mov_b32 s78, s100\ns_mov_b32 s80, s101\ns_waitcnt lgkmcnt(0)\ns_sub_u32 s74, s74, s92\ns_sub_u32 s76, s76, s94')
                p.L(l)
    def attempt(y, me=False):
        p.I(f"""
        s_waitcnt vmcnt({y+1})
        v_mfma_f32_16x16x32_bf16 v[8:11], {vr(C_SELR,4)}, v[4:7], 0
        s_waitcnt vmcnt({y})
        v_mfma_f32_16x16x32_bf16 v[8:11], {vr(C_SELR,4)}, v[12:15], v[8:11]
        """)
        if me in (1, 3): m_ld(0)
        mk('h1r')
        p.I(f"""
        v_add_f32_dpp v8, v8, v8 row_ror:4 {DPP}
        v_add_f32_dpp v9, v9, v9 row_ror:4 {DPP}
        v_cmp_u_f32 vcc, v10, v10
        v_add_f32_dpp v8, v8, v8 row_ror:8 {DPP}
        v_add_f32_dpp v9, v9, v9 row_ror:8 {DPP}
        v_cvt_pk_bf16_f32 v8, v8, v9
        """)
        if me in (2, 3): m_ld(0)
        p.I(f'global_store_dword v{A_MST}, v8, s[{S_MS}:{S_MS+1}] {st}')
    def retry(name, back):
        p.L(name)
        if cfg.get('stamps'): p.I('s_add_u32 s100, s100, 1')
        p_poll(); attempt(0)
        p.I(f"""
        s_cbranch_vccz {back}
        s_sub_u32 s{S_SPIN}, s{S_SPIN}, 1
        s_cbranch_scc0 {name}
        s_branch L_end
        """)
    n1e = cfg.get('n1e', 16)
    if not dl:
        emit(fl[:n1e]); nops(cfg.get('d1e', 16)); p_poll('pe'); emit(fl[n1e:])
    kvpart(10, 'e')
    diag()
    attempt(dl)
    p.I('s_cbranch_vccnz L_ch_eret')
    p.L('L_ch_eok')
    mk('ms')
    nops(cfg.get('d2e', 24))
    mk('h2a')
    eg = cfg.get('eg')
    if eg is None: p.I('s_waitcnt lgkmcnt(0)\ns_branch L_ch_mestart')
    else:
        m_ld(0)
        if eg > 0:
            nops(eg); m_ld(0)
        p.I(f's_waitcnt vmcnt({1 if eg > 0 else 0}) lgkmcnt(0)\ns_branch L_ch_chk')
    p.L('L_ch_late')
    emit(fl)
    kvpart(8, 'l')
    nops(cfg.get('d1l', 30))
    mk('h1a')
    p_poll()
    diag()
    lpre = cfg.get('lpre')
    if lpre is not None:
        nops(lpre); m_ld(0)
    attempt(0 if lpre is None else 1, me=cfg.get('lme', 3))
    p.I('s_cbranch_vccnz L_ch_lret')
    p.L('L_ch_lok')
    mk('ms')
    mk('h2a')
    nops(cfg.get('d2l', 0))
    if cfg.get('lw'): p.I('s_waitcnt vmcnt(1)')
    p.I('s_waitcnt lgkmcnt(0)\ns_branch L_ch_chk')
    retry('L_ch_eret', 'L_ch_eok')
    retry('L_ch_lret', 'L_ch_lok')
    if two:
        p.L('L_ch_mlfail2')
        p.I(f"""
        s_waitcnt vmcnt({n2}) lgkmcnt(0)
        v_max3_u32 v28, v4, v5, v6
        v_max_u32 v28, v28, v7
        v_cmp_le_u32 vcc, s{S_THR}, v28
        ds_write_b128 v{A_STW}, {vr(MF+4,4)} offset:{L_STG+1024}
        s_cbranch_vccz L_ch_mlok
        """)
    p.L('L_ch_mlfail')
    m_ld(1)
    if cfg.get('stamps') and not marks: p.I('s_add_u32 s73, s73, 1')
    p.I(f"""
    s_waitcnt vmcnt(0) lgkmcnt(0)
    v_max3_u32 v28, v4, v5, v6
    v_max_u32 v28, v28, v7
    v_cmp_le_u32 vcc, s{S_THR}, v28
    ds_write_b128 v{A_STW}, {vr(MF+4,4)} offset:{L_STG+1024}
    s_cbranch_vccz L_ch_mlok
    s_sub_u32 s{S_SPIN}, s{S_SPIN}, 1
    s_cbranch_scc0 L_ch_mlfail
    s_branch L_end
    """)
    if not nofl:
        fl_spin('L_ch_fle', 'L_ch_floke'); fl_spin('L_ch_fll', 'L_ch_flokl')
    p.L('L_ch_done')
    p.I(pubst)
    dbgt(p, cfg, 3)
    p.I(f'''
    v_mov_b32 v29, 65
    s_waitcnt vmcnt(0)
    s_barrier
    s_mov_b64 exec, 1
    global_store_dword v{A_L16}, v29, s[{S_FLC}:{S_FLC+1}] sc1
    s_mov_b64 exec, -1
    ''')
    if cfg.get('stamps'):
        p.I(f"""
        s_memtime s[60:61]
        s_memrealtime s[58:59]
        s_waitcnt lgkmcnt(0)
        s_sub_u32 s60, s60, s94
        v_mov_b32 v0, s60
        v_mov_b32 v1, s58
        v_mov_b32 v2, s92
        v_mov_b32 v3, s33
        v_mov_b32 v4, s64
        v_mov_b32 v5, s100
        v_mov_b32 v6, s101
        v_mov_b32 v7, s73
        s_lshl_b32 s{S_T0}, s{S_H}, 2
        s_add_u32 s{S_T0}, s{S_T0}, s{S_W}
        s_lshl_b32 s{S_T0}, s{S_T0}, 7
        s_add_u32 s{S_T0}, s{S_T0}, {TS}
        v_mov_b32 v30, s{S_T0}
        """)
        for i in range(10): p.I(f'v_mov_b32 v{8+i}, s{72+2*i}')
        p.I('s_mov_b64 exec, 1')
        for q in range(5): p.I(f'global_store_dwordx4 v30, {vr(4*q,4)}, s[{S_WS}:{S_WS+1}] offset:{16*q}')
    p.I('s_branch L_end')

def relabel(p, start, old, new):
    for i in range(start, len(p.items)):
        it = p.items[i]
        if isinstance(it, Inst):
            if it.kind == 'branch' and it.target.startswith(old):
                p.items[i] = Inst(it.text.replace(old, new))
        elif it[0] == 'label' and it[1].startswith(old):
            p.items[i] = ('label', it[1].replace(old, new))

def build(cfg):
    import workers as Wk
    p = Prog()
    only = cfg.get('only')
    NARR[0] = 64 if only == 'chain' else 256
    FORCE[0] = cfg.get('force_safe', 0)
    Wk.TL[0] = cfg.get('tl', 0)
    Wk.CFG.clear(); Wk.CFG.update(cfg)
    common_prologue(p, cfg)
    p.I(f"""
L_role:
    s_cmp_ge_u32 s{S_H}, 32
    s_cbranch_scc1 L_norole
    s_cmp_ge_u32 s{S_XCC}, 2
    s_cbranch_scc1 {'L_end' if only == 'chain' else 'L_worker'}
    {'s_branch L_norole' if only == 'kv' else ''}
    s_mov_b32 s{S_M}, s{S_XCC}
    """)
    select_model(p)
    p.I(f's_cmp_eq_u32 s{S_MODE}, 1\ns_cbranch_scc1 L_chain_safe')
    chain(p, cfg, '', 'L_ch')
    if only == 'chain':
        p.L('L_norole'); p.L('L_safe'); p.L('L_chain_safe'); p.I('s_branch L_end')
        return finish(p, cfg)
    p.L('L_worker')
    p.I(f"""
    s_cmp_ge_u32 s{S_XCC}, 5
    s_cselect_b32 s{S_M}, 1, 0
    s_cselect_b32 s{S_T1}, 5, 2
    s_sub_u32 s{S_XCC}, s{S_XCC}, s{S_T1}
    """)
    if cfg.get('mix', 1):
        p.I(f"""
        s_lshl_b32 s{S_T0}, s{S_XCC}, 5
        s_add_u32 s{S_T0}, s{S_T0}, s{S_H}
        s_mul_i32 s{S_H}, s{S_T0}, 0x5556
        s_lshr_b32 s{S_H}, s{S_H}, 16
        s_mul_i32 s{S_T1}, s{S_H}, 3
        s_sub_u32 s{S_XCC}, s{S_T0}, s{S_T1}
        """)
    select_model(p)
    p.I(f"""
    s_cmp_eq_u32 s{S_XCC}, 1
    s_cbranch_scc1 L_vw
    s_cmp_eq_u32 s{S_XCC}, 2
    s_cbranch_scc1 {'L_norole' if only == 'kv' else 'L_qw'}
    """)
    p.reset_cnt(); Wk.kv_worker(p, cfg, 'k', 'L_k')
    p.I(f's_branch L_ow')
    p.L('L_vw')
    p.reset_cnt(); Wk.kv_worker(p, cfg, 'v', 'L_v')
    p.L('L_ow')
    if only == 'kv':
        Wk.ev_dump(p); p.I('s_branch L_end')
    p.reset_cnt(); Wk.o_worker(p, cfg, 'L_o')
    p.L('L_qw')
    p.reset_cnt(); Wk.q_worker(p, cfg, 'L_q')
    p.L('L_norole')
    arrive(p, 'L_n'); wait_all(p, 'L_n')
    p.I('s_branch L_end')
    p.L('L_safe')
    load_args(p)
    p.I(f"""
    s_mov_b32 s{S_MODE}, 1
    s_and_b32 s{S_XCC}, s2, 7
    s_lshr_b32 s{S_H}, s2, 3
    v_mbcnt_lo_u32_b32 v0, -1, 0
    v_mbcnt_hi_u32_b32 v0, -1, v0
    s_waitcnt vmcnt(0) lgkmcnt(0)
    s_barrier
    s_branch L_role
    """)
    p.L('L_chain_safe')
    n0 = len(p.items)
    p.reset_cnt(); chain(p, cfg, 'sc1', 'L_ch')
    relabel(p, n0, 'L_ch', 'L_cs')
    return finish(p, cfg)

def finish(p, cfg):
    p.L('L_end')
    if cfg.get('dbgt'):
        p.I(f's_load_dwordx2 s[{S_DBG}:{S_DBG+1}], s[0:1], 120\ns_waitcnt vmcnt(0) lgkmcnt(0)')
        dbgt(p, cfg, 4)
    p.I('s_endpgm')
    n = p.fix_hazards(cfg.get('verbose', False))
    errs = p.check_branches()
    for e in errs: print(e)
    assert not errs
    head = f'''; @launch grid=(256,1,1) block=(256,1,1) lds=163840
.amdgcn_target "amdgcn-amd-amdhsa--gfx950"
.text
.globl {NAME}
.p2align 8
.type {NAME},@function
{NAME}:
'''
    tail = f'''.section .rodata,"a"
.p2align 6
.amdhsa_kernel {NAME}
  .amdhsa_next_free_vgpr 512
  .amdhsa_next_free_sgpr 102
  .amdhsa_accum_offset 256
  .amdhsa_group_segment_fixed_size 0
  .amdhsa_kernarg_size 136
  .amdhsa_user_sgpr_count 2
  .amdhsa_user_sgpr_kernarg_segment_ptr 1
  .amdhsa_system_sgpr_workgroup_id_x 1
  .amdhsa_float_denorm_mode_32 3
.end_amdhsa_kernel
'''
    return head + p.text() + tail

if __name__ == '__main__':
    cfg = eval(sys.argv[2]) if len(sys.argv) > 2 else {}
    open(sys.argv[1], 'w').write(build(cfg))
```

```python
from asmlib import *
import kern as K
MB = 1 << 20
S_W, S_H, S_M, S_WS, S_SRD, S_SPIN = K.S_W, K.S_H, K.S_M, K.S_WS, K.S_SRD, K.S_SPIN
T0, T1, T2, T3 = K.S_T0, K.S_T1, K.S_T2, K.S_T3
S_PL, S_PH = K.S_PL, K.S_PH
S_C4K = 32
S_KV, S_FLG, S_PUB, S_OF, S_FL2, S_FL3 = 40, 42, 44, 46, 48, 50
S_IT = 26
S_SC = 67
S_SRD2 = 52
RING, ACC, QF, MASK = 128, 160, 192, 224
V_L16, V_LHI, V_KA, V_VA, V_KM, V_VM, V_Z, V_T = 240, 241, 242, 243, 244, 245, 246, 248
add64 = K.add64

V_EV = 247
TL = [0]
CFG = {}
def ev(p, idx):
    if TL[0]:
        if isinstance(idx, tuple): p.I(f's_add_u32 m0, s{idx[0]}, {idx[1]}')
        else: p.I(f's_mov_b32 m0, {idx}')
        p.I(f's_memrealtime s[90:91]\ns_waitcnt lgkmcnt(0)\nv_writelane_b32 v{V_EV}, s90, m0')
        p.lg = []
def ev_dump(p):
    if TL[0]:
        p.I(f"""
        s_lshl_b32 s{T0}, s{K.S_XCC}, 5
        s_add_u32 s{T0}, s{T0}, s{S_H}
        s_lshl_b32 s{T0}, s{T0}, 2
        s_add_u32 s{T0}, s{T0}, s{S_W}
        s_lshl_b32 s{T0}, s{T0}, 8
        s_add_u32 s{T0}, s{T0}, {K.TS + 131072}
        v_lshrrev_b32 v224, 2, v{V_L16}
        v_add_u32 v224, s{T0}, v224
        global_store_dword v224, v{V_EV}, s[{S_WS}:{S_WS+1}]
        """)
def base_consts(p):
    if TL[0]:
        p.I(f'v_mov_b32 v{V_EV}, 0\ns_waitcnt lgkmcnt(0)\nv_writelane_b32 v{V_EV}, s94, 0')
        ev(p, 39)
    p.I(f'''
    v_lshlrev_b32 v{V_L16}, 4, v0
    v_add_u32 v{V_LHI}, 0x10000, v{V_L16}
    v_mov_b32 v{V_Z}, 0
    s_mov_b32 s{S_PL}, 0x05040100
    s_mov_b32 s{S_PH}, 0x07060302
    ''')
    for k in range(8): p.I(f's_mov_b32 s{S_C4K+k}, {4096*k}')
    p.I(f'''
    v_lshrrev_b32 v1, 5, v0
    v_lshlrev_b32 v1, 8, v1
    v_and_b32 v2, 8, v0
    v_lshl_add_u32 v2, v2, 7, v1
    v_and_b32 v3, 16, v0
    v_lshl_add_u32 v2, v3, 3, v2
    v_and_b32 v3, 7, v0
    v_lshl_add_u32 v{V_KA}, v3, 4, v2
    v_and_b32 v3, 16, v0
    v_lshl_add_u32 v2, v3, 6, v1
    v_and_b32 v3, 15, v0
    v_lshl_add_u32 v2, v3, 4, v2
    v_add_u32 v{V_VA}, 0x800, v2
    ''')

def xf_convert(p, half, R, SB):
    p.I(f'''
    s_add_u32 s{T0}, s{S_H}, {32*half}
    s_lshl_b32 s{T0}, s{T0}, 15
    v_and_b32 v1, 31, v0
    v_lshlrev_b32 v1, 10, v1
    v_lshrrev_b32 v2, 5, v0
    v_lshl_add_u32 v1, v2, 4, v1
    s_lshl_b32 s{T1}, s{S_W}, 8
    s_add_u32 s{T1}, s{T1}, s{T0}
    v_add_u32 v1, s{T1}, v1
    ''')
    for i in range(8):
        p.I(f'global_load_dwordx4 {vr(R+4*i,4)}, v1, s[{K.S_X}:{K.S_X+1}] offset:{32*i}', tag=('xc', half, i))
    p.I(f'''
    s_lshl_b32 s{T1}, s{S_W}, 13
    s_add_u32 s{T0}, s{T0}, s{T1}
    s_add_u32 s{T0}, s{T0}, {K.XF + 4096}
    ''')
    p.I('\n'.join(add64(SB, S_WS, f's{T0}')))
def xf_store(p, half, R, SB):
    for i in range(8):
        p.wait(vm=('xc', half, i))
        p.I(f'global_store_dwordx4 v{V_L16}, {vr(R+4*i,4)}, s[{SB}:{SB+1}] offset:{1024*i-4096} sc1')

V_WA = 232
WA = [V_WA]
def projw_issue(p, wptr, kind, xd=False, mid=None):
    L = V_T + 1
    p.I(f"""
    v_mov_b32 v{L}, v0
    v_lshrrev_b32 v2, 4, v0
    v_lshlrev_b32 v3, 2, v2
    v_and_b32 v1, 15, v0
    v_xor_b32 v1, v1, v3
    v_lshlrev_b32 v3, 13, v2
    v_lshl_add_u32 v3, v1, 4, v3
    s_lshl_b32 s{T0}, s{S_W}, 15
    s_lshl_b32 s{T1}, s{S_H}, 8
    s_add_u32 s{T0}, s{T0}, s{T1}
    v_add_u32 v{V_T}, s{T0}, v3
    s_lshl_b32 s{T2}, s{S_W}, 10
    """)
    p.I(f"""
    v_lshrrev_b32 v1, 5, v0
    v_lshlrev_b32 v1, 11, v1
    v_and_b32 v2, 12, v0
    v_lshl_add_u32 v1, v2, 6, v1
    v_lshl_add_u32 v1, v2, 4, v1
    v_and_b32 v2, 1, v0
    v_lshl_add_u32 v1, v2, 3, v1
    v_and_b32 v2, 2, v0
    v_and_b32 v3, 16, v0
    """)
    if kind == 'v': p.I('v_lshl_add_u32 v1, v2, 3, v1\nv_lshl_add_u32 v1, v3, 1, v1')
    else: p.I('v_lshl_add_u32 v1, v2, 4, v1\nv_add_u32 v1, v3, v1')
    for et in range(4):
        p.I(f'v_xor_b32 v{WA[0]+2*et}, {64*et}, v1\nv_add_u32 v{WA[0]+2*et+1}, 0x10000, v{WA[0]+2*et}')
    K.set_srd(p, wptr, 4 * MB)
    if xd:
        p.I(f"""
        v_and_b32 v{V_T+2}, 31, v{V_T+1}
        v_lshlrev_b32 v{V_T+2}, 10, v{V_T+2}
        v_lshrrev_b32 v{V_T+3}, 5, v{V_T+1}
        v_lshl_add_u32 v{V_T+2}, v{V_T+3}, 4, v{V_T+2}
        s_lshl_b32 s{T0}, s{S_W}, 15
        v_add_u32 v{V_T+2}, s{T0}, v{V_T+2}
        """)
    for i in range(32):
        p.I(f's_add_u32 m0, s{T2}, {i*4096}\ns_mov_b32 s{T3}, {i*16*8192}')
        p.I(f'buffer_load_dwordx4 v{V_T}, s[{S_SRD}:{S_SRD+3}], s{T3} offen lds', tag='pw')
        if mid and i == 7: mid()
        if xd:
            if i >= 28: p.I('s_waitcnt vmcnt(56)')
            p.I(f'global_load_dwordx4 {vr(4*i,4)}, v{V_T+2}, s[{K.S_X}:{K.S_X+1}] offset:{32*i}', tag='pw')

def xs(buf, ks):
    if buf == 0 and WA[0] == 120 and ks >= 30: return ar(232 + 4 * (ks - 30), 4)
    return vr(4 * ks, 4) if buf == 0 else ar(4 * ks, 4)
def xload(p, buf, ks):
    p.I(f'buffer_load_dwordx4 {xs(buf,ks)}, v{V_L16}, s[{S_SRD}:{S_SRD+3}], s{S_C4K+(ks>>2)} offen offset:{(ks&3)*1024} {CFG.get("xm","sc1")}', tag=('x', buf))
RD = 6
def wread(p, phi):
    phi %= 128
    et, ks = phi >> 5, phi & 31
    for x2 in range(2):
        p.I(f'ds_read_b64_tr_b16 {vr(RING+4*(phi%8)+2*x2,2)}, v{WA[0]+2*et+(ks>>4)} offset:{(ks&15)*4096 + x2*1024}', tag=('w', phi))

def xdirect(p):
    p.I(f"""
    v_and_b32 v{V_T+2}, 31, v{V_T+1}
    v_lshlrev_b32 v{V_T+2}, 10, v{V_T+2}
    v_lshrrev_b32 v{V_T+3}, 5, v{V_T+1}
    v_lshl_add_u32 v{V_T+2}, v{V_T+3}, 4, v{V_T+2}
    s_lshl_b32 s{T0}, s{S_W}, 15
    v_add_u32 v{V_T+2}, s{T0}, v{V_T+2}
    """)
    for ks in range(32):
        p.I(f'global_load_dwordx4 {vr(4*ks,4)}, v{V_T+2}, s[{K.S_X}:{K.S_X+1}] offset:{32*ks}', tag=('x', 0))

def proj_setup(p):
    p.I(f'''
    s_lshl_b32 s{T0}, s{S_W}, 15
    s_add_u32 s{T0}, s{T0}, {K.XF}
    s_add_u32 s{S_SRD}, s{S_WS}, s{T0}
    s_addc_u32 s{S_SRD+1}, s{S_WS+1}, 0
    s_mov_b32 s{S_SRD+2}, 0x8000
    s_mov_b32 s{S_SRD+3}, 0x20000
    ''')
    p.I('\n'.join(add64(S_SRD, S_SRD, 4 * 32768)))
    p.I(f'''
    s_lshl_b32 s{T0}, s{S_W}, 19
    s_lshl_b32 s{T1}, s{S_H}, 14
    s_add_u32 s{T0}, s{T0}, s{T1}
    s_add_u32 s{S_SRD2}, s{S_WS}, s{T0}
    s_addc_u32 s{S_SRD2+1}, s{S_WS+1}, 0
    s_mov_b32 s{S_SRD2+2}, 0x4000
    s_mov_b32 s{S_SRD2+3}, 0x20000
    s_mov_b32 s{S_IT}, 0
    ''')

def proj_body(p, kind, buf, extra, ringcont=True, pf0=0, pfs=3, pref=True):
    nl = 0
    for et in range(4):
        acc = ACC + 16 * (et & 1)
        for ks in range(32):
            phi = 32 * et + ks
            if phi + RD < 128 or ringcont: wread(p, phi + RD)
            p.wait(lg=('w', phi))
            w = vr(RING + 4 * (phi % 8), 4)
            a, b = (xs(buf, ks), w) if kind == 'v' else (w, xs(buf, ks))
            p.I(f'v_mfma_f32_32x32x16_bf16 {vr(acc,16)}, {a}, {b}, {"0" if ks == 0 else vr(acc,16)}')
            if pref and phi >= pf0 and (phi - pf0) % pfs == pfs - 1 and nl < 32:
                if not CFG.get('nox'): xload(p, 1 - buf, nl)
                nl += 1
            for x in extra.get((et, ks), []):
                if callable(x): x()
                else: p.I(x)
    if pref: p.I('\n'.join(add64(S_SRD, S_SRD, 4 * 32768)))

def pack(dst, acc):
    return [f'v_cvt_pk_bf16_f32 v{dst+i}, v{acc+2*i}, v{acc+2*i+1}' for i in range(8)]

def kv_worker(p, cfg, kind, lab):
    half = 0 if kind == 'k' else 1
    base_consts(p)
    WA[0] = V_WA
    p.I(f"""
    s_lshl_b32 s{T0}, s{S_H}, 9
    s_lshl_b32 s{T1}, s{S_W}, 7
    s_add_u32 s{T0}, s{T0}, s{T1}
    s_add_u32 s{T0}, s{T0}, {K.FL + (K.F_K if kind == 'k' else K.F_V)}
    """)
    p.I('\n'.join(add64(S_FLG, S_WS, f's{T0}')))
    p.I(f'v_mov_b32 v{V_T+5}, s{S_W}\ns_mov_b64 exec, 1\nglobal_store_dword v{V_Z}, v{V_T+5}, s[{S_FLG}:{S_FLG+1}] sc1\ns_mov_b64 exec, -1')
    p.I(f"""
    s_mov_b32 s{S_SRD2}, s{K.S_X}
    s_and_b32 s{S_SRD2+1}, s{K.S_X+1}, 0xffff
    s_mov_b32 s{S_SRD2+2}, {2*MB}
    s_mov_b32 s{S_SRD2+3}, 0x20000
    s_lshl_b32 s{T2}, s{S_W}, 15
    """)
    for r in range(32):
        p.I(f'v_xor_b32 v{128+(r&15)}, {(r&15)*16}, v{V_L16}' if r < 16 else 's_nop 0')
        p.I(f's_add_u32 m0, s{T2}, {32768 + r*1024}\ns_add_u32 s{T3}, s{T2}, {r*1024}')
        p.I(f'buffer_load_dwordx4 v{128+(r&15)}, s[{S_SRD2}:{S_SRD2+3}], s{T3} offen lds', tag='x0')
    def mid():
        p.I(f"""
        v_and_b32 v144, 31, v{V_T+1}
        v_lshlrev_b32 v145, 10, v144
        v_and_b32 v144, 15, v144
        v_lshrrev_b32 v146, 5, v{V_T+1}
        v_xor_b32 v144, v144, v146
        v_lshl_add_u32 v145, v144, 4, v145
        s_lshl_b32 s{T0}, s{S_W}, 15
        s_add_u32 s{T0}, s{T0}, 0x8000
        v_add_u32 v145, s{T0}, v145
        """)
        for q in range(8): p.I(f'v_xor_b32 v{128+q}, {q*32}, v145')
        p.wait(vm='x0')
        for ks in range(32):
            p.I(f'ds_read_b128 {vr(4*ks,4)}, v{128+(ks&7)} offset:{(ks>>3)*256}')
            if ks % 8 == 7: p.wait(lg='all')
        K.arrive(p, lab, keep=8)
        ev(p, 19)
    projw_issue(p, K.S_WK if kind == 'k' else K.S_WV, kind, mid=mid)
    ev(p, 58)
    proj_setup(p)
    ev(p, 57)
    p.I('s_waitcnt vmcnt(0)\ns_barrier')
    ev(p, 59)
    p.reset_cnt()
    for phi in range(RD): wread(p, phi)
    va = V_KA if kind == 'k' else V_VA
    def epi(et, tag):
        acc = ACC + 16 * (et & 1); pk = pack(QF + 8 * (et & 1), acc)
        st = [lambda f=f: p.I(f'buffer_store_dwordx4 {vr(QF+8*(et&1)+4*f,4)}, v{va}, s[{S_SRD2}:{S_SRD2+3}], s{S_C4K+et} offen offset:{512*f} {CFG.get("stm","sc1")}', tag=tag) for f in range(2)]
        if CFG.get('nost'): st = [lambda: None, lambda: None]
        return pk, st
    def sched(extra, et_run, et, tag, post=()):
        pk, st = epi(et, tag)
        for i in range(4): extra.setdefault((et_run, 3 + i), []).extend(pk[2*i:2*i+2])
        extra.setdefault((et_run, 6), []).append(st[0]); extra.setdefault((et_run, 9), []).append(st[1])
        extra[(et_run, 9)].extend(post)
    def flag():
        p.wait(vm='e3')
        p.I(f's_lshl_b32 s{T0}, s{S_IT}, 2\ns_add_u32 s{T0}, s{T0}, s{S_W}\nv_mov_b32 v{V_T}, s{T0}')
        p.I(f's_mov_b64 exec, 1\nglobal_store_dword v{V_Z}, v{V_T}, s[{S_FLG}:{S_FLG+1}] sc1\ns_mov_b64 exec, -1')
    adv = add64(S_SRD2, S_SRD2, 4 * 32 * 16384)
    S_OI, S_LB, S_SRD3 = 56, 57, 72
    V_OA, V_OT = 228, 229
    L = V_T + 1
    if cfg.get('mix', 1): p.I(f's_lshl_b32 s{S_OI}, s{S_H}, 1\ns_add_u32 s{S_OI}, s{S_OI}, s{K.S_XCC}')
    else: p.I(f's_lshl_b32 s{S_OI}, s{K.S_XCC}, 5\ns_add_u32 s{S_OI}, s{S_OI}, s{S_H}')
    p.I(f"""
    v_lshrrev_b32 v224, 2, v{L}
    v_lshlrev_b32 v224, 10, v224
    v_and_b32 v225, 3, v{L}
    v_lshl_add_u32 v224, v225, 4, v224
    s_lshl_b32 s{T0}, s{S_W}, 20
    s_and_b32 s{T1}, s{S_OI}, 15
    s_lshl_b32 s{T1}, s{T1}, 6
    s_add_u32 s{T0}, s{T0}, s{T1}
    v_add_u32 v{V_OA}, s{T0}, v224
    s_lshl_b32 s{S_LB}, s{S_W}, 13
    s_add_u32 s{S_LB}, s{S_LB}, 0x20000
    v_lshrrev_b32 v224, 5, v{L}
    v_lshlrev_b32 v224, 8, v224
    v_and_b32 v226, 12, v{L}
    v_lshl_add_u32 v224, v226, 4, v224
    v_and_b32 v226, 16, v{L}
    v_lshl_add_u32 v224, v226, 1, v224
    v_lshl_add_u32 v224, v225, 3, v224
    v_add_u32 v{V_OT}, s{S_LB}, v224
    s_mov_b32 s{S_SRD3}, s{K.S_WO}
    s_and_b32 s{S_SRD3+1}, s{K.S_WO+1}, 0xffff
    s_mov_b32 s{S_SRD3+2}, {4*MB}
    s_mov_b32 s{S_SRD3+3}, 0x20000
    """)
    def wo_dma(q, i):
        def f():
            if i == 0: p.wait(lg=('ot', q - 1))
            p.I(f's_add_u32 m0, s{S_LB}, {i*1024}\ns_mov_b32 s{T3}, {q*131072 + i*16384}')
            p.I(f'buffer_load_dwordx4 v{V_OA}, s[{S_SRD3}:{S_SRD3+3}], s{T3} offen lds', tag=('ow', q))
        return f
    def wo_rd(q, fr):
        def f():
            if fr == 0: p.wait(vm=('ow', q))
            for x in range(2):
                p.I(f'ds_read_b64_tr_b16 {wof(8*q+fr, 2*x, 2)}, v{V_OT} offset:{fr*1024 + x*512}', tag=('ot', q))
        return f
    def body(buf, first, wo=None):
        extra = {}
        if not first:
            sched(extra, 0, 3, 'e3', adv)
            extra.setdefault((1, 1), []).append(flag)
        for et in range(3): sched(extra, et + 1, et, 'e')
        if wo is not None:
            for et in range(4):
                q = 4 * wo + et
                for i in range(8):
                    extra.setdefault((et, i), []).append(wo_dma(q, i))
                    extra.setdefault((et, 23 + i), []).append(wo_rd(q, i))
        if first:
            def wa():
                lg = list(p.lg); K.wait_all(p, lab); p.lg = lg
                ev(p, 2)
            extra.setdefault((1, 31), []).append(wa)
            proj_body(p, kind, buf, extra, pf0=64, pfs=1)
        else: proj_body(p, kind, buf, extra, pref=(wo != 1), ringcont=(wo != 1))
        p.I(f's_add_u32 s{S_IT}, s{S_IT}, 1')
        ev(p, (S_IT, 2))
    p.wait(vm='all')
    if TL[0]: p.I('s_memtime s[88:89]')
    ev(p, 1)
    ev(p, 37)
    body(0, True)
    lg0 = list(p.lg)
    p.L(f'{lab}_loop')
    p.I('s_waitcnt vmcnt(2)'); p.vm = []
    body(1, False)
    p.I(f's_cmp_ge_u32 s{S_IT}, 14\ns_cbranch_scc1 {lab}_fin')
    p.I('s_waitcnt vmcnt(2)'); p.vm = []
    body(0, False)
    assert p.lg == lg0
    p.I(f's_branch {lab}_loop')
    p.L(f'{lab}_fin')
    p.I('s_waitcnt vmcnt(2)'); p.vm = []
    body(0, False, 0)
    p.wait(vm=('x', 1))
    body(1, False, 1)
    if TL[0]: p.I(f's_memtime s[86:87]\ns_waitcnt lgkmcnt(0)\ns_sub_u32 s86, s86, s88\nv_writelane_b32 v{V_EV}, s86, 38')
    pk, st = epi(3, 'e3')
    for x in pk: p.I(x)
    for x in st: x()
    flag()
    p.I(f's_mov_b32 s{S_H}, s{S_OI}\ns_waitcnt lgkmcnt(0)')
    p.reset_cnt()

def wof(k, o=0, n=4):
    return ar(128 + 4 * k + o, n) if k < 32 else vr(4 * (k - 32) + o, n)

def poll_flags(p, lab, sbase, nl, need_s, vaddr, sleep=2):
    p.I(f'''
{lab}:
    global_load_dword v{V_T}, v{vaddr}, s[{sbase}:{sbase+1}] sc1
    s_waitcnt vmcnt(0)
    v_cmp_gt_u32 vcc, s{need_s}, v{V_T}
    s_cbranch_vccz {lab}_ok
    s_sleep {sleep}
    s_sub_u32 s{S_SPIN}, s{S_SPIN}, 1
    s_cbranch_scc0 {lab}
    s_branch L_end
{lab}_ok:
    ''')
    p.vm = []

def q_worker(p, cfg, lab):
    base_consts(p)
    L = V_T + 1
    p.I(f'''
    s_lshl_b32 s{T0}, s{S_W}, 12
    s_lshl_b32 s{T1}, s{S_H}, 7
    s_add_u32 s{T0}, s{T0}, s{T1}
    s_add_u32 s{T0}, s{T0}, {K.FL + K.F_O}
    ''')
    p.I('\n'.join(add64(S_FLG, S_WS, f's{T0}')))
    p.I(f's_mov_b64 exec, 1\nglobal_store_dword v{V_Z}, v{V_Z}, s[{S_FLG}:{S_FLG+1}] sc1\ns_mov_b64 exec, -1')
    xf_convert(p, 0, 160, S_FL3)
    xf_convert(p, 1, 192, S_FL2)
    xf_store(p, 0, 160, S_FL3)
    xf_store(p, 1, 192, S_FL2)
    ev(p, 57)
    WA[0] = 120
    K.arrive(p, lab)
    ev(p, 19)
    p.I(f'v_mov_b32 v{L}, v0')
    if not cfg.get('qwait', 0): projw_issue(p, K.S_WQ, 'q')
    p.I(f'''
    s_lshl_b32 s{T0}, s{S_H}, 9
    s_add_u32 s{T2}, s{T0}, {K.FL + K.F_C}
    s_lshl_b32 s{T1}, s{S_W}, 7
    s_add_u32 s{T0}, s{T0}, s{T1}
    s_add_u32 s{T0}, s{T0}, {K.FL + K.F_K}
    ''')
    p.I('\n'.join(add64(S_FL2, S_WS, f's{T0}') + add64(S_FL3, S_WS, f's{T2}')))
    V_FKV, V_FC = 254, 255
    p.I(f'''
    v_and_b32 v{V_FKV}, 1, v{L}
    v_mul_u32_u24 v{V_FKV}, {K.F_V - K.F_K}, v{V_FKV}
    v_mov_b32 v{V_FC}, 0
    ''')
    p.I(f'''
    v_lshrrev_b32 v{V_T+2}, 5, v{L}
    v_lshlrev_b32 v{V_T+3}, 8, v{V_T+2}
    v_and_b32 v{V_T+4}, 6, v{L}
    v_lshl_add_u32 v{V_T+3}, v{V_T+4}, 5, v{V_T+3}
    v_and_b32 v{V_T+4}, 1, v{L}
    v_lshl_add_u32 v{V_KM}, v{V_T+4}, 4, v{V_T+3}
    v_lshlrev_b32 v{V_T+3}, 9, v{V_T+2}
    v_and_b32 v{V_T+4}, 15, v{L}
    v_or_b32 v{V_T+4}, 2, v{V_T+4}
    v_lshl_add_u32 v{V_T+3}, v{V_T+4}, 4, v{V_T+3}
    v_and_b32 v{V_T+4}, 16, v{L}
    v_lshrrev_b32 v{V_T+4}, 2, v{V_T+4}
    v_add_u32 v{V_T+3}, v{V_T+3}, v{V_T+4}
    v_and_b32 v{V_T+4}, 2, v{L}
    v_xor_b32 v{V_T+4}, 2, v{V_T+4}
    v_lshl_add_u32 v{V_VM}, v{V_T+4}, 2, v{V_T+3}
    ''')
    p.I(f'''
    v_and_b32 v{V_T+3}, 31, v{L}
    v_lshlrev_b32 v{V_T+2}, 2, v{V_T+2}
    v_sub_u32 v{V_T+3}, v{V_T+3}, v{V_T+2}
    v_mov_b32 v{V_T+4}, 0xf149f2ca
    s_mov_b32 s{S_SC}, 0x3e0293ee
    ''')
    for r in range(16):
        p.I(f'v_cmp_gt_i32 vcc, {8*(r>>2)+(r&3)}, v{V_T+3}\nv_cndmask_b32 v{MASK+r}, 0, v{V_T+4}, vcc')
    if cfg.get('qwait', 0):
        K.wait_all(p, lab)
        p.I(f's_mov_b32 s{T2}, 1')
        poll_flags(p, f'{lab}_pw', S_FL3, 4, T2, V_FC, sleep=8)
        projw_issue(p, K.S_WQ, 'q')
        p.I('s_waitcnt vmcnt(0)\ns_barrier')
        ev(p, 1)
    else:
        p.I('s_waitcnt vmcnt(0)\ns_barrier')
        ev(p, 1)
        K.wait_all(p, lab)
    ev(p, 2)
    p.reset_cnt()
    proj_setup(p)
    p.I(f's_sub_u32 s{S_SRD}, s{S_SRD}, {4*32768}\ns_subb_u32 s{S_SRD+1}, s{S_SRD+1}, 0')
    def xl():
        for ks in range(32): xload(p, 1, ks)
        p.I('\n'.join(add64(S_SRD, S_SRD, 4 * 32768)))
    xl()
    p.I(f"""
    s_lshl_b32 s{T0}, s{S_W}, 17
    s_lshl_b32 s{T1}, s{S_H}, 12
    s_add_u32 s{T0}, s{T0}, s{T1}
    s_add_u32 s{T1}, s{T0}, {K.KVM}
    s_lshl_b32 s{T0}, s{T0}, 1
    s_add_u32 s{T0}, s{T0}, {K.OF + 4096}
    """)
    p.I('\n'.join(add64(S_PUB, S_WS, f's{T1}') + add64(S_OF, S_WS, f's{T0}')))
    AK, AV, AM, AVM = 128, 160, 192, 224
    S, SM = ACC, ACC + 16
    P, PM, OP = RING, RING + 8, RING + 12
    QB = [QF, 0]; OX = 32
    TM, TN, LX, TA = 96, 97, 98, 100
    def proj(par):
        p.lg = []
        for phi in range(RD): wread(p, phi)
        p.I('s_waitcnt vmcnt(0)'); p.vm = []
        extra = {}
        for et in range(3):
            pk = pack(QB[par] + 8 * et, ACC + 16 * (et & 1))
            for i in range(4): extra.setdefault((et + 1, 3 + i), []).extend(pk[2*i:2*i+2])
        proj_body(p, 'q', 1, extra, ringcont=False, pref=False)
        xl()
        for x in pack(QB[par] + 24, ACC + 16): p.I(x)
    def attn(par, n):
        Qf = QB[par]
        p.I(f's_add_u32 s{S_IT}, s{S_IT}, 1')
        p.I(f's_lshl_b32 s{T2}, s{S_IT}, 2\ns_add_u32 s{T2}, s{T2}, s{S_W}\ns_sub_u32 s{T2}, s{T2}, 3')
        poll_flags(p, f'{lab}_pk{n}', S_FL2, 2, T2, V_FKV)
        for et in range(4):
            for f in range(2):
                p.I(f'buffer_load_dwordx4 {ar(AK+8*et+4*f,4)}, v{V_KA}, s[{S_SRD2}:{S_SRD2+3}], s{S_C4K+et} offen offset:{512*f} sc1', tag=('k', et, f))
        for et in range(4):
            for f in range(2):
                p.I(f'buffer_load_dwordx4 {ar(AV+8*et+4*f,4)}, v{V_VA}, s[{S_SRD2}:{S_SRD2+3}], s{S_C4K+et} offen offset:{512*f} sc1', tag='v')
        p.I('\n'.join(add64(S_SRD2, S_SRD2, 4 * 32 * 16384)))
        for i in range(8):
            p.wait(vm=('k', i >> 1, i & 1))
            p.I(f'v_mfma_f32_32x32x16_bf16 {vr(S,16)}, {ar(AK+4*i,4)}, {vr(Qf+4*i,4)}, {vr(MASK,16) if i == 0 else vr(S,16)}')
        p.I(f'v_max3_f32 v{TM}, v{S}, v{S+1}, v{S+2}')
        for i in range(3, 15, 2): p.I(f'v_max3_f32 v{TM}, v{TM}, v{S+i}, v{S+i+1}')
        p.I(f"""
        v_max_f32 v{TM}, v{TM}, v{S+15}
        v_mov_b32 v{TN}, v{TM}
        v_permlane32_swap_b32 v{TM}, v{TN}
        v_max_f32 v{TM}, v{TM}, v{TN}
        v_mul_f32 v{TM}, s{S_SC}, v{TM}
        """)
        for r in range(16): p.I(f'v_fma_f32 v{S+r}, v{S+r}, s{S_SC}, -v{TM}')
        for r in range(16): p.I(f'v_exp_f32 v{S+r}, v{S+r}')
        for i in range(8): p.I(f'v_cvt_pk_bf16_f32 v{P+i}, v{S+2*i}, v{S+2*i+1}')
        for i in range(4): p.I(f'v_pk_add_f32 {vr(S+4*i,2)}, {vr(S+4*i,2)}, {vr(S+4*i+2,2)}')
        p.I(f"""
        v_pk_add_f32 {vr(S,2)}, {vr(S,2)}, {vr(S+4,2)}
        v_pk_add_f32 {vr(S+8,2)}, {vr(S+8,2)}, {vr(S+12,2)}
        v_pk_add_f32 {vr(S,2)}, {vr(S,2)}, {vr(S+8,2)}
        v_add_f32 v{LX}, v{S}, v{S+1}
        """)
        p.wait(vm='v')
        for et in range(4):
            p.I(f'v_mfma_f32_32x32x16_bf16 {vr(OX+16*et,16)}, {ar(AV+8*et,4)}, {vr(P,4)}, 0')
            p.I(f'v_mfma_f32_32x32x16_bf16 {vr(OX+16*et,16)}, {ar(AV+8*et+4,4)}, {vr(P+4,4)}, {vr(OX+16*et,16)}')
        ev(p, (S_IT, 2))
        p.I(f's_add_u32 s{T2}, s{T2}, 1')
        poll_flags(p, f'{lab}_pc{n}', S_FL3, 4, T2, V_FC, sleep=1)
        ev(p, (S_IT, 20))
        for i in range(8):
            p.I(f'global_load_dwordx4 {ar(AM+4*i,4)}, v{V_KM}, s[{S_PUB}:{S_PUB+1}] offset:{512*i} sc1', tag=('m', i))
        for et in range(4):
            for d in range(2):
                p.I(f'global_load_dword a{AVM+2*et+d}, v{V_VM}, s[{S_PUB}:{S_PUB+1}] offset:{1024*et+256*d} sc1', tag='vm')
        p.I('\n'.join(add64(S_PUB, S_PUB, 4 * 32 * 4096)))
        for i in range(8):
            p.wait(vm=('m', i))
            p.I(f'v_mfma_f32_32x32x16_bf16 {vr(SM,16)}, {ar(AM+4*i,4)}, {vr(Qf+4*i,4)}, {"0" if i == 0 else vr(SM,16)}')
        p.I(f"""
        v_max3_f32 v{TA}, v{SM}, v{SM+1}, v{SM+2}
        v_max_f32 v{TA}, v{TA}, v{SM+3}
        v_mov_b32 v{TN}, v{TA}
        v_permlane32_swap_b32 v{TA}, v{TN}
        v_max_f32 v{TA}, v{TA}, v{TN}
        v_mul_f32 v{TA}, s{S_SC}, v{TA}
        v_max_f32 v{TN}, v{TA}, v{TM}
        v_sub_f32 v{TA}, v{TM}, v{TN}
        v_fma_f32 v{SM}, v{SM}, s{S_SC}, -v{TN}
        v_fma_f32 v{SM+1}, v{SM+1}, s{S_SC}, -v{TN}
        v_fma_f32 v{SM+2}, v{SM+2}, s{S_SC}, -v{TN}
        v_fma_f32 v{SM+3}, v{SM+3}, s{S_SC}, -v{TN}
        v_exp_f32 v{TA}, v{TA}
        v_exp_f32 v{SM}, v{SM}
        v_exp_f32 v{SM+1}, v{SM+1}
        v_exp_f32 v{SM+2}, v{SM+2}
        v_exp_f32 v{SM+3}, v{SM+3}
        v_fma_f32 v{LX}, v{LX}, v{TA}, v{SM}
        v_add_f32 v{LX}, v{LX}, v{SM+1}
        v_add_f32 v{LX}, v{LX}, v{SM+2}
        v_add_f32 v{LX}, v{LX}, v{SM+3}
        v_mov_b32 v{TN}, v{LX}
        v_permlane32_swap_b32 v{LX}, v{TN}
        v_add_f32 v{LX}, v{LX}, v{TN}
        v_rcp_f32 v{LX}, v{LX}
        v_mul_f32 v{TA}, v{TA}, v{LX}
        v_pk_mul_f32 {vr(SM,2)}, {vr(SM,2)}, {vr(LX,2)} op_sel_hi:[1,0]
        v_pk_mul_f32 {vr(SM+2,2)}, {vr(SM+2,2)}, {vr(LX,2)} op_sel_hi:[1,0]
        v_cvt_pk_bf16_f32 v{PM}, v{SM}, v{SM+1}
        v_cvt_pk_bf16_f32 v{PM+1}, v{SM+2}, v{SM+3}
        """)
        for i in range(32): p.I(f'v_pk_mul_f32 {vr(OX+2*i,2)}, {vr(OX+2*i,2)}, {vr(TA,2)} op_sel_hi:[1,0]')
        p.I('s_waitcnt vmcnt(0)'); p.vm = []
        def fin(et):
            o = OP + 8 * (et & 1)
            for x in pack(o, OX + 16 * et): p.I(x)
            for f in range(2):
                p.I(f'global_store_dwordx4 v{V_L16}, {vr(o+4*f,4)}, s[{S_OF}:{S_OF+1}] offset:{2048*et+1024*f-4096} sc1')
        for et in range(4):
            p.I(f'v_mfma_f32_32x32x8_bf16 {vr(OX+16*et,16)}, {ar(AVM+2*et,2)}, {vr(PM,2)}, {vr(OX+16*et,16)}')
            if et >= 2: fin(et - 2)
        fin(2); fin(3)
        p.I('\n'.join(add64(S_OF, S_OF, 4 * 32 * 8192)))
        p.I(f"""
        v_mov_b32 v{V_T}, s{S_IT}
        s_waitcnt vmcnt(0)
        s_mov_b64 exec, 1
        global_store_dword v{V_Z}, v{V_T}, s[{S_FLG}:{S_FLG+1}] sc1
        s_mov_b64 exec, -1
        """)
        ev(p, (S_IT, 40))
    p.I(f's_branch {lab}_first')
    p.L(f'{lab}_loop')
    proj(1)
    attn(0, 0)
    p.I(f's_cmp_ge_u32 s{S_IT}, 15\ns_cbranch_scc1 {lab}_skip')
    p.L(f'{lab}_first')
    proj(0)
    p.I(f's_cmp_eq_u32 s{S_IT}, 0\ns_cbranch_scc1 {lab}_loop')
    p.L(f'{lab}_skip')
    attn(1, 1)
    p.I(f's_cmp_lt_u32 s{S_IT}, 16\ns_cbranch_scc1 {lab}_loop')
    ev_dump(p)
    p.I('s_branch L_end')

def o_worker(p, cfg, lab):
    L = V_T + 1
    if TL[0]: p.I(f's_mov_b32 s{K.S_XCC}, 0')
    p.I('s_barrier')
    p.I(f'''
    s_lshr_b32 s{T2}, s{S_H}, 4
    s_lshl_b32 s{T0}, s{T2}, 18
    s_lshl_b32 s{T1}, s{S_W}, 16
    s_add_u32 s{T0}, s{T0}, s{T1}
    s_add_u32 s{T0}, s{T0}, {K.OF}
    s_add_u32 s{S_SRD}, s{S_WS}, s{T0}
    s_addc_u32 s{S_SRD+1}, s{S_WS+1}, 0
    s_mov_b32 s{S_SRD+2}, 0x10000
    s_mov_b32 s{S_SRD+3}, 0x20000
    s_lshl_b32 s{T0}, s{T2}, 12
    s_lshl_b32 s{T1}, s{S_W}, 10
    s_add_u32 s{T0}, s{T0}, s{T1}
    s_add_u32 s{T0}, s{T0}, {K.FL + K.F_O}
    s_add_u32 s{S_FL2}, s{S_WS}, s{T0}
    s_addc_u32 s{S_FL2+1}, s{S_WS+1}, 0
    v_and_b32 v{V_KM}, 7, v{L}
    v_lshlrev_b32 v{V_KM}, 7, v{V_KM}
    s_lshl_b32 s{T0}, s{T2}, 16
    s_lshl_b32 s{T1}, s{S_M}, 10
    s_add_u32 s{T0}, s{T0}, s{T1}
    s_and_b32 s{T1}, s{S_H}, 15
    s_lshl_b32 s{T1}, s{T1}, 6
    s_add_u32 s{T0}, s{T0}, s{T1}
    s_lshl_b32 s{T1}, s{S_W}, 4
    s_add_u32 s{T0}, s{T0}, s{T1}
    s_add_u32 s{S_OF}, s{K.S_OUT}, s{T0}
    s_addc_u32 s{S_OF+1}, s{K.S_OUT+1}, 0
    v_and_b32 v224, 31, v{L}
    v_lshlrev_b32 v224, 11, v224
    v_lshrrev_b32 v225, 5, v{L}
    v_lshl_add_u32 v{V_VM}, v225, 3, v224
    v_add_u32 v{V_LHI}, 0x8000, v{V_L16}
    s_lshl_b32 s{T0}, s{S_W}, 12
    v_add_u32 v{V_KA}, s{T0}, v{V_L16}
    s_lshl_b32 s{T0}, s{S_W}, 10
    v_add_u32 v{V_VA}, s{T0}, v{V_L16}
    s_mov_b32 s{S_IT}, 0
    ''')
    ev(p, 20)
    A = 128
    V_PAR_W, V_PAR_R = V_KA, V_VA
    def old(k):
        va = V_L16 if k < 32 else V_LHI
        p.I(f'buffer_load_dwordx4 {ar(4*(k%32),4)}, v{va}, s[{S_SRD}:{S_SRD+3}], s{S_C4K+((k%32)>>2)} offen offset:{(k&3)*1024} sc1', tag=('o', k))
    def mm(k):
        p.wait(vm=('o', k))
        p.I(f'v_mfma_f32_32x32x16_bf16 {vr(A,16)}, {wof(k)}, {ar(4*(k%32),4)}, {"0" if k == 0 else vr(A,16)}')
    def reduce():
        p.lg = []
        for q in range(4):
            p.I(f'ds_write_b128 v{V_PAR_W}, {vr(A+4*q,4)} offset:{q*1024}')
        p.I('s_waitcnt lgkmcnt(0)\ns_barrier')
        for q in range(4):
            p.I(f'ds_read_b128 {vr(A+16+4*q,4)}, v{V_PAR_R} offset:{q*4096}')
        B = A + 16
        p.I(f"""
        v_xor_b32 v{V_PAR_W}, 0x4000, v{V_PAR_W}
        v_xor_b32 v{V_PAR_R}, 0x4000, v{V_PAR_R}
        s_waitcnt lgkmcnt(0)
        v_pk_add_f32 {vr(B,2)}, {vr(B,2)}, {vr(B+4,2)}
        v_pk_add_f32 {vr(B+2,2)}, {vr(B+2,2)}, {vr(B+6,2)}
        v_pk_add_f32 {vr(B+8,2)}, {vr(B+8,2)}, {vr(B+12,2)}
        v_pk_add_f32 {vr(B+10,2)}, {vr(B+10,2)}, {vr(B+14,2)}
        v_pk_add_f32 {vr(B,2)}, {vr(B,2)}, {vr(B+8,2)}
        v_pk_add_f32 {vr(B+2,2)}, {vr(B+2,2)}, {vr(B+10,2)}
        v_cvt_pk_bf16_f32 v{B+16}, v{B}, v{B+1}
        v_cvt_pk_bf16_f32 v{B+17}, v{B+2}, v{B+3}
        global_store_dwordx2 v{V_VM}, {vr(B+16,2)}, s[{S_OF}:{S_OF+1}]
        """)
        p.I('\n'.join(add64(S_OF, S_OF, 4 * 32 * 2048)))
        ev(p, (S_IT, 40))
    p.I(f's_mov_b32 s{S_IT}, 1')
    p.L(f'{lab}_cold')
    poll_flags(p, f'{lab}_pf', S_FL2, 8, S_IT, V_KM)
    for k in range(32): old(k)
    p.I('s_nop 0', tag=None)
    p.L(f'{lab}_run')
    ev(p, (S_IT, 20))
    p.vm = [('o', k) for k in range(32)]
    p.I(f'global_load_dword v{V_T}, v{V_KM}, s[{S_FL2}:{S_FL2+1}] sc1', tag='fl')
    for k in range(32):
        mm(k); old(k + 32)
    p.I('\n'.join(add64(S_SRD, S_SRD, 4 * 32 * 8192)))
    p.wait(vm='fl')
    p.I(f"""
    v_cmp_ge_u32 vcc, s{S_IT}, v{V_T}
    s_cbranch_vccnz {lab}_drain
    """)
    vm0 = list(p.vm)
    for k in range(32, 64):
        mm(k); old(k - 32)
    reduce()
    p.I(f's_add_u32 s{S_IT}, s{S_IT}, 1\ns_branch {lab}_run')
    p.L(f'{lab}_drain')
    p.vm = vm0
    for k in range(32, 64): mm(k)
    reduce()
    p.I(f's_add_u32 s{S_IT}, s{S_IT}, 1\ns_cmp_le_u32 s{S_IT}, 16\ns_cbranch_scc1 {lab}_cold')
    ev_dump(p)
    p.I('s_branch L_end')
```

```python
import sys
sys.path.insert(0, 'gen')
from asmlib import *

NAME = 'concat_heads__memory_aug_recurrent_mem_tr__memory_aug_recurrent_mem_tr__prompt_kernel'
MB = 1 << 20
WS_MODEL = 64 * MB
KVF, OF, KVM, XF = 0, 32 * MB, 48 * MB, 56 * MB
PR = 58 * MB
MR = PR + 512 * 1024
HB = MR + 65536
FL = 59 * MB
TS = 60 * MB
SENT = 0xffc0ffc0
F_K, F_V, F_C, F_O = 0, 16384, 32768, 49152
SAFE_OFF = 3 * MB

S_X, S_MEM0, S_WQ, S_WK, S_WV, S_WO = 4, 6, 8, 10, 12, 14
S_OUT, S_DBG, S_WS = 16, 18, 20
S_XCC, S_W, S_H, S_M = 22, 23, 24, 25
S_STEP, S_SPIN = 26, 27
S_SRD = 28
S_PP, S_MS, S_MRS, S_MP, S_KV, S_PUB, S_PPO = 34, 36, 38, 40, 42, 44, 46
S_TO = 50
S_LATE = 32
S_ONE = 12
S_HBW, S_HBR = 8, 10
S_KEY = 67
S_MQ1 = 48
S_T0, S_T1, S_T2, S_T3 = 58, 59, 60, 61
S_PTOG, S_MTOG = 62, 63
S_OPS, S_OPP, S_OMP = 64, 65, 66
S_SC = 98
S_MODE, S_FLB, S_FLC = 3, 96, 4
S_PL, S_PH = 68, 69
S_SENT, S_THR = 70, 71
S_ST = 72

MF, SB = 0, 32
Q0, Q1, K0, K1, V0, V1 = 64, 68, 72, 76, 80, 84
KX, VX = 88, 96
C_IDX, A_L16, C_SELT, C_SELR = 104, 105, 106, 108
A_PST, A_MST, A_STW, A_ST1, A_ST2, A_ST3, A_WL, A_MW, A_OW, A_OR = 112, 113, 114, 115, 116, 117, 118, 119, 120, 121
A_FL, V_FL, V_FS = 122, 123, 121
S_NEED, S_W0 = 14, 8
C_SENT = 124
ALAND = 240
L_STG, L_XCH, L_W = 0, 8192, 16384
HOME = {}
for sg in range(8):
    for tt in range(2): HOME[('q', sg, tt)] = ('a', 16 * sg + 8 * tt)
_l = 0
for key in [('k', 0, 0), ('k', 0, 1), ('k', 2, 0), ('k', 2, 1), ('k', 1, 0), ('k', 1, 1), ('k', 3, 0), ('k', 3, 1),
            ('v', 5, 0), ('v', 5, 1), ('v', 7, 0), ('v', 7, 1),
            ('o', 0, 0), ('o', 1, 0), ('o', 2, 0), ('o', 3, 0), ('o', 3, 2), ('o', 3, 3)]:
    HOME[key] = ('l', _l); _l += 1
_a = 128
for sg in (0, 1, 2, 3, 4, 6):
    for tt in range(2): HOME[('v', sg, tt)] = ('a', _a); _a += 8
for tt in range(2): HOME[('k', 7, tt)] = ('a', _a); _a += 8
assert _a == ALAND
_v = 128
for t in range(4):
    for cc in range(4):
        if ('o', t, cc) not in HOME: HOME[('o', t, cc)] = ('v', _v); _v += 8
for sg in (4, 5, 6):
    for tt in range(2): HOME[('k', sg, tt)] = ('v', _v); _v += 8
assert _v == 256
def sbslot(key): return SB + 8 * (HOME[key][1] % 4)

def add64(dst, base, off_s):
    return [f's_add_u32 s{dst}, s{base}, {off_s}', f's_addc_u32 s{dst+1}, s{base+1}, 0']

def load_args(p):
    p.I(f"""
    s_load_dwordx4 s[{S_X}:{S_X+3}], s[0:1], 0
    s_load_dwordx4 s[{S_WQ}:{S_WQ+3}], s[0:1], 16
    s_load_dwordx4 s[{S_WV}:{S_WV+3}], s[0:1], 32
    s_load_dwordx2 s[32:33], s[0:1], 56
    s_load_dwordx4 s[36:39], s[0:1], 64
    s_load_dwordx4 s[40:43], s[0:1], 80
    s_load_dwordx2 s[44:45], s[0:1], 96
    s_load_dwordx4 s[{S_OUT}:{S_OUT+3}], s[0:1], 112
    s_load_dwordx2 s[{S_WS}:{S_WS+1}], s[0:1], 128
    """)

def common_prologue(p, cfg):
    p.I("""
    s_cmp_ge_u32 s2, 256
    s_cbranch_scc1 L_end2
    """)
    load_args(p)
    p.I(f"""
    s_getreg_b32 s{S_XCC}, hwreg(HW_REG_XCC_ID)
    s_and_b32 s{S_XCC}, s{S_XCC}, 7
    v_lshrrev_b32 v1, 6, v0
    v_and_b32 v0, 63, v0
    v_readfirstlane_b32 s{S_W}, v1
    s_mov_b32 s{S_SPIN}, {cfg.get('spin', 2000000)}
    s_mov_b32 s{S_MODE}, 0
    s_waitcnt lgkmcnt(0)
    """)
    if cfg.get('stamps'):
        p.I(f's_memrealtime s[94:95]')
    dbgt(p, cfg, 1, True)
    p.I(f"""
    s_cmp_eq_u32 s{S_W}, 0
    s_cbranch_scc0 L_noticket
    s_mov_b64 exec, 1
    s_lshl_b32 s{S_T0}, s{S_XCC}, 5
    v_mov_b32 v1, s{S_T0}
    v_mov_b32 v2, 1
    global_atomic_add v3, v1, v2, s[{S_DBG}:{S_DBG+1}] sc0
    s_mov_b64 exec, -1
L_noticket:
    """)
    nt = cfg.get('touch', 0)
    if nt:
        p.I(f"""
        s_barrier
        s_cmp_ge_u32 s{S_XCC}, 2
        s_cbranch_scc1 L_notouch
        s_cmp_eq_u32 s{S_XCC}, 1
        s_cselect_b64 s[46:47], s[44:45], s[{S_WO}:{S_WO+1}]
        s_lshr_b32 s{S_T0}, s2, 3
        s_lshl_b32 s{S_T0}, s{S_T0}, 17
        s_lshl_b32 s{S_T1}, s{S_W}, 15
        s_add_u32 s{S_T0}, s{S_T0}, s{S_T1}
        v_lshlrev_b32 v4, 7, v0
        v_add_u32 v4, s{S_T0}, v4
        """)
        for i in range(nt):
            p.I(f'global_load_dword v{40+i}, v4, s[46:47]\nv_add_u32 v4, 8192, v4')
        p.I(f's_waitcnt vmcnt({nt})\ns_branch L_tk2')
        p.L('L_notouch')
    p.I(f"""
    s_waitcnt vmcnt(0)
L_tk2:
    s_cmp_eq_u32 s{S_W}, 0
    s_cbranch_scc0 L_tk3
    s_mov_b64 exec, 1
    v_mov_b32 v1, 0
    ds_write_b32 v1, v3
    s_waitcnt lgkmcnt(0)
    s_mov_b64 exec, -1
L_tk3:
    s_barrier
    v_mov_b32 v1, 0
    ds_read_b32 v3, v1
    s_waitcnt lgkmcnt(0)
    v_readfirstlane_b32 s{S_H}, v3
    s_barrier
    """)

AV = (1, 2)
def arrive(p, lab, tv=(252, 253), keep=0):
    p.I(f"""
    s_waitcnt vmcnt({keep}) lgkmcnt(0)
    s_barrier
    s_cmp_eq_u32 s{S_W}, 0
    s_cbranch_scc0 {lab}_noarr
    s_mov_b64 exec, 1
    s_lshl_b32 s{S_T0}, s{S_MODE}, 5
    s_add_u32 s{S_T0}, s{S_T0}, 208
    v_mov_b32 v{tv[0]}, s{S_T0}
    v_mov_b32 v{tv[1]}, 1
    global_atomic_add v{tv[0]}, v{tv[1]}, s[{S_DBG}:{S_DBG+1}]
    s_mov_b64 exec, -1
{lab}_noarr:
    """)
    if keep: p.vm = p.vm[-keep-1:-1]
    else: p.reset_cnt()

NARR = [256]
FORCE = [0]
def wait_all(p, lab, tv=(252, 253), pre=False):
    if not pre:
        p.I(f"""
        v_mbcnt_lo_u32_b32 v{tv[0]}, -1, 0
        v_and_b32 v{tv[0]}, 15, v{tv[0]}
        v_lshlrev_b32 v{tv[0]}, 4, v{tv[0]}
        """)
    p.I(f"""
    s_lshl_b32 s{S_T1}, s{S_MODE}, 1
    s_add_u32 s{S_T1}, s{S_T1}, 13
    {f's_branch {lab}_w0' if pre else ''}
{lab}_wa:
    global_load_dword v{tv[1]}, v{tv[0]}, s[{S_DBG}:{S_DBG+1}] sc1
    s_waitcnt vmcnt(0)
{lab}_w0:
    v_readlane_b32 s{S_T0}, v{tv[1]}, s{S_T1}
    s_cmp_ge_u32 s{S_T0}, {NARR[0]}
    s_cbranch_scc1 {lab}_wb
    s_sleep 16
    s_sub_u32 s{S_SPIN}, s{S_SPIN}, 1
    s_cbranch_scc0 {lab}_wa
    s_branch L_end
{lab}_wb:
    s_cmp_eq_u32 s{S_MODE}, 1
    s_cbranch_scc1 {lab}_wc
    v_cmp_ne_u32 vcc, {32 + FORCE[0]}, v{tv[1]}
    s_and_b32 s{S_T0}, vcc_lo, 0x5555
    s_cbranch_scc0 {lab}_wc
    global_load_dword v{tv[1]}, v{tv[0]}, s[{S_DBG}:{S_DBG+1}] sc1
    s_waitcnt vmcnt(0)
    v_cmp_ne_u32 vcc, {32 + FORCE[0]}, v{tv[1]}
    s_and_b32 s{S_T0}, vcc_lo, 0x5555
    s_cbranch_scc1 L_safe
{lab}_wc:
    """)
    p.reset_cnt()

def dbgt(p, cfg, word, neg=False, v=(1, 2)):
    if cfg.get('dbgt'):
        l = p.lab('L_dt')
        p.I(f"""
        s_cmp_eq_u32 s{S_W}, 0
        s_cbranch_scc0 {l}
        {f's_cmp_lt_u32 s2, 8' if word in (1, 5) else ''}
        {f's_cbranch_scc0 {l}' if word in (1, 5) else ''}
        s_memrealtime s[90:91]
        s_waitcnt lgkmcnt(0)
        {'s_not_b32 s90, s90' if neg else ''}
        s_mov_b64 exec, 1
        v_mov_b32 v{v[0]}, {4*word}
        v_mov_b32 v{v[1]}, s90
        global_atomic_umax v{v[0]}, v{v[1]}, s[{S_DBG}:{S_DBG+1}]
        s_mov_b64 exec, -1
{l}:
        """)

def select_model(p):
    p.I(f'''
    s_cmp_eq_u32 s{S_M}, 1
    s_cselect_b64 s[{S_X}:{S_X+1}], s[32:33], s[{S_X}:{S_X+1}]
    s_cselect_b64 s[{S_MEM0}:{S_MEM0+1}], s[36:37], s[{S_MEM0}:{S_MEM0+1}]
    s_cselect_b64 s[{S_WQ}:{S_WQ+1}], s[38:39], s[{S_WQ}:{S_WQ+1}]
    s_cselect_b64 s[{S_WK}:{S_WK+1}], s[40:41], s[{S_WK}:{S_WK+1}]
    s_cselect_b64 s[{S_WV}:{S_WV+1}], s[42:43], s[{S_WV}:{S_WV+1}]
    s_cselect_b64 s[{S_WO}:{S_WO+1}], s[44:45], s[{S_WO}:{S_WO+1}]
    s_lshl_b32 s{S_T0}, s{S_M}, 26
    s_add_u32 s{S_WS}, s{S_WS}, s{S_T0}
    s_addc_u32 s{S_WS+1}, s{S_WS+1}, 0
    ''')

def set_srd(p, ptr, nbytes):
    p.I(f'''
    s_mov_b32 s{S_SRD}, s{ptr}
    s_and_b32 s{S_SRD+1}, s{ptr+1}, 0xffff
    s_mov_b32 s{S_SRD+2}, {nbytes}
    s_mov_b32 s{S_SRD+3}, 0x20000
    ''')

def chain_consts(p, RO):
    p.I(f'''
    v_and_b32 v61, 15, v0
    v_lshrrev_b32 v62, 4, v0
    v_lshlrev_b32 v{A_L16}, 4, v0
    s_mov_b32 s{S_MQ1}, 0xcccccccc
    s_mov_b32 s{S_MQ1+1}, 0xcccccccc
    s_mov_b32 s{S_SC}, 0x3e0293ee
    s_mov_b32 s{S_PL}, 0x05040100
    s_mov_b32 s{S_PH}, 0x07060302
    s_mov_b32 s{S_SENT}, {SENT}
    s_mov_b32 s{S_THR}, 0xffc00000
    s_mov_b32 s{S_SC+1}, 0x3e0293ee
    v_mov_b32 v{C_SENT}, s{S_SENT}
    v_mov_b32 v{C_SENT+1}, s{S_SENT}
    v_mov_b32 v{C_SENT+2}, s{S_SENT}
    v_mov_b32 v{C_SENT+3}, s{S_SENT}
    v_mov_b32 v64, 0xeeee
    v_mov_b32 v65, 0x4444
    v_cndmask_b32 v{C_IDX}, v65, v64, s[{S_MQ1}:{S_MQ1+1}]
    ''')
    p.I(f'''
    v_and_b32 v63, 1, v61
    v_lshlrev_b32 v63, 4, v63
    v_mov_b32 v64, 0x3f80
    v_lshlrev_b32 v64, v63, v64
    v_lshrrev_b32 v65, 2, v61
    v_cmp_eq_u32 vcc, v65, v62
    v_cndmask_b32 v64, 0, v64, vcc
    v_mov_b32 v65, 0
    v_cndmask_b32 v{C_SELT}, v65, v64, s[{S_MQ1}:{S_MQ1+1}]
    v_cndmask_b32 v{C_SELT+1}, v64, v65, s[{S_MQ1}:{S_MQ1+1}]
    ''')
    p.I(f'''
    v_lshrrev_b32 v63, 2, v61
    v_and_b32 v63, 1, v63
    v_lshlrev_b32 v63, 4, v63
    v_mov_b32 v64, 0x3f80
    v_lshlrev_b32 v64, v63, v64
    v_and_b32 v65, 11, v61
    ''')
    for d, key in enumerate([0, 1, 8, 9]):
        p.I(f'v_cmp_eq_u32 vcc, {key}, v65\nv_cndmask_b32 v{C_SELR+d}, 0, v64, vcc')
    p.I(f'''
    v_lshrrev_b32 v63, 1, v62
    v_lshlrev_b32 v63, 13, v63
    v_and_b32 v64, 1, v62
    v_lshl_add_u32 v63, v64, 11, v63
    v_lshl_add_u32 v63, v61, 2, v63
    s_lshl_b32 s{S_T0}, s{S_W}, 16
    s_lshl_b32 s{S_T1}, s{S_H}, 6
    s_add_u32 s{S_T0}, s{S_T0}, s{S_T1}
    v_add_u32 v{A_PST}, s{S_T0}, v63
    ''')
    for t in range(8): p.I(f's_mov_b32 s{S_TO+t}, {(t&3)*16384 + (t>>2)*4096}')
    p.I(f'''
    v_and_b32 v63, 2, v0
    v_lshlrev_b32 v63, 4, v63
    v_and_b32 v64, 1, v62
    v_lshl_add_u32 v63, v64, 4, v63
    v_and_b32 v64, 1, v0
    v_lshl_add_u32 v63, v64, 3, v63
    v_lshrrev_b32 v64, 1, v62
    v_lshl_add_u32 v63, v64, 2, v63
    s_lshr_b32 s{S_LATE}, s{S_W}, 1
    s_lshr_b32 s{S_T2}, s{S_H}, 1
    s_and_b32 s{S_T2}, s{S_T2}, 3
    s_lshl_b32 s{S_T0}, s{S_LATE}, 2
    s_add_u32 s{S_T2}, s{S_T2}, s{S_T0}
    s_and_b32 s{S_T3}, s{S_H}, 1
    s_lshl_b32 s{S_T3}, s{S_T3}, 1
    s_and_b32 s{S_T0}, s{S_W}, 1
    s_add_u32 s{S_T3}, s{S_T3}, s{S_T0}
    s_lshl_b32 s{S_T0}, s{S_T2}, 10
    s_lshr_b32 s{S_T1}, s{S_H}, 3
    s_lshl_b32 s{S_T1}, s{S_T1}, 8
    s_add_u32 s{S_T0}, s{S_T0}, s{S_T1}
    s_lshl_b32 s{S_T1}, s{S_T3}, 6
    s_add_u32 s{S_T0}, s{S_T0}, s{S_T1}
    v_add_u32 v{A_MST}, s{S_T0}, v63
    ''')
    p.I(f'''
    v_and_b32 v63, 1, v62
    v_lshlrev_b32 v63, 10, v63
    v_lshrrev_b32 v64, 1, v62
    v_lshl_add_u32 v63, v64, 2, v63
    v_and_b32 v64, 3, v0
    v_lshl_add_u32 v63, v64, 3, v63
    s_lshl_b32 s{S_T0}, s{S_T3}, 11
    s_lshr_b32 s{S_T1}, s{S_H}, 3
    s_lshl_b32 s{S_T1}, s{S_T1}, 8
    s_add_u32 s{S_T0}, s{S_T0}, s{S_T1}
    s_lshl_b32 s{S_T1}, s{S_T2}, 5
    s_add_u32 s{S_T0}, s{S_T0}, s{S_T1}
    v_add_u32 v70, s{S_T0}, v63
    ''')
    p.I(f'''
    s_lshl_b32 s{S_T0}, s{S_KEY}, 11
    v_add_u32 v{A_STW}, s{S_T0}, v{A_L16}
    v_xor_b32 v{A_ST1}, 0x800, v{A_STW}
    v_xor_b32 v{A_ST2}, 0x1000, v{A_STW}
    v_xor_b32 v{A_ST3}, 0x1800, v{A_STW}
    s_mul_i32 s{S_T0}, s{S_W}, 36864
    s_add_u32 s{S_T0}, s{S_T0}, {L_W}
    v_add_u32 v{A_WL}, s{S_T0}, v{A_L16}
    s_lshl_b32 s{S_T0}, s{S_W}, 2
    v_add_u32 v{A_MW}, s{S_T0}, v{A_L16}
    ''')
    p.I(f'''
    s_lshl_b32 s{S_T2}, s{S_H}, 2
    s_add_u32 s{S_T2}, s{S_T2}, s{S_W}
    s_lshl_b32 s{S_OPP}, s{S_T2}, 11
    s_add_u32 s{S_OPP}, s{S_OPP}, {PR + RO}
    s_lshl_b32 s{S_OMP}, s{S_KEY}, 10
    s_add_u32 s{S_OMP}, s{S_OMP}, {MR + RO + 2048}
    s_lshl_b32 s{S_T0}, s{S_T2}, 12
    ''')
    p.I('\n'.join(add64(S_KV, S_WS, f's{S_T0}')))
    p.I(f's_lshl_b32 s{S_T0}, s{S_T2}, 10\ns_add_u32 s{S_T0}, s{S_T0}, {KVM}')
    p.I('\n'.join(add64(S_PUB, S_WS, f's{S_T0}')))

S_LB, S_SR2 = 72, 76
VA_QKV, VA_WO, VA_TR, VA_TQ, VA_TQ2 = 3, 4, 5, 6, 7
PARK = 8
NT = {}
def chain_weights_setup(p, mid):
    p.I(f"""
    v_and_b32 v1, 15, v0
    v_lshrrev_b32 v2, 4, v0
    v_lshlrev_b32 v2, 10, v2
    v_and_b32 v8, 16, v0
    v_lshl_add_u32 v2, v1, 4, v2
    s_lshl_b32 s{S_T0}, s{S_H}, 17
    s_lshl_b32 s{S_T1}, s{S_W}, 8
    s_add_u32 s{S_T0}, s{S_T0}, s{S_T1}
    v_add_u32 v{VA_WO}, s{S_T0}, v2
    s_mul_i32 s{S_LB}, s{S_W}, 36864
    s_add_u32 s{S_LB}, s{S_LB}, {L_W}
    """)
    b = S_SR2 + 12
    p.I(f's_mov_b32 s{b}, s{S_WO}\ns_and_b32 s{b+1}, s{S_WO+1}, 0xffff\ns_mov_b32 s{b+2}, {4*MB}\ns_mov_b32 s{b+3}, 0x20000')
    for blk in range(8):
        if blk == 2: mid()
        p.I(f's_xor_b32 s{S_T2}, s{S_W}, {blk>>1}\ns_lshl_b32 s{S_T2}, s{S_T2}, 15')
        for gb in range(4):
            p.I(f's_add_u32 m0, s{S_LB}, {blk*4096 + gb*1024}\ns_add_u32 s{S_T3}, s{S_T2}, {((blk&1)*16 + 4*gb)*1024}')
            p.I(f'buffer_load_dwordx4 v{VA_WO}, s[{b}:{b+3}], s{S_T3} offen {NT.get("o","")} lds', tag=('wo', blk))
    p.I(f"""
    v_lshrrev_b32 v2, 5, v0
    v_lshlrev_b32 v2, 16, v2
    v_lshl_add_u32 v2, v8, 9, v2
    v_lshl_add_u32 v2, v1, 4, v2
    s_lshr_b32 s{S_T0}, s{S_W}, 1
    s_lshl_b32 s{S_T0}, s{S_T0}, 21
    s_and_b32 s{S_T1}, s{S_W}, 1
    s_lshl_b32 s{S_T1}, s{S_T1}, 14
    s_add_u32 s{S_T0}, s{S_T0}, s{S_T1}
    s_lshl_b32 s{S_T1}, s{S_H}, 8
    s_add_u32 s{S_T0}, s{S_T0}, s{S_T1}
    v_add_u32 v{VA_QKV}, s{S_T0}, v2
    v_lshrrev_b32 v2, 2, v0
    v_lshlrev_b32 v2, 8, v2
    v_and_b32 v1, 3, v0
    v_lshl_add_u32 v2, v1, 3, v2
    v_lshlrev_b32 v9, 3, v1
    v_and_b32 v10, 4, v0
    v_lshl_add_u32 v9, v10, 10, v9
    v_and_b32 v10, 8, v0
    v_lshl_add_u32 v9, v10, 2, v9
    v_lshrrev_b32 v10, 4, v0
    v_lshl_add_u32 v9, v10, 9, v9
    v_add_u32 v{VA_TR}, s{S_LB}, v9
    s_lshl_b32 s{S_T0}, s{S_W}, 6
    s_add_u32 s{S_T0}, s{S_T0}, {L_W}
    v_add_u32 v{VA_TQ}, s{S_T0}, v2
    v_add_u32 v{VA_TQ2}, {2*36864}, v{VA_TQ}
    """)
    for i, ptr in enumerate((S_WQ, S_WK, S_WV)):
        b = S_SR2 + 4 * i
        p.I(f's_mov_b32 s{b}, s{ptr}\ns_and_b32 s{b+1}, s{ptr+1}, 0xffff\ns_mov_b32 s{b+2}, {4*MB}\ns_mov_b32 s{b+3}, 0x20000')

def chain_weights_run(p, cfg, lab, late):
    units = [(m, c) for m in 'qvk' for c in range(8)]
    NS = cfg.get('ns', 9)
    TQ = [VA_TQ, VA_WO, VA_TQ2, VA_TR]
    def dest(key, jp):
        kind, idx = HOME[key]
        if kind == 'a': return ar(idx + 2 * jp, 2)
        if kind == 'v': return vr(idx + 2 * jp, 2)
        return vr(PARK + 8 * (idx % 12) + 2 * jp, 2)
    slot = {}; nxt = [0]
    def issue(s):
        i = nxt[0]
        if i >= len(units) or s >= NS or (units[i][0] == 'k' and s >= 6): return
        nxt[0] += 1; slot[i] = s
        m, c = units[i]; srd = S_SR2 + 4 * 'qkv'.index(m)
        for gb in range(4):
            d = 16 * c + 128 * (gb >> 1) + 4 * (gb & 1)
            p.I(f's_add_u32 m0, s{S_LB}, {s*4096 + gb*1024}\ns_mov_b32 s{S_T3}, {d*8192}')
            p.I(f'buffer_load_dwordx4 v{VA_QKV}, s[{srd}:{srd+3}], s{S_T3} offen {NT.get(m,"")} lds', tag=('u', i))
    issue(8)
    for kap in range(4):
        p.wait(vm=('wo', 2 * kap + 1))
        for pr in range(4):
            for jp in range(4):
                p.I(f'ds_read_b64_tr_b16 {dest(("o", pr, kap), jp)}, v{VA_TR} offset:{kap*8192 + (8*(jp>>1) + (jp&1))*256 + pr*64}')
            if pr & 1: p.wait(lg='all')
        issue(2 * kap); issue(2 * kap + 1)
    p.I(f'v_add_u32 v{VA_WO}, 36864, v{VA_TQ}\nv_add_u32 v{VA_TR}, 36864, v{VA_TQ2}')
    vm0 = list(p.vm); slot0 = dict(slot); n0 = nxt[0]
    for key in range(4):
        if key < 3: p.I(f's_cmp_eq_u32 s{S_KEY}, {key}\ns_cbranch_scc0 {lab}_wv{key+1}')
        p.vm = list(vm0); slot.clear(); slot.update(slot0); nxt[0] = n0
        for i, (m, c) in enumerate(units):
            p.wait(vm=('u', i))
            p.I('s_barrier')
            if i >= 1: issue(slot[i - 1])
            if i == 16:
                for idx in range(12, 18):
                    for hh in range(2):
                        p.I(f'ds_write_b128 v{A_WL}, {vr(PARK+8*(idx%12)+4*hh,4)} offset:{idx*2048 + hh*1024}')
                p.wait(lg='all')
            if i == cfg.get('lateat', 20): late()
            sg = 2 * ((c & 3) ^ key) + (c >> 2)
            for tt in range(2):
                for jp in range(4):
                    p.I(f'ds_read_b64_tr_b16 {dest((m, sg, tt), jp)}, v{TQ[jp]} offset:{slot[i]*4096 + tt*32}')
            p.wait(lg='all')
        assert nxt[0] == len(units)
        if key < 3:
            p.I(f's_branch {lab}_wdone')
            p.L(f'{lab}_wv{key+1}')
    p.L(f'{lab}_wdone')
    p.I('s_barrier')
    for idx in range(12):
        for hh in range(2):
            p.I(f'ds_write_b128 v{A_WL}, {vr(PARK+8*idx+4*hh,4)} offset:{idx*2048 + hh*1024}')
        if idx % 4 == 3: p.wait(lg='all')

def stamp(p, cfg, i):
    if cfg.get('stamps') == 2:
        p.I(f'''
        s_memtime s[{S_ST+18}:{S_ST+19}]
        s_waitcnt lgkmcnt(0)
        s_sub_u32 s{S_ST+19}, s{S_ST+18}, s{S_ST+15}
        s_add_u32 s{S_ST+i}, s{S_ST+i}, s{S_ST+19}
        s_mov_b32 s{S_ST+15}, s{S_ST+18}
        ''')
        p.lg = []

def chain_bases(RO):
    o = [f's_add_u32 s{S_T0}, s{S_PTOG}, {PR + RO}'] + add64(S_SRD, S_WS, f's{S_T0}')
    o += [f's_add_u32 s{S_T0}, s{S_OPP}, s{S_PTOG}'] + add64(S_PP, S_WS, f's{S_T0}')
    o += [f's_add_u32 s{S_T0}, s{S_MTOG}, {MR + RO}'] + add64(S_MS, S_WS, f's{S_T0}')
    o += [f's_xor_b32 s{S_T0}, s{S_MTOG}, 0x2000', f's_add_u32 s{S_T0}, s{S_T0}, {MR + RO}'] + add64(S_MRS, S_WS, f's{S_T0}')
    o += [f's_add_u32 s{S_T0}, s{S_OMP}, s{S_MTOG}'] + add64(S_MP, S_WS, f's{S_T0}')
    return o

DPP = 'row_mask:0xf bank_mask:0xf'

def chain(p, cfg, st, lab):
    RO = SAFE_OFF if st else 0
    NSTEP = cfg.get('nstep', 64)
    depth1, depth2 = cfg.get('depth1', 2), cfg.get('depth2', 2)
    def frag(key):
        kind, idx = HOME[key]
        if kind == 'l':
            p.wait(lg=key); return vr(sbslot(key), 8)
        return (ar if kind == 'a' else vr)(idx, 8)
    def smf(acc, a, key, *shadow):
        b = frag(key)
        p.I(f'v_smfmac_f32_16x16x64_bf16 {vr(acc,4)}, {vr(a,4)}, {b}, v{C_IDX}')
        for x in shadow:
            if callable(x): x()
            else: p.I(x)
    def wl(key, hh):
        return lambda: p.I(f'ds_read_b128 {vr(sbslot(key)+4*hh,4)}, v{A_WL} offset:{HOME[key][1]*2048 + hh*1024}', tag=key)
    def kvld(i):
        if cfg.get('nokv'): return lambda: p.I('s_nop 0')
        return lambda: p.I(f'global_load_dwordx4 {ar(ALAND+4*i,4)}, v{A_L16}, s[{S_KV}:{S_KV+1}] offset:{1024*i} {cfg.get("kvm","sc1")}', tag='kv')
    kv_adv = add64(S_KV, S_KV, 32 * 16384)

    def init():
        p.I(f's_mov_b32 s{S_KEY}, s{S_W}')
        chain_consts(p, RO)
        p.I(f'''
        v_and_b32 v63, 3, v0
        v_lshlrev_b32 v63, 7, v63
        v_and_b32 v64, 4, v0
        v_lshl_add_u32 v{A_FL}, v64, 12, v63
        s_lshl_b32 s{S_T0}, s{S_H}, 9
        s_add_u32 s{S_T0}, s{S_T0}, {FL}
        s_add_u32 s{S_FLB}, s{S_WS}, s{S_T0}
        s_addc_u32 s{S_FLB+1}, s{S_WS+1}, 0
        s_lshl_b32 s{S_T0}, s{S_W}, 7
        s_add_u32 s{S_T0}, s{S_T0}, {F_C}
        s_add_u32 s{S_FLC}, s{S_FLB}, s{S_T0}
        s_addc_u32 s{S_FLC+1}, s{S_FLB+1}, 0
        v_mov_b32 v64, 0
        s_mov_b64 exec, 1
        global_store_dword v{A_L16}, v64, s[{S_FLC}:{S_FLC+1}] sc1
        s_mov_b64 exec, -1
        s_mov_b32 s{S_PTOG}, 0
        s_mov_b32 s{S_MTOG}, 0
        ''')
        p.I('\n'.join(chain_bases(RO)))
        p.I(f'''
        global_store_dwordx4 v{A_L16}, {vr(C_SENT,4)}, s[{S_PP}:{S_PP+1}] {st}
        global_store_dwordx4 v{A_L16}, {vr(C_SENT,4)}, s[{S_PP}:{S_PP+1}] offset:1024 {st}
        s_add_u32 s{S_PPO}, s{S_PP}, 0x40000
        s_addc_u32 s{S_PPO+1}, s{S_PP+1}, 0
        global_store_dwordx4 v{A_L16}, {vr(C_SENT,4)}, s[{S_PPO}:{S_PPO+1}] {st}
        global_store_dwordx4 v{A_L16}, {vr(C_SENT,4)}, s[{S_PPO}:{S_PPO+1}] offset:1024 {st}
        global_store_dword v{A_MST}, v{C_SENT}, s[{S_MRS}:{S_MRS+1}] {st}
        global_store_dword v{A_MST}, v{C_SENT}, s[{S_MS}:{S_MS+1}] {st}
        ''')
        p.I(f'global_load_dword v{V_FL}, v70, s[{S_MEM0}:{S_MEM0+1}]', tag='m0')
    chain_weights_setup(p, init)
    arrive(p, lab, (1, 2), keep=24)
    def late():
        p.I(f'global_store_dword v{A_MST}, v{V_FL}, s[{S_MS}:{S_MS+1}] {st}')
        p.I(f'v_mov_b32 v1, 1\ns_mov_b64 exec, 1\nglobal_store_dword v{A_L16}, v1, s[{S_FLC}:{S_FLC+1}] sc1\ns_mov_b64 exec, -1')
        p.I(f"""
        v_mbcnt_lo_u32_b32 v1, -1, 0
        v_and_b32 v1, 15, v1
        v_lshlrev_b32 v1, 4, v1
        global_load_dword v2, v1, s[{S_DBG}:{S_DBG+1}] sc1
        """)
    chain_weights_run(p, cfg, lab, late)
    p.I('s_waitcnt vmcnt(0) lgkmcnt(0)')
    dbgt(p, cfg, 6, v=(8, 9))
    if cfg.get('stamps'): p.I('s_memrealtime s[92:93]\ns_waitcnt lgkmcnt(0)\ns_mov_b32 s11, s92')
    wait_all(p, lab, (1, 2), pre=True)
    nofl = cfg.get('noflags')
    def fl_ld(): p.I(f'global_load_dword v{V_FL}, v{A_FL}, s[{S_FLB}:{S_FLB+1}] sc1', tag='kv')
    def fl_spin(name, back):
        p.L(name)
        fl_ld()
        p.I(f'''
        s_waitcnt vmcnt(0)
        v_cmp_ge_u32 vcc, s{S_T1}, v{V_FL}
        s_cbranch_vccz {back}
        s_sleep 1
        s_sub_u32 s{S_SPIN}, s{S_SPIN}, 1
        s_cbranch_scc0 {name}
        s_branch L_end
        ''')
    p.I(f's_mov_b32 s{S_STEP}, 0\ns_mov_b32 s{S_T1}, 1')
    if not nofl:
        fl_spin('L_ch_fl0', 'L_ch_fl0ok')
        p.L('L_ch_fl0ok')
    p.reset_cnt()
    for i in range(4): kvld(i)()
    p.I('\n'.join(kv_adv))
    if cfg.get('stamps'):
        p.I('s_memrealtime s[92:93]\ns_waitcnt lgkmcnt(0)\ns_mov_b32 s33, s94\ns_mov_b32 s64, s92')
    dbgt(p, cfg, 2)
    p.I(f's_mov_b32 s{S_SRD+2}, 0x40000\ns_mov_b32 s{S_SRD+3}, 0x20000')
    p.I(f's_mov_b32 s{S_ONE}, 0x3f803f80\ns_mov_b32 s{S_ONE+1}, 0x3f803f80')
    pre_keys = [('k', 0, 0), ('k', 0, 1), ('k', 2, 0), ('k', 2, 1)]
    mv = lambda i: f'v_accvgpr_read_b32 v{KX+i}, a{ALAND+i}'
    kvmove = [mv(i) for i in list(range(8)) + list(range(12, 16))]
    kvlate = [mv(i) for i in range(8, 12)]
    zacc = [f'v_mov_b64 {vr(Q0+2*i,2)}, 0' for i in range(12)]
    marks = cfg.get('marks', [])
    def mk(name):
        if name in marks:
            i = marks.index(name); p.I(f's_mem{"real" if cfg.get("rt") else ""}time s[{72+2*i}:{73+2*i}]')
    def MK(name): return lambda: mk(name)
    def emit(xs):
        for x in xs:
            if callable(x): x()
            else: p.I(x)
    def m_ld(i):
        p.I(f'global_load_dwordx4 {vr(MF+4*i,4)}, v{A_L16}, s[{S_MP}:{S_MP+1}] offset:{-2048+4096*i} sc1', tag=('m', i))
    def nops(n):
        while n > 0:
            q = min(n, 16); p.I(f's_nop {q-1}'); n -= q
    pubst = f'global_store_dwordx4 v{A_L16}, {vr(VX,4)}, s[{S_PUB}:{S_PUB+1}] sc1'
    p.reset_cnt()
    for x in zacc: p.I(x)
    for kk in pre_keys: wl(kk, 0)(); wl(kk, 1)()
    m_ld(0)
    p.I(f'v_mov_b32 v{V_FS}, 1\ns_mov_b64 s[{S_NEED}:{S_NEED+1}], -1\ns_cmp_eq_u32 s{S_W}, 0\ns_cselect_b64 s[{S_W0}:{S_W0+1}], 1, 0\ns_waitcnt vmcnt(0) lgkmcnt(0)')
    emit(kvmove)
    Wr = lambda i: (lambda: p.I(f'ds_write_b128 v{A_STW}, {vr(MF+4*i,4)} offset:{L_STG+1024*i}', tag='stg'))
    chk = f"""
    v_max3_u32 v28, v0, v1, v2
    v_max_u32 v28, v28, v3
    v_cmp_le_u32 vcc, s{S_THR}, v28
    """
    cad = cfg.get('cad', 2)
    p.I('s_branch L_ch_chk')
    p.L('L_ch_mefail')
    if cad == 2: p.I('s_mov_b64 exec, vcc')
    p.L('L_ch_mestart')
    m_ld(0)
    if cad == 2: p.I('s_mov_b64 exec, -1')
    if cfg.get('stamps'): p.I('s_add_u32 s101, s101, 1')
    for _ in range(cfg.get('nchk', 2) - 1):
        p.I(chk); p.I('s_cbranch_vccz L_ch_go')
    p.I(f's_sub_u32 s{S_SPIN}, s{S_SPIN}, 1\ns_cbranch_scc1 L_end')
    p.L('L_ch_chk')
    p.I(chk)
    p.I('s_cbranch_vccnz L_ch_mefail')
    p.L('L_ch_go')
    p.reset_cnt()
    Wr(0)()
    mk('qk0')
    areg = {1: A_ST1, 2: A_ST2, 3: A_ST3}
    def mf(sg):
        return lambda: p.I(f'ds_read_b128 {vr(MF+4*sg,4)}, v{areg[sg>>1]} offset:{L_STG+(sg&1)*1024}', tag=('mf', sg))
    sal = [f's_xor_b32 s{S_MTOG}, s{S_MTOG}, 0x2000'] + chain_bases(RO)
    def S(n):
        o = sal[:n]; del sal[:n]; return o
    rst = lambda i: f'global_store_dwordx4 v{A_L16}, {vr(C_SENT,4)}, s[{S_PPO}:{S_PPO+1}] offset:{1024*i} {st}'
    flst = [f's_mov_b64 exec, s[{S_W0}:{S_W0+1}]', f'global_store_dword v{A_L16}, v{V_FS}, s[{S_FLC}:{S_FLC+1}] sc1', 's_mov_b64 exec, -1']
    flld = [f's_mov_b64 exec, s[{S_NEED}:{S_NEED+1}]', fl_ld, 's_mov_b64 exec, -1']
    vp = dict(ml=3, fs=17, k0=4, pub=5, fl=18, k1=9, k3=12, k2=19, r0=22, r1=27)
    vp.update(cfg.get('vp', {}))
    place = {}
    for name, ops in (('ml', [lambda: m_ld(1)]), ('pub', [] if cfg.get('nopub') else [pubst]), ('k0', [kvld(0)]), ('k1', [kvld(1)]), ('k3', [kvld(3)]), ('k2', [kvld(2)]),
                      ('fs', [] if cfg.get('nofst') else flst), ('fl', [] if nofl else flld), ('r0', [rst(0)]), ('r1', [rst(1)])):
        place.setdefault(vp[name], []).extend(ops)
    two = vp.get('ml2') is not None
    if two: place.setdefault(vp['ml2'], []).insert(0, lambda: m_ld(1))
    lastml = vp['ml2'] if two else vp['ml']
    assert min(vp['k0'], vp['k1'], vp['k3'], vp['fl'], vp['fs'], vp['pub']) > max(lastml, 3)
    lpos = cfg.get('lpos') or ((7, 8, 10, 11) if vp['pub'] < 7 else tuple(vp['k2'] - 4 + i for i in range(4)))
    assert vp['pub'] < min(lpos) and max(lpos) < vp['k2']
    slot = [0]
    def Q(acc, sg, key, *shadow):
        ex = place.pop(slot[0], [])
        tail = [kvlate[lpos.index(slot[0])]] if slot[0] in lpos else []
        slot[0] += 1
        smf(acc, MF + 4 * sg, key, *ex, *shadow, *tail)
    mrst = f'global_store_dword v{A_MST}, v{C_SENT}, s[{S_MRS}:{S_MRS+1}] {st}'
    Q(Q0, 0, ('q', 0, 0), mrst)
    Q(Q1, 0, ('q', 0, 1))
    Q(K0, 0, ('k', 0, 0))
    Q(K1, 0, ('k', 0, 1))
    p.wait(lg='all')
    mk('b1a')
    p.I('s_barrier')
    mk('b1b')
    mf(2)()
    Q(V0, 0, ('v', 0, 0), mf(4), mf(6))
    Q(V1, 0, ('v', 0, 1), wl(('k', 1, 0), 0))
    p.wait(lg=('mf', 2))
    Q(Q0, 2, ('q', 2, 0), wl(('k', 1, 0), 1), MK('s2'))
    Q(Q1, 2, ('q', 2, 1), wl(('k', 1, 1), 0))
    Q(K0, 2, ('k', 2, 0), wl(('k', 1, 1), 1))
    Q(K1, 2, ('k', 2, 1), wl(('k', 3, 0), 0))
    p.wait(lg=('mf', 6))
    Q(Q0, 4, ('q', 4, 0), wl(('k', 3, 0), 1))
    Q(Q1, 4, ('q', 4, 1), wl(('k', 3, 1), 0))
    rest = [(K0, 4, ('k', 4, 0), wl(('k', 3, 1), 1)), (K1, 4, ('k', 4, 1)), (Q0, 6, ('q', 6, 0)), (Q1, 6, ('q', 6, 1)), (K0, 6, ('k', 6, 0)), (K1, 6, ('k', 6, 1))]
    vfill = [(V0, 4, ('v', 4, 0)), (V1, 4, ('v', 4, 1)), (V0, 6, ('v', 6, 0)), (V1, 6, ('v', 6, 1)), (V0, 2, ('v', 2, 0)), (V1, 2, ('v', 2, 1))]
    nxt = lambda: (rest.pop(0) if rest else vfill.pop(0))
    while slot[0] < cfg.get('mlat', 13): Q(*nxt())
    def mlwait():
        first = p.vm.index(('m', 1))
        p.I(f's_waitcnt vmcnt({len(p.vm) - 1 - first})')
    if two:
        Q(*nxt(), MK('mla'), mlwait, MK('mlb'), 'v_max3_u32 v28, v4, v5, v6')
        Q(*nxt(), 'v_max_u32 v28, v28, v7', Wr(1))
        Q(*nxt(), f'v_cmp_le_u32 vcc, s{S_THR}, v28')
        Q(*nxt())
    else:
        Q(*nxt(), MK('mla'), mlwait, MK('mlb'), Wr(1))
        Q(*nxt(), 'v_max3_u32 v28, v4, v5, v6')
        Q(*nxt(), 'v_max_u32 v28, v28, v7')
        Q(*nxt(), f'v_cmp_le_u32 vcc, s{S_THR}, v28')
        Q(*nxt())
    while rest: Q(*rest.pop(0))
    for _ in range(cfg.get('nb4', 1)): Q(*nxt())
    p.I(f's_cbranch_vccnz L_ch_mlfail{"2" if two else ""}')
    n2 = p.vm[::-1].index(('m', 1))
    p.L('L_ch_mlok')
    p.wait(lg='all')
    mk('b4a')
    p.I('s_barrier')
    mk('b4b')
    mf(3)()
    Q(Q0, 1, ('q', 1, 0), mf(5), *S(1))
    Q(Q1, 1, ('q', 1, 1), mf(7), *S(1))
    Q(K0, 1, ('k', 1, 0), wl(('v', 5, 0), 0), *S(1))
    Q(K1, 1, ('k', 1, 1), wl(('v', 5, 0), 1))
    for _ in range(cfg.get('nvf', 0)): Q(*nxt(), *S(2))
    p.wait(lg=('mf', 3))
    Q(Q0, 3, ('q', 3, 0), MK('s3'), wl(('v', 5, 1), 0), *S(1))
    Q(Q1, 3, ('q', 3, 1), wl(('v', 5, 1), 1), *S(1))
    Q(K0, 3, ('k', 3, 0), wl(('v', 7, 0), 0), *S(1))
    Q(K1, 3, ('k', 3, 1), wl(('v', 7, 0), 1))
    p.wait(lg=('mf', 7))
    Q(Q0, 5, ('q', 5, 0), wl(('v', 7, 1), 0))
    Q(K0, 5, ('k', 5, 0), wl(('v', 7, 1), 1), *S(1))
    Q(Q0, 7, ('q', 7, 0), *S(3))
    Q(K0, 7, ('k', 7, 0), f's_mov_b64 vcc, s[{S_MQ1}:{S_MQ1+1}]', *S(2))
    Q(Q1, 5, ('q', 5, 1), *S(2), f'v_add_f32 v{Q0}, v{Q0}, v{Q0+2}')
    Q(K1, 5, ('k', 5, 1), *S(2), f'v_add_f32 v{Q0+1}, v{Q0+1}, v{Q0+3}', f'v_add_f32 v{K0}, v{K0}, v{K0+2}')
    Q(Q1, 7, ('q', 7, 1), *S(2), f'v_cvt_pk_bf16_f32 v{Q0+2}, v{Q0}, v{Q0+1}')
    Q(K1, 7, ('k', 7, 1), MK('qk1'), f'v_add_f32 v{K0+1}, v{K0+1}, v{K0+3}', f'v_cvt_pk_bf16_f32 v{Q0+3}, v{K0}, v{K0+1}')
    assert not place
    vq = [(5, 0), (5, 1), (7, 0), (7, 1)] + [(x[1], x[2][2]) for x in vfill] + [(sg, tt) for sg in (1, 3) for tt in range(2)]
    sal.extend([f's_cmp_lt_u32 s{S_STEP}, {NSTEP-2}', f's_cselect_b32 s{S_T1}, {0 if cfg.get("kvsame") else 32*16384}, 0'] + add64(S_KV, S_KV, f's{S_T1}'))
    sal.extend([f's_cmp_eq_u32 s{S_STEP}, 0', f's_cselect_b32 s{S_T1}, 0, {32*4096}'] + add64(S_PUB, S_PUB, f's{S_T1}'))
    WA = 16
    zq = [('z', f'v_mov_b32 v1, 0', None), ('z', f'v_mov_b32 v2, 0', None)] + [('z', f'v_mov_b64 {vr(MF+4*sg+2*h,2)}, 0', sg) for sg in (5, 7, 4, 6) for h in range(2)]
    ol = [wl(('o', t, 0), hh) for t in range(4) for hh in range(2)]
    nld = [0]
    def V(*shadow, auto=True):
        sg, tt = vq.pop(0)
        if HOME[('v', sg, tt)][0] == 'l': nld[0] += 1
        ex = list(shadow)
        if auto:
            z = None
            for i, (_, ins, need) in enumerate(zq):
                if need is None or not any(s_ == need for s_, _t in vq): z = zq.pop(i)[1]; break
            canl = ol and (8 - len(ol)) // 2 < nld[0]
            nextl = vq and HOME[('v',) + vq[0]][0] == 'l'
            if z:
                if canl and not nextl: ex.append(ol.pop(0))
                elif not nextl: ex += S(1)
                ex.append(z)
            else:
                if canl: ex.append(ol.pop(0))
                ex += S(3 - len(ex) - (1 if nextl else 0))
        smf(V0 + 4 * tt, MF + 4 * sg, ('v', sg, tt), *ex)
    p.I(f"""
    v_add_f32 v{Q1}, v{Q1}, v{Q1+2}
    v_add_f32 v{Q1+1}, v{Q1+1}, v{Q1+3}
    v_mfma_f32_16x16x16_bf16 {vr(K0,4)}, {vr(Q0+2,2)}, {vr(C_SELT,2)}, 0
    v_cvt_pk_bf16_f32 v{Q1+2}, v{Q1}, v{Q1+1}
    v_add_f32 v{K1}, v{K1}, v{K1+2}
    v_add_f32 v{K1+1}, v{K1+1}, v{K1+3}
    v_cvt_pk_bf16_f32 v{Q1+3}, v{K1}, v{K1+1}
    """)
    emit(S(2))
    p.I(f"""
    v_mfma_f32_16x16x16_bf16 {vr(K1,4)}, {vr(Q1+2,2)}, {vr(C_SELT,2)}, 0
    """)
    if cfg.get('vt', 1):
        emit(S(2)); V(auto=False)
    p.I(f"""
    v_cvt_pk_bf16_f32 v{Q0}, v{K0}, v{K0+1}
    v_cvt_pk_bf16_f32 v{Q0+1}, v{K0+2}, v{K0+3}
    v_cvt_pk_bf16_f32 v{Q0+2}, v{K1}, v{K1+1}
    v_cvt_pk_bf16_f32 v{Q0+3}, v{K1+2}, v{K1+3}
    """)
    emit(S(2))
    p.I(f'v_mfma_f32_16x16x32_bf16 {vr(K0,4)}, {vr(KX,4)}, {vr(Q0,4)}, 0')
    mk('sc')
    emit(S(2))
    p.I(f"""
    v_mfma_f32_16x16x32_bf16 {vr(K1,4)}, {vr(KX+4,4)}, {vr(Q0,4)}, 0
    v_mfma_f32_16x16x32_bf16 {vr(Q1,4)}, {vr(Q0,4)}, {vr(Q0,4)}, 0
    """)
    if cfg.get('vs', 1): V(auto=False)
    for r in range(4):
        p.I(f'v_cndmask_b32_dpp v{K0+r}, v{K1+r}, v{K0+r}, vcc quad_perm:[2,3,2,3] {DPP}')
    p.I(f'v_cndmask_b32_dpp v{Q1}, v{Q1+1}, v{Q1}, vcc quad_perm:[2,3,2,3] {DPP}')
    p.I(f'ds_write_b128 v{A_STW}, {vr(K0,4)} offset:{L_XCH}', tag='sx')
    p.I(f'ds_write_b32 v{A_MW}, v{Q1} offset:{L_XCH+1024}', tag='sx')
    mk('sw')
    for i in range(cfg.get('nva', 5)): V()
    p.wait(lg='sx', vm=('m', 1) if two else None)
    mk('b2a')
    p.I('s_barrier')
    mk('b2b')
    p.I(f'ds_read_b128 {vr(K1,4)}, v{A_ST1} offset:{L_XCH}', tag='s1')
    V(lambda: p.I(f'ds_read_b128 {vr(KX,4)}, v{A_ST2} offset:{L_XCH}', tag='s2'),
      lambda: p.I(f'ds_read_b128 {vr(KX+4,4)}, v{A_ST3} offset:{L_XCH}', tag='s3'),
      lambda: p.I(f'ds_read_b128 {vr(Q1,4)}, v{A_L16} offset:{L_XCH+1024}', tag='sm'), auto=False)
    while len(vq) > 1: V()
    V('s_not_b64 vcc, vcc', lambda: p.wait(lg='sm'), auto=False)
    emit(S(99))
    zl = [x[1] for x in zq]
    mk('sm0')
    T0, T1 = Q1 + 1, Q1 + 2
    def OL():
        if ol: ol.pop(0)()
    def Z(): return zl.pop(0) if zl else ''
    QH, QL = f'quad_perm:[2,3,2,3] {DPP}', f'quad_perm:[0,1,0,1] {DPP}'
    cm = [f'v_cndmask_b32 v{VX}, v{V0+2}, v{Q0}, vcc', f'v_cndmask_b32 v{VX+1}, v{V0+3}, v{Q0+1}, vcc',
          f'v_cndmask_b32_dpp v{VX+2}, v{V0+2}, v{Q0+2}, vcc quad_perm:[2,3,0,1] {DPP}', f'v_cndmask_b32_dpp v{VX+3}, v{V0+3}, v{Q0+3}, vcc quad_perm:[2,3,0,1] {DPP}']
    p.I(f"""
    v_add_f32 v{K0}, v{K0}, v{K1}
    v_add_f32 v{K0+1}, v{K0+1}, v{K1+1}
    v_add_f32 v{K0+2}, v{K0+2}, v{K1+2}
    v_add_f32 v{K0+3}, v{K0+3}, v{K1+3}
    v_pk_add_f32 {vr(KX,2)}, {vr(KX,2)}, {vr(KX+4,2)}
    v_pk_add_f32 {vr(KX+2,2)}, {vr(KX+2,2)}, {vr(KX+6,2)}
    v_pk_add_f32 {vr(Q1,2)}, {vr(Q1,2)}, {vr(Q1+2,2)}
    v_pk_add_f32 {vr(K0,2)}, {vr(K0,2)}, {vr(KX,2)}
    v_pk_add_f32 {vr(K0+2,2)}, {vr(K0+2,2)}, {vr(KX+2,2)}
    v_add_f32 v{Q1}, v{Q1}, v{Q1+1}
    v_max3_f32 v{T0}, v{K0}, v{K0+1}, v{K0+2}
    v_max3_f32 v{T0}, v{T0}, v{K0+3}, v{Q1}
    v_pk_add_f32 {vr(V0,2)}, {vr(V0,2)}, {vr(V0+2,2)}
    v_pk_add_f32 {vr(V1,2)}, {vr(V1,2)}, {vr(V1+2,2)}
    v_max_f32_dpp v{T0}, v{T0}, v{T0} quad_perm:[2,3,0,1] {DPP}
    v_mov_b32 v{T1}, v{T0}
    v_cvt_pk_bf16_f32 v{V0+2}, v{V0}, v{V0+1}
    v_cvt_pk_bf16_f32 v{V0+3}, v{V1}, v{V1+1}
    v_permlane16_swap_b32 v{T0}, v{T1}
    v_max_f32 v{T0}, v{T0}, v{T1}
    v_mov_b32 v{T1}, v{T0}
    v_mov_b64 {vr(K1,2)}, s[{S_ONE}:{S_ONE+1}]
    v_mov_b64 {vr(K1+2,2)}, s[{S_ONE}:{S_ONE+1}]
    v_permlane32_swap_b32 v{T0}, v{T1}
    v_max_f32 v{T0}, v{T0}, v{T1}
    """)
    mk('mx')
    p.I(f"""
    v_mul_f32 v{T1}, s{S_SC}, v{T0}
    v_pk_fma_f32 {vr(K0,2)}, {vr(K0,2)}, s[{S_SC}:{S_SC+1}], {vr(T1,2)} op_sel_hi:[1,1,0] neg_lo:[0,0,1] neg_hi:[0,0,1]
    v_pk_fma_f32 {vr(K0+2,2)}, {vr(K0+2,2)}, s[{S_SC}:{S_SC+1}], {vr(T1,2)} op_sel_hi:[1,1,0] neg_lo:[0,0,1] neg_hi:[0,0,1]
    v_fma_f32 v{Q1}, v{Q1}, s{S_SC}, -v{T1}
    v_exp_f32 v{K0}, v{K0}
    v_exp_f32 v{K0+1}, v{K0+1}
    v_exp_f32 v{K0+2}, v{K0+2}
    v_cvt_pk_bf16_f32 v{K0}, v{K0}, v{K0+1}
    v_exp_f32 v{K0+3}, v{K0+3}
    v_exp_f32 v{Q1}, v{Q1}
    v_cvt_pk_bf16_f32 v{K0+2}, v{K0+2}, v{K0+3}
    v_mov_b32_dpp v{KX}, v{K0} {QH}
    v_mov_b32_dpp v{KX+2}, v{K0} {QL}
    v_mov_b32_dpp v{KX+1}, v{K0+2} {QH}
    v_mov_b32_dpp v{KX+3}, v{K0+2} {QL}
    v_mov_b32_dpp v{T0}, v{Q1} {QH}
    v_mov_b32_dpp v{T1}, v{Q1} {QL}
    v_mfma_f32_16x16x32_bf16 {vr(KX+4,4)}, {vr(K1,4)}, {vr(KX,4)}, 0
    """)
    mk('pv')
    p.I(f"""
    v_cvt_pk_bf16_f32 v0, v{T0}, v{T1}
    v_cvt_pk_bf16_f32 v3, v{T0}, v{T1}
    v_mfma_f32_16x16x32_bf16 {vr(V1,4)}, {vr(VX+4,4)}, {vr(KX,4)}, 0
    """)
    OL(); p.I(Z())
    p.I(f'v_mfma_f32_16x16x32_bf16 {vr(K0,4)}, {vr(VX,4)}, {vr(KX,4)}, 0')
    OL(); p.I(Z() or cm.pop(0))
    p.I(f'v_mfma_f32_16x16x16_bf16 {vr(KX+4,4)}, {vr(K1,2)}, v[0:1], {vr(KX+4,4)}')
    OL(); p.I(Z() or cm.pop(0)); p.I(cm.pop(0))
    p.I(f'v_mfma_f32_16x16x16_bf16 {vr(V1,4)}, {vr(V0+2,2)}, v[2:3], {vr(V1,4)}')
    p.I(cm.pop(0))
    p.I(f'v_mfma_f32_16x16x16_bf16 {vr(K0,4)}, {vr(V0+2,2)}, v[0:1], {vr(K0,4)}')
    p.I(f'v_rcp_f32 v{Q1}, v{KX+4}')
    while ol: OL()
    while zl: p.I(Z())
    for x in cm: p.I(x)
    p.I(f"""
    s_cmp_ge_u32 s{S_STEP}, {NSTEP-1}
    v_mul_f32 v{V1}, v{V1}, v{Q1}
    v_mul_f32 v{V1+1}, v{V1+1}, v{Q1}
    v_pk_mul_f32 {vr(V1+2,2)}, {vr(V1+2,2)}, {vr(Q1,2)} op_sel_hi:[1,0]
    v_pk_mul_f32 {vr(K0,2)}, {vr(K0,2)}, {vr(Q1,2)} op_sel_hi:[1,0]
    v_pk_mul_f32 {vr(K0+2,2)}, {vr(K0+2,2)}, {vr(Q1,2)} op_sel_hi:[1,0]
    v_cvt_pk_bf16_f32 v{K0}, v{K0}, v{V1}
    v_cvt_pk_bf16_f32 v{K0+1}, v{K0+1}, v{V1+1}
    v_cvt_pk_bf16_f32 v{K0+2}, v{K0+2}, v{V1+2}
    v_cvt_pk_bf16_f32 v{K0+3}, v{K0+3}, v{V1+3}
    """)
    p.I(f'ds_write_b128 v{A_STW}, {vr(K0,4)} offset:{L_STG}', tag='ow')
    mk('ow')
    OA = [K0, Q1, K1, V0]
    def cv(t):
        a = WA + 2 * t
        return f'v_cvt_pk_bf16_f32 v{a}, v{a}, v{a+1}'
    def pst(t): return lambda: p.I(f'buffer_store_dword v{WA+2*t}, v{A_PST}, s[{S_SRD}:{S_SRD+3}], s{S_TO+t} offen {st}', tag='ps')
    def p_poll(tag=None):
        p.I(f'global_load_dwordx4 v[4:7], v{A_L16}, s[{S_PP}:{S_PP+1}] sc1', tag=tag)
        p.I(f'global_load_dwordx4 v[12:15], v{A_L16}, s[{S_PP}:{S_PP+1}] offset:1024 sc1', tag=tag)
    def W(pr, kap, *shadow): smf(WA + 4 * pr, OA[kap], ('o', pr, kap), *shadow)
    sent = [f'v_mov_b64 v[0:1], {vr(C_SENT,2)}', f'v_mov_b64 v[2:3], {vr(C_SENT,2)}']
    W(0, 0, MK('w0'), 's_cbranch_scc1 L_ch_done')
    W(1, 0, wl(('o', 3, 2), 0), sent[0])
    nw = cfg.get('nw', 3)
    def obar():
        p.wait(lg='ow')
        mk('b3a')
        p.I('s_barrier')
        mk('b3b')
        for kap in (1, 2, 3):
            p.I(f'ds_read_b128 {vr(OA[kap],4)}, v{areg[kap]} offset:{L_STG}', tag=('or', kap))
    if nw == 2: obar()
    W(2, 0, wl(('o', 3, 2), 1), sent[1])
    if nw == 3: obar()
    W(3, 0, wl(('o', 3, 3), 0), wl(('o', 3, 3), 1))
    if nw == 4: obar()
    p.I(f"""
    s_add_u32 s{S_STEP}, s{S_STEP}, 1
    s_mov_b64 s[{S_PPO}:{S_PPO+1}], s[{S_PP}:{S_PP+1}]
    s_xor_b32 s{S_PTOG}, s{S_PTOG}, 0x40000
    s_add_u32 s{S_T1}, s{S_STEP}, 1
    s_min_u32 s{S_T1}, s{S_T1}, 63
    s_cmp_eq_u32 s{S_LATE}, 1
    """)
    zw = [zacc[0], zacc[1], zacc[10], zacc[11]]
    emit(zw[:2])
    p.wait(lg=('or', 1)); W(0, 1, MK('w1'))
    p.wait(lg=('or', 2)); W(0, 2)
    p.wait(lg=('or', 3)); W(0, 3, zw[2])
    W(1, 1, zw[3])
    W(1, 2, cv(0))
    W(1, 3, pst(0), cv(1))
    W(2, 1, pst(1))
    W(2, 2, cv(2))
    W(2, 3, pst(2), cv(3))
    W(3, 1, pst(3))
    dl = cfg.get('dl', 0)
    fl = []
    for kk in pre_keys: fl += [wl(kk, 0), wl(kk, 1)]
    fl = [x for pr in zip(fl, zacc[2:10]) for x in pr]
    ep = 0
    W(3, 2, cv(4))
    if dl:
        if dl == 4: W(3, 3, MK('w7'), cv(5))
        else: W(3, 3, pst(4), cv(5), pst(5), MK('w7'))
        n0 = cfg.get('n0', 4)
        emit([fl[0], fl[2], zacc[2], zacc[3], zacc[4]])
        p.I(cv(6)); p.I(cv(7))
        mk('we')
        fl = [fl[4], zacc[5], fl[6], zacc[6], fl[8], zacc[7], fl[10], zacc[8], fl[12], zacc[9], fl[14]]
        emit(fl[:n0]); nops(cfg.get('d1e', 0))
        p.I('s_cbranch_scc1 L_ch_noe'); p_poll('pe'); p.L('L_ch_noe')
        p.I('s_barrier')
        for t in range(8 - dl, 8): pst(t)()
        emit(fl[n0:]); fl = []
    else:
        W(3, 3, pst(4), cv(5), pst(5), MK('w7'))
        p.I(cv(6)); p.I(cv(7)); pst(6)(); pst(7)()
        mk('we')
    p.I('s_cbranch_scc1 L_ch_late')
    def kvpart(n, lab2):
        p.I(f's_waitcnt vmcnt({n})')
        if not nofl: p.I(f'v_cmp_ge_u32 vcc, s{S_T1}, v{V_FL}')
        emit(kvmove)
        if not nofl:
            p.I(f's_cbranch_vccnz L_ch_fl{lab2}'); p.L(f'L_ch_flok{lab2}')
        p.I(f'v_mov_b32 v{V_FS}, s{S_STEP}')
        if not nofl:
            p.I(f's_add_u32 s{S_T1}, s{S_T1}, {cfg.get("fla", 2)}\ns_min_u32 s{S_T1}, s{S_T1}, 63\nv_cmp_ge_u32 vcc, s{S_T1}, v{V_FL}\ns_cmp_lg_u64 vcc, 0\ns_cselect_b64 s[{S_NEED}:{S_NEED+1}], -1, 0')
    def diag():
        if cfg.get('stamps'):
            l = p.lab('L_ch_st')
            p.I(f's_cmp_eq_u32 s{S_STEP}, 3\ns_cbranch_scc0 {l}')
            p.I(f's_mov_b32 s100, 0\ns_mov_b32 s101, 0')
            if not marks: p.I('s_mov_b32 s73, 0')
            p.I(f's_memrealtime s[92:93]\ns_memtime s[94:95]\ns_waitcnt lgkmcnt(0)')
            p.L(l)
            if cfg.get('mid'):
                l = p.lab('L_ch_st')
                p.I(f's_cmp_eq_u32 s{S_STEP}, {cfg["mid"]}\ns_cbranch_scc0 {l}')
                p.I(f's_memrealtime s[74:75]\ns_memtime s[76:77]\ns_mov_b32 s78, s100\ns_mov_b32 s80, s101\ns_waitcnt lgkmcnt(0)\ns_sub_u32 s74, s74, s92\ns_sub_u32 s76, s76, s94')
                p.L(l)
    def attempt(y, me=False):
        p.I(f"""
        s_waitcnt vmcnt({y+1})
        v_mfma_f32_16x16x32_bf16 v[8:11], {vr(C_SELR,4)}, v[4:7], 0
        s_waitcnt vmcnt({y})
        v_mfma_f32_16x16x32_bf16 v[8:11], {vr(C_SELR,4)}, v[12:15], v[8:11]
        """)
        if me in (1, 3): m_ld(0)
        mk('h1r')
        p.I(f"""
        v_add_f32_dpp v8, v8, v8 row_ror:4 {DPP}
        v_add_f32_dpp v9, v9, v9 row_ror:4 {DPP}
        v_cmp_u_f32 vcc, v10, v10
        v_add_f32_dpp v8, v8, v8 row_ror:8 {DPP}
        v_add_f32_dpp v9, v9, v9 row_ror:8 {DPP}
        v_cvt_pk_bf16_f32 v8, v8, v9
        """)
        if me in (2, 3): m_ld(0)
        p.I(f'global_store_dword v{A_MST}, v8, s[{S_MS}:{S_MS+1}] {st}')
    def retry(name, back):
        p.L(name)
        if cfg.get('stamps'): p.I('s_add_u32 s100, s100, 1')
        p_poll(); attempt(0)
        p.I(f"""
        s_cbranch_vccz {back}
        s_sub_u32 s{S_SPIN}, s{S_SPIN}, 1
        s_cbranch_scc0 {name}
        s_branch L_end
        """)
    n1e = cfg.get('n1e', 16)
    if not dl:
        emit(fl[:n1e]); nops(cfg.get('d1e', 16)); p_poll('pe'); emit(fl[n1e:])
    kvpart(10, 'e')
    diag()
    attempt(dl)
    p.I('s_cbranch_vccnz L_ch_eret')
    p.L('L_ch_eok')
    mk('ms')
    nops(cfg.get('d2e', 24))
    mk('h2a')
    eg = cfg.get('eg')
    if eg is None: p.I('s_waitcnt lgkmcnt(0)\ns_branch L_ch_mestart')
    else:
        m_ld(0)
        if eg > 0:
            nops(eg); m_ld(0)
        p.I(f's_waitcnt vmcnt({1 if eg > 0 else 0}) lgkmcnt(0)\ns_branch L_ch_chk')
    p.L('L_ch_late')
    emit(fl)
    kvpart(8, 'l')
    nops(cfg.get('d1l', 30))
    mk('h1a')
    p_poll()
    diag()
    lpre = cfg.get('lpre')
    if lpre is not None:
        nops(lpre); m_ld(0)
    attempt(0 if lpre is None else 1, me=cfg.get('lme', 3))
    p.I('s_cbranch_vccnz L_ch_lret')
    p.L('L_ch_lok')
    mk('ms')
    mk('h2a')
    nops(cfg.get('d2l', 0))
    if cfg.get('lw'): p.I('s_waitcnt vmcnt(1)')
    p.I('s_waitcnt lgkmcnt(0)\ns_branch L_ch_chk')
    retry('L_ch_eret', 'L_ch_eok')
    retry('L_ch_lret', 'L_ch_lok')
    if two:
        p.L('L_ch_mlfail2')
        p.I(f"""
        s_waitcnt vmcnt({n2}) lgkmcnt(0)
        v_max3_u32 v28, v4, v5, v6
        v_max_u32 v28, v28, v7
        v_cmp_le_u32 vcc, s{S_THR}, v28
        ds_write_b128 v{A_STW}, {vr(MF+4,4)} offset:{L_STG+1024}
        s_cbranch_vccz L_ch_mlok
        """)
    p.L('L_ch_mlfail')
    m_ld(1)
    if cfg.get('stamps') and not marks: p.I('s_add_u32 s73, s73, 1')
    p.I(f"""
    s_waitcnt vmcnt(0) lgkmcnt(0)
    v_max3_u32 v28, v4, v5, v6
    v_max_u32 v28, v28, v7
    v_cmp_le_u32 vcc, s{S_THR}, v28
    ds_write_b128 v{A_STW}, {vr(MF+4,4)} offset:{L_STG+1024}
    s_cbranch_vccz L_ch_mlok
    s_sub_u32 s{S_SPIN}, s{S_SPIN}, 1
    s_cbranch_scc0 L_ch_mlfail
    s_branch L_end
    """)
    if not nofl:
        fl_spin('L_ch_fle', 'L_ch_floke'); fl_spin('L_ch_fll', 'L_ch_flokl')
    p.L('L_ch_done')
    p.I(pubst)
    dbgt(p, cfg, 3)
    p.I(f'''
    v_mov_b32 v29, 65
    s_waitcnt vmcnt(0)
    s_barrier
    s_mov_b64 exec, 1
    global_store_dword v{A_L16}, v29, s[{S_FLC}:{S_FLC+1}] sc1
    s_mov_b64 exec, -1
    ''')
    if cfg.get('stamps'):
        p.I(f"""
        s_memtime s[60:61]
        s_memrealtime s[58:59]
        s_waitcnt lgkmcnt(0)
        s_sub_u32 s60, s60, s94
        v_mov_b32 v0, s60
        v_mov_b32 v1, s58
        v_mov_b32 v2, s92
        v_mov_b32 v3, s33
        v_mov_b32 v4, s64
        v_mov_b32 v5, s100
        v_mov_b32 v6, s101
        v_mov_b32 v7, s73
        v_mov_b32 v18, s11
        s_lshl_b32 s{S_T0}, s{S_H}, 2
        s_add_u32 s{S_T0}, s{S_T0}, s{S_W}
        s_lshl_b32 s{S_T0}, s{S_T0}, 7
        s_add_u32 s{S_T0}, s{S_T0}, {TS}
        v_mov_b32 v30, s{S_T0}
        """)
        for i in range(10): p.I(f'v_mov_b32 v{8+i}, s{72+2*i}')
        p.I('s_mov_b64 exec, 1')
        for q in range(5): p.I(f'global_store_dwordx4 v30, {vr(4*q,4)}, s[{S_WS}:{S_WS+1}] offset:{16*q}')
    p.I('s_branch L_end')

def relabel(p, start, old, new):
    for i in range(start, len(p.items)):
        it = p.items[i]
        if isinstance(it, Inst):
            if it.kind == 'branch' and it.target.startswith(old):
                p.items[i] = Inst(it.text.replace(old, new))
        elif it[0] == 'label' and it[1].startswith(old):
            p.items[i] = ('label', it[1].replace(old, new))

def build(cfg):
    import workers as Wk
    p = Prog()
    only = cfg.get('only')
    NARR[0] = 64 if only == 'chain' else 256
    FORCE[0] = cfg.get('force_safe', 0)
    Wk.TL[0] = cfg.get('tl', 0)
    Wk.CFG.clear(); Wk.CFG.update(cfg)
    NT.clear(); NT.update({c: 'nt' for c in cfg.get('nt', '')})
    common_prologue(p, cfg)
    p.I(f"""
L_role:
    s_cmp_ge_u32 s{S_H}, 32
    s_cbranch_scc1 L_norole
    s_cmp_ge_u32 s{S_XCC}, 2
    s_cbranch_scc1 {'L_end' if only == 'chain' else 'L_worker'}
    {'s_branch L_norole' if only == 'kv' else ''}
    s_mov_b32 s{S_M}, s{S_XCC}
    """)
    select_model(p)
    p.I(f's_cmp_eq_u32 s{S_MODE}, 1\ns_cbranch_scc1 L_chain_safe')
    chain(p, cfg, '', 'L_ch')
    if only == 'chain':
        p.L('L_norole'); p.L('L_safe'); p.L('L_chain_safe'); p.I('s_branch L_end')
        return finish(p, cfg)
    p.L('L_worker')
    p.I(f"""
    s_cmp_ge_u32 s{S_XCC}, 5
    s_cselect_b32 s{S_M}, 1, 0
    s_cselect_b32 s{S_T1}, 5, 2
    s_sub_u32 s{S_XCC}, s{S_XCC}, s{S_T1}
    """)
    if cfg.get('mix', 1):
        p.I(f"""
        s_lshl_b32 s{S_T0}, s{S_XCC}, 5
        s_add_u32 s{S_T0}, s{S_T0}, s{S_H}
        s_mul_i32 s{S_H}, s{S_T0}, 0x5556
        s_lshr_b32 s{S_H}, s{S_H}, 16
        s_mul_i32 s{S_T1}, s{S_H}, 3
        s_sub_u32 s{S_XCC}, s{S_T0}, s{S_T1}
        """)
    select_model(p)
    p.I(f"""
    s_cmp_eq_u32 s{S_XCC}, 1
    s_cbranch_scc1 L_vw
    s_cmp_eq_u32 s{S_XCC}, 2
    s_cbranch_scc1 {'L_norole' if only == 'kv' else 'L_qw'}
    """)
    p.reset_cnt(); Wk.kv_worker(p, cfg, 'k', 'L_k')
    p.I(f's_branch L_ow')
    p.L('L_vw')
    p.reset_cnt(); Wk.kv_worker(p, cfg, 'v', 'L_v')
    p.L('L_ow')
    if only == 'kv':
        Wk.ev_dump(p); p.I('s_branch L_end')
    p.reset_cnt(); Wk.o_worker(p, cfg, 'L_o')
    p.L('L_qw')
    p.reset_cnt(); Wk.q_worker(p, cfg, 'L_q')
    p.L('L_norole')
    arrive(p, 'L_n'); wait_all(p, 'L_n')
    p.I('s_branch L_end')
    p.L('L_safe')
    load_args(p)
    p.I(f"""
    s_mov_b32 s{S_MODE}, 1
    s_and_b32 s{S_XCC}, s2, 7
    s_lshr_b32 s{S_H}, s2, 3
    v_mbcnt_lo_u32_b32 v0, -1, 0
    v_mbcnt_hi_u32_b32 v0, -1, v0
    s_waitcnt vmcnt(0) lgkmcnt(0)
    s_barrier
    s_branch L_role
    """)
    p.L('L_chain_safe')
    n0 = len(p.items)
    p.reset_cnt(); chain(p, cfg, 'sc1', 'L_ch')
    relabel(p, n0, 'L_ch', 'L_cs')
    return finish(p, cfg)

def finish(p, cfg):
    p.L('L_end')
    if cfg.get('dbgt'):
        p.I(f's_load_dwordx2 s[{S_DBG}:{S_DBG+1}], s[0:1], 120\ns_waitcnt vmcnt(0) lgkmcnt(0)')
        dbgt(p, cfg, 4)
    p.L('L_end2')
    p.I('s_endpgm')
    n = p.fix_hazards(cfg.get('verbose', False))
    errs = p.check_branches()
    for e in errs: print(e)
    assert not errs
    head = f'''; @launch grid=(256,1,1) block=(256,1,1) lds=163840
.amdgcn_target "amdgcn-amd-amdhsa--gfx950"
.text
.globl {NAME}
.p2align 8
.type {NAME},@function
{NAME}:
'''
    tail = f'''.section .rodata,"a"
.p2align 6
.amdhsa_kernel {NAME}
  .amdhsa_next_free_vgpr 512
  .amdhsa_next_free_sgpr 102
  .amdhsa_accum_offset 256
  .amdhsa_group_segment_fixed_size 0
  .amdhsa_kernarg_size 136
  .amdhsa_user_sgpr_count 2
  .amdhsa_user_sgpr_kernarg_segment_ptr 1
  .amdhsa_system_sgpr_workgroup_id_x 1
  .amdhsa_float_denorm_mode_32 3
.end_amdhsa_kernel
'''
    return head + p.text() + tail

if __name__ == '__main__':
    cfg = eval(sys.argv[2]) if len(sys.argv) > 2 else {}
    open(sys.argv[1], 'w').write(build(cfg))
```

```python
from asmlib import *
import kern as K
MB = 1 << 20
S_W, S_H, S_M, S_WS, S_SRD, S_SPIN = K.S_W, K.S_H, K.S_M, K.S_WS, K.S_SRD, K.S_SPIN
T0, T1, T2, T3 = K.S_T0, K.S_T1, K.S_T2, K.S_T3
S_PL, S_PH = K.S_PL, K.S_PH
S_C4K = 32
S_KV, S_FLG, S_PUB, S_OF, S_FL2, S_FL3 = 40, 42, 44, 46, 48, 50
S_IT = 26
S_SC = 67
S_SRD2 = 52
RING, ACC, QF, MASK = 128, 160, 192, 224
V_L16, V_LHI, V_KA, V_VA, V_KM, V_VM, V_Z, V_T = 240, 241, 242, 243, 244, 245, 246, 248
add64 = K.add64

V_EV = 247
TL = [0]
CFG = {}
def ev(p, idx):
    if TL[0]:
        if isinstance(idx, tuple): p.I(f's_add_u32 m0, s{idx[0]}, {idx[1]}')
        else: p.I(f's_mov_b32 m0, {idx}')
        p.I(f's_memrealtime s[90:91]\ns_waitcnt lgkmcnt(0)\nv_writelane_b32 v{V_EV}, s90, m0')
        p.lg = []
def ev_dump(p):
    if TL[0]:
        p.I(f"""
        s_lshl_b32 s{T0}, s{K.S_XCC}, 5
        s_add_u32 s{T0}, s{T0}, s{S_H}
        s_lshl_b32 s{T0}, s{T0}, 2
        s_add_u32 s{T0}, s{T0}, s{S_W}
        s_lshl_b32 s{T0}, s{T0}, 8
        s_add_u32 s{T0}, s{T0}, {K.TS + 131072}
        v_lshrrev_b32 v224, 2, v{V_L16}
        v_add_u32 v224, s{T0}, v224
        global_store_dword v224, v{V_EV}, s[{S_WS}:{S_WS+1}]
        """)
def base_consts(p):
    if TL[0]:
        p.I(f'v_mov_b32 v{V_EV}, 0\ns_waitcnt lgkmcnt(0)\nv_writelane_b32 v{V_EV}, s94, 0')
        ev(p, 39)
    p.I(f'''
    v_lshlrev_b32 v{V_L16}, 4, v0
    v_add_u32 v{V_LHI}, 0x10000, v{V_L16}
    v_mov_b32 v{V_Z}, 0
    s_mov_b32 s{S_PL}, 0x05040100
    s_mov_b32 s{S_PH}, 0x07060302
    ''')
    for k in range(8): p.I(f's_mov_b32 s{S_C4K+k}, {4096*k}')
    p.I(f'''
    v_lshrrev_b32 v1, 5, v0
    v_lshlrev_b32 v1, 8, v1
    v_and_b32 v2, 8, v0
    v_lshl_add_u32 v2, v2, 7, v1
    v_and_b32 v3, 16, v0
    v_lshl_add_u32 v2, v3, 3, v2
    v_and_b32 v3, 7, v0
    v_lshl_add_u32 v{V_KA}, v3, 4, v2
    v_and_b32 v3, 16, v0
    v_lshl_add_u32 v2, v3, 6, v1
    v_and_b32 v3, 15, v0
    v_lshl_add_u32 v2, v3, 4, v2
    v_add_u32 v{V_VA}, 0x800, v2
    ''')

def xf_convert(p, half, R, SB):
    p.I(f'''
    s_add_u32 s{T0}, s{S_H}, {32*half}
    s_lshl_b32 s{T0}, s{T0}, 15
    v_and_b32 v1, 31, v0
    v_lshlrev_b32 v1, 10, v1
    v_lshrrev_b32 v2, 5, v0
    v_lshl_add_u32 v1, v2, 4, v1
    s_lshl_b32 s{T1}, s{S_W}, 8
    s_add_u32 s{T1}, s{T1}, s{T0}
    v_add_u32 v1, s{T1}, v1
    ''')
    for i in range(8):
        p.I(f'global_load_dwordx4 {vr(R+4*i,4)}, v1, s[{K.S_X}:{K.S_X+1}] offset:{32*i} {K.NT.get("x","")}', tag=('xc', half, i))
    p.I(f'''
    s_lshl_b32 s{T1}, s{S_W}, 13
    s_add_u32 s{T0}, s{T0}, s{T1}
    s_add_u32 s{T0}, s{T0}, {K.XF + 4096}
    ''')
    p.I('\n'.join(add64(SB, S_WS, f's{T0}')))
def xf_store(p, half, R, SB):
    for i in range(8):
        p.wait(vm=('xc', half, i))
        p.I(f'global_store_dwordx4 v{V_L16}, {vr(R+4*i,4)}, s[{SB}:{SB+1}] offset:{1024*i-4096} sc1')

V_WA = 232
WA = [V_WA]
def projw_issue(p, wptr, kind, xd=False, mid=None):
    L = V_T + 1
    p.I(f"""
    v_mov_b32 v{L}, v0
    v_lshrrev_b32 v2, 4, v0
    v_lshlrev_b32 v3, 2, v2
    v_and_b32 v1, 15, v0
    v_xor_b32 v1, v1, v3
    v_lshlrev_b32 v3, 13, v2
    v_lshl_add_u32 v3, v1, 4, v3
    s_lshl_b32 s{T0}, s{S_W}, 15
    s_lshl_b32 s{T1}, s{S_H}, 8
    s_add_u32 s{T0}, s{T0}, s{T1}
    v_add_u32 v{V_T}, s{T0}, v3
    s_lshl_b32 s{T2}, s{S_W}, 10
    """)
    p.I(f"""
    v_lshrrev_b32 v1, 5, v0
    v_lshlrev_b32 v1, 11, v1
    v_and_b32 v2, 12, v0
    v_lshl_add_u32 v1, v2, 6, v1
    v_lshl_add_u32 v1, v2, 4, v1
    v_and_b32 v2, 1, v0
    v_lshl_add_u32 v1, v2, 3, v1
    v_and_b32 v2, 2, v0
    v_and_b32 v3, 16, v0
    """)
    if kind == 'v': p.I('v_lshl_add_u32 v1, v2, 3, v1\nv_lshl_add_u32 v1, v3, 1, v1')
    else: p.I('v_lshl_add_u32 v1, v2, 4, v1\nv_add_u32 v1, v3, v1')
    for et in range(4):
        p.I(f'v_xor_b32 v{WA[0]+2*et}, {64*et}, v1\nv_add_u32 v{WA[0]+2*et+1}, 0x10000, v{WA[0]+2*et}')
    K.set_srd(p, wptr, 4 * MB)
    if xd:
        p.I(f"""
        v_and_b32 v{V_T+2}, 31, v{V_T+1}
        v_lshlrev_b32 v{V_T+2}, 10, v{V_T+2}
        v_lshrrev_b32 v{V_T+3}, 5, v{V_T+1}
        v_lshl_add_u32 v{V_T+2}, v{V_T+3}, 4, v{V_T+2}
        s_lshl_b32 s{T0}, s{S_W}, 15
        v_add_u32 v{V_T+2}, s{T0}, v{V_T+2}
        """)
    for i in range(32):
        p.I(f's_add_u32 m0, s{T2}, {i*4096}\ns_mov_b32 s{T3}, {i*16*8192}')
        p.I(f'buffer_load_dwordx4 v{V_T}, s[{S_SRD}:{S_SRD+3}], s{T3} offen {K.NT.get(kind.upper(),"")} lds', tag='pw')
        if mid and i == 7: mid()
        if xd:
            if i >= 28: p.I('s_waitcnt vmcnt(56)')
            p.I(f'global_load_dwordx4 {vr(4*i,4)}, v{V_T+2}, s[{K.S_X}:{K.S_X+1}] offset:{32*i}', tag='pw')

def xs(buf, ks):
    if buf == 0 and WA[0] == 120 and ks >= 30: return ar(232 + 4 * (ks - 30), 4)
    return vr(4 * ks, 4) if buf == 0 else ar(4 * ks, 4)
def xload(p, buf, ks):
    p.I(f'buffer_load_dwordx4 {xs(buf,ks)}, v{V_L16}, s[{S_SRD}:{S_SRD+3}], s{S_C4K+(ks>>2)} offen offset:{(ks&3)*1024} {CFG.get("xm","sc1")}', tag=('x', buf))
RD = 6
def wread(p, phi):
    phi %= 128
    et, ks = phi >> 5, phi & 31
    for x2 in range(2):
        p.I(f'ds_read_b64_tr_b16 {vr(RING+4*(phi%8)+2*x2,2)}, v{WA[0]+2*et+(ks>>4)} offset:{(ks&15)*4096 + x2*1024}', tag=('w', phi))

def xdirect(p):
    p.I(f"""
    v_and_b32 v{V_T+2}, 31, v{V_T+1}
    v_lshlrev_b32 v{V_T+2}, 10, v{V_T+2}
    v_lshrrev_b32 v{V_T+3}, 5, v{V_T+1}
    v_lshl_add_u32 v{V_T+2}, v{V_T+3}, 4, v{V_T+2}
    s_lshl_b32 s{T0}, s{S_W}, 15
    v_add_u32 v{V_T+2}, s{T0}, v{V_T+2}
    """)
    for ks in range(32):
        p.I(f'global_load_dwordx4 {vr(4*ks,4)}, v{V_T+2}, s[{K.S_X}:{K.S_X+1}] offset:{32*ks}', tag=('x', 0))

def proj_setup(p):
    p.I(f'''
    s_lshl_b32 s{T0}, s{S_W}, 15
    s_add_u32 s{T0}, s{T0}, {K.XF}
    s_add_u32 s{S_SRD}, s{S_WS}, s{T0}
    s_addc_u32 s{S_SRD+1}, s{S_WS+1}, 0
    s_mov_b32 s{S_SRD+2}, 0x8000
    s_mov_b32 s{S_SRD+3}, 0x20000
    ''')
    p.I('\n'.join(add64(S_SRD, S_SRD, 4 * 32768)))
    p.I(f'''
    s_lshl_b32 s{T0}, s{S_W}, 19
    s_lshl_b32 s{T1}, s{S_H}, 14
    s_add_u32 s{T0}, s{T0}, s{T1}
    s_add_u32 s{S_SRD2}, s{S_WS}, s{T0}
    s_addc_u32 s{S_SRD2+1}, s{S_WS+1}, 0
    s_mov_b32 s{S_SRD2+2}, 0x4000
    s_mov_b32 s{S_SRD2+3}, 0x20000
    s_mov_b32 s{S_IT}, 0
    ''')

def proj_body(p, kind, buf, extra, ringcont=True, pf0=0, pfs=3, pref=True):
    nl = 0
    for et in range(4):
        acc = ACC + 16 * (et & 1)
        for ks in range(32):
            phi = 32 * et + ks
            if phi + RD < 128 or ringcont: wread(p, phi + RD)
            p.wait(lg=('w', phi))
            w = vr(RING + 4 * (phi % 8), 4)
            a, b = (xs(buf, ks), w) if kind == 'v' else (w, xs(buf, ks))
            p.I(f'v_mfma_f32_32x32x16_bf16 {vr(acc,16)}, {a}, {b}, {"0" if ks == 0 else vr(acc,16)}')
            if pref and phi >= pf0 and (phi - pf0) % pfs == pfs - 1 and nl < 32:
                if not CFG.get('nox'): xload(p, 1 - buf, nl)
                nl += 1
            for x in extra.get((et, ks), []):
                if callable(x): x()
                else: p.I(x)
    if pref: p.I('\n'.join(add64(S_SRD, S_SRD, 4 * 32768)))

def pack(dst, acc):
    return [f'v_cvt_pk_bf16_f32 v{dst+i}, v{acc+2*i}, v{acc+2*i+1}' for i in range(8)]

def kv_worker(p, cfg, kind, lab):
    half = 0 if kind == 'k' else 1
    base_consts(p)
    WA[0] = V_WA
    p.I(f"""
    s_lshl_b32 s{T0}, s{S_H}, 9
    s_lshl_b32 s{T1}, s{S_W}, 7
    s_add_u32 s{T0}, s{T0}, s{T1}
    s_add_u32 s{T0}, s{T0}, {K.FL + (K.F_K if kind == 'k' else K.F_V)}
    """)
    p.I('\n'.join(add64(S_FLG, S_WS, f's{T0}')))
    p.I(f'v_mov_b32 v{V_T+5}, s{S_W}\ns_mov_b64 exec, 1\nglobal_store_dword v{V_Z}, v{V_T+5}, s[{S_FLG}:{S_FLG+1}] sc1\ns_mov_b64 exec, -1')
    p.I(f"""
    s_mov_b32 s{S_SRD2}, s{K.S_X}
    s_and_b32 s{S_SRD2+1}, s{K.S_X+1}, 0xffff
    s_mov_b32 s{S_SRD2+2}, {2*MB}
    s_mov_b32 s{S_SRD2+3}, 0x20000
    s_lshl_b32 s{T2}, s{S_W}, 15
    """)
    for r in range(32):
        p.I(f'v_xor_b32 v{128+(r&15)}, {(r&15)*16}, v{V_L16}' if r < 16 else 's_nop 0')
        p.I(f's_add_u32 m0, s{T2}, {32768 + r*1024}\ns_add_u32 s{T3}, s{T2}, {r*1024}')
        p.I(f'buffer_load_dwordx4 v{128+(r&15)}, s[{S_SRD2}:{S_SRD2+3}], s{T3} offen {K.NT.get("y","")} lds', tag='x0')
    def mid():
        p.I(f"""
        v_and_b32 v144, 31, v{V_T+1}
        v_lshlrev_b32 v145, 10, v144
        v_and_b32 v144, 15, v144
        v_lshrrev_b32 v146, 5, v{V_T+1}
        v_xor_b32 v144, v144, v146
        v_lshl_add_u32 v145, v144, 4, v145
        s_lshl_b32 s{T0}, s{S_W}, 15
        s_add_u32 s{T0}, s{T0}, 0x8000
        v_add_u32 v145, s{T0}, v145
        """)
        for q in range(8): p.I(f'v_xor_b32 v{128+q}, {q*32}, v145')
        p.wait(vm='x0')
        for ks in range(32):
            p.I(f'ds_read_b128 {vr(4*ks,4)}, v{128+(ks&7)} offset:{(ks>>3)*256}')
            if ks % 8 == 7: p.wait(lg='all')
        K.arrive(p, lab, keep=8)
        ev(p, 19)
        for _ in range(cfg.get('kvdelay', 0)): p.I('s_sleep 32')
    projw_issue(p, K.S_WK if kind == 'k' else K.S_WV, kind, mid=mid)
    ev(p, 58)
    proj_setup(p)
    ev(p, 57)
    p.I('s_waitcnt vmcnt(0)\ns_barrier')
    ev(p, 59)
    p.reset_cnt()
    for phi in range(RD): wread(p, phi)
    va = V_KA if kind == 'k' else V_VA
    def epi(et, tag):
        acc = ACC + 16 * (et & 1); pk = pack(QF + 8 * (et & 1), acc)
        st = [lambda f=f: p.I(f'buffer_store_dwordx4 {vr(QF+8*(et&1)+4*f,4)}, v{va}, s[{S_SRD2}:{S_SRD2+3}], s{S_C4K+et} offen offset:{512*f} {CFG.get("stm","sc1")}', tag=tag) for f in range(2)]
        if CFG.get('nost'): st = [lambda: None, lambda: None]
        return pk, st
    def sched(extra, et_run, et, tag, post=()):
        pk, st = epi(et, tag)
        for i in range(4): extra.setdefault((et_run, 3 + i), []).extend(pk[2*i:2*i+2])
        extra.setdefault((et_run, 6), []).append(st[0]); extra.setdefault((et_run, 9), []).append(st[1])
        extra[(et_run, 9)].extend(post)
    def flag():
        p.wait(vm='e3')
        p.I(f's_lshl_b32 s{T0}, s{S_IT}, 2\ns_add_u32 s{T0}, s{T0}, s{S_W}\nv_mov_b32 v{V_T}, s{T0}')
        p.I(f's_mov_b64 exec, 1\nglobal_store_dword v{V_Z}, v{V_T}, s[{S_FLG}:{S_FLG+1}] sc1\ns_mov_b64 exec, -1')
    adv = add64(S_SRD2, S_SRD2, 4 * 32 * 16384)
    S_OI, S_LB, S_SRD3 = 56, 57, 72
    V_OA, V_OT = 228, 229
    L = V_T + 1
    if cfg.get('mix', 1): p.I(f's_lshl_b32 s{S_OI}, s{S_H}, 1\ns_add_u32 s{S_OI}, s{S_OI}, s{K.S_XCC}')
    else: p.I(f's_lshl_b32 s{S_OI}, s{K.S_XCC}, 5\ns_add_u32 s{S_OI}, s{S_OI}, s{S_H}')
    p.I(f"""
    v_lshrrev_b32 v224, 2, v{L}
    v_lshlrev_b32 v224, 10, v224
    v_and_b32 v225, 3, v{L}
    v_lshl_add_u32 v224, v225, 4, v224
    s_lshl_b32 s{T0}, s{S_W}, 20
    s_and_b32 s{T1}, s{S_OI}, 15
    s_lshl_b32 s{T1}, s{T1}, 6
    s_add_u32 s{T0}, s{T0}, s{T1}
    v_add_u32 v{V_OA}, s{T0}, v224
    s_lshl_b32 s{S_LB}, s{S_W}, 13
    s_add_u32 s{S_LB}, s{S_LB}, 0x20000
    v_lshrrev_b32 v224, 5, v{L}
    v_lshlrev_b32 v224, 8, v224
    v_and_b32 v226, 12, v{L}
    v_lshl_add_u32 v224, v226, 4, v224
    v_and_b32 v226, 16, v{L}
    v_lshl_add_u32 v224, v226, 1, v224
    v_lshl_add_u32 v224, v225, 3, v224
    v_add_u32 v{V_OT}, s{S_LB}, v224
    s_mov_b32 s{S_SRD3}, s{K.S_WO}
    s_and_b32 s{S_SRD3+1}, s{K.S_WO+1}, 0xffff
    s_mov_b32 s{S_SRD3+2}, {4*MB}
    s_mov_b32 s{S_SRD3+3}, 0x20000
    """)
    def wo_dma(q, i):
        def f():
            if i == 0: p.wait(lg=('ot', q - 1))
            p.I(f's_add_u32 m0, s{S_LB}, {i*1024}\ns_mov_b32 s{T3}, {q*131072 + i*16384}')
            p.I(f'buffer_load_dwordx4 v{V_OA}, s[{S_SRD3}:{S_SRD3+3}], s{T3} offen lds', tag=('ow', q))
        return f
    def wo_rd(q, fr):
        def f():
            if fr == 0: p.wait(vm=('ow', q))
            for x in range(2):
                p.I(f'ds_read_b64_tr_b16 {wof(8*q+fr, 2*x, 2)}, v{V_OT} offset:{fr*1024 + x*512}', tag=('ot', q))
        return f
    p.I(f's_lshl_b32 s{T0}, s{S_H}, 9\ns_add_u32 s{T0}, s{T0}, {K.FL + K.F_C}')
    p.I('\n'.join(add64(S_FL3, S_WS, f's{T0}')))
    def body(buf, first, wo=None, hold=False):
        extra = {}
        if not first:
            sched(extra, 0, 3, 'e3', adv)
            extra.setdefault((1, 1), []).append(flag)
            if hold and cfg.get('hold', 1):
                def hw():
                    vm = list(p.vm)
                    p.I(f's_cmp_eq_u32 s{S_IT}, 1\ns_cbranch_scc0 {lab}_hw_ok')
                    poll_flags(p, f'{lab}_hw', S_FL3, 1, S_IT, V_Z, sleep=8)
                    p.vm = vm
                extra[(1, 1)].append(hw)
        for et in range(3): sched(extra, et + 1, et, 'e')
        if wo is not None:
            for et in range(4):
                q = 4 * wo + et
                for i in range(8):
                    extra.setdefault((et, i), []).append(wo_dma(q, i))
                    extra.setdefault((et, 23 + i), []).append(wo_rd(q, i))
        if first:
            def wa():
                lg = list(p.lg); K.wait_all(p, lab); p.lg = lg
                ev(p, 2)
            extra.setdefault((1, 31), []).append(wa)
            proj_body(p, kind, buf, extra, pf0=64, pfs=1)
        else: proj_body(p, kind, buf, extra, pref=(wo != 1), ringcont=(wo != 1))
        p.I(f's_add_u32 s{S_IT}, s{S_IT}, 1')
        ev(p, (S_IT, 2))
    p.wait(vm='all')
    if TL[0]: p.I('s_memtime s[88:89]')
    ev(p, 1)
    ev(p, 37)
    body(0, True)
    lg0 = list(p.lg)
    p.L(f'{lab}_loop')
    p.I('s_waitcnt vmcnt(2)'); p.vm = []
    body(1, False, hold=True)
    p.I(f's_cmp_ge_u32 s{S_IT}, 14\ns_cbranch_scc1 {lab}_fin')
    p.I('s_waitcnt vmcnt(2)'); p.vm = []
    body(0, False)
    assert p.lg == lg0
    p.I(f's_branch {lab}_loop')
    p.L(f'{lab}_fin')
    p.I('s_waitcnt vmcnt(2)'); p.vm = []
    body(0, False, 0)
    p.wait(vm=('x', 1))
    body(1, False, 1)
    if TL[0]: p.I(f's_memtime s[86:87]\ns_waitcnt lgkmcnt(0)\ns_sub_u32 s86, s86, s88\nv_writelane_b32 v{V_EV}, s86, 38')
    pk, st = epi(3, 'e3')
    for x in pk: p.I(x)
    for x in st: x()
    flag()
    p.I(f's_mov_b32 s{S_H}, s{S_OI}\ns_waitcnt lgkmcnt(0)')
    p.reset_cnt()

def wof(k, o=0, n=4):
    return ar(128 + 4 * k + o, n) if k < 32 else vr(4 * (k - 32) + o, n)

def poll_flags(p, lab, sbase, nl, need_s, vaddr, sleep=2):
    p.I(f'''
{lab}:
    global_load_dword v{V_T}, v{vaddr}, s[{sbase}:{sbase+1}] sc1
    s_waitcnt vmcnt(0)
    v_cmp_gt_u32 vcc, s{need_s}, v{V_T}
    s_cbranch_vccz {lab}_ok
    s_sleep {sleep}
    s_sub_u32 s{S_SPIN}, s{S_SPIN}, 1
    s_cbranch_scc0 {lab}
    s_branch L_end
{lab}_ok:
    ''')
    p.vm = []

def q_worker(p, cfg, lab):
    base_consts(p)
    L = V_T + 1
    p.I(f'''
    s_lshl_b32 s{T0}, s{S_W}, 12
    s_lshl_b32 s{T1}, s{S_H}, 7
    s_add_u32 s{T0}, s{T0}, s{T1}
    s_add_u32 s{T0}, s{T0}, {K.FL + K.F_O}
    ''')
    p.I('\n'.join(add64(S_FLG, S_WS, f's{T0}')))
    p.I(f's_mov_b64 exec, 1\nglobal_store_dword v{V_Z}, v{V_Z}, s[{S_FLG}:{S_FLG+1}] sc1\ns_mov_b64 exec, -1')
    p.I(f"""
    s_mov_b32 s{S_SRD2}, s{K.S_X}
    s_and_b32 s{S_SRD2+1}, s{K.S_X+1}, 0xffff
    s_mov_b32 s{S_SRD2+2}, {2*MB}
    s_mov_b32 s{S_SRD2+3}, 0x20000
    s_lshr_b32 s{T0}, s{S_W}, 1
    s_lshl_b32 s{T0}, s{T0}, 5
    s_add_u32 s{T0}, s{T0}, s{S_H}
    s_lshl_b32 s{T0}, s{T0}, 15
    s_and_b32 s{T1}, s{S_W}, 1
    s_lshl_b32 s{T2}, s{T1}, 9
    s_add_u32 s{S_KV}, s{T0}, s{T2}
    s_lshl_b32 s{T1}, s{T1}, 14
    s_add_u32 s{T0}, s{T0}, s{T1}
    s_add_u32 s{T0}, s{T0}, {K.XF}
    s_add_u32 s{S_SRD}, s{S_WS}, s{T0}
    s_addc_u32 s{S_SRD+1}, s{S_WS+1}, 0
    s_mov_b32 s{S_SRD+2}, 0x4000
    s_mov_b32 s{S_SRD+3}, 0x20000
    s_lshl_b32 s{T2}, s{S_W}, 14
    v_lshrrev_b32 v1, 5, v0
    v_and_b32 v2, 31, v0
    v_xor_b32 v3, v2, v1
    v_lshlrev_b32 v3, 4, v3
    v_lshl_add_u32 v3, v1, 10, v3
    """)
    for i in range(16):
        p.I(f'v_xor_b32 v{8+(i&7)}, {(i&7)*32}, v3' if i < 8 else 's_nop 0')
        p.I(f's_add_u32 m0, s{T2}, {i*1024}\ns_add_u32 s{T3}, s{S_KV}, {i*2048}')
        p.I(f'buffer_load_dwordx4 v{8+(i&7)}, s[{S_SRD2}:{S_SRD2+3}], s{T3} offen {K.NT.get("x","")} lds', tag='xc')
    p.I(f"""
    v_and_b32 v4, 15, v0
    v_xor_b32 v4, v4, v1
    v_lshlrev_b32 v4, 4, v4
    v_lshl_add_u32 v4, v2, 9, v4
    v_add_u32 v4, s{T2}, v4
    """)
    for q in range(8): p.I(f'v_xor_b32 v{16+q}, {q*32}, v4')
    p.wait(vm='xc')
    for i in range(16):
        p.I(f'ds_read_b128 {vr(32+4*i,4)}, v{16+(i&7)} offset:{(i>>3)*256}', tag=('xr', i))
        if i == 7: p.wait(lg=('xr', 0))
    for i in range(16):
        p.wait(lg=('xr', i))
        p.I(f'buffer_store_dwordx4 {vr(32+4*i,4)}, v{V_L16}, s[{S_SRD}:{S_SRD+3}], s{S_C4K+(i>>2)} offen offset:{(i&3)*1024} sc1')
    ev(p, 57)
    WA[0] = 120
    K.arrive(p, lab)
    ev(p, 19)
    p.I(f'v_mov_b32 v{L}, v0')
    for _ in range(cfg.get('qdelay', 0)): p.I('s_sleep 32')
    if not cfg.get('qwait', 1): projw_issue(p, K.S_WQ, 'q')
    p.I(f'''
    s_lshl_b32 s{T0}, s{S_H}, 9
    s_add_u32 s{T2}, s{T0}, {K.FL + K.F_C}
    s_lshl_b32 s{T1}, s{S_W}, 7
    s_add_u32 s{T0}, s{T0}, s{T1}
    s_add_u32 s{T0}, s{T0}, {K.FL + K.F_K}
    ''')
    p.I('\n'.join(add64(S_FL2, S_WS, f's{T0}') + add64(S_FL3, S_WS, f's{T2}')))
    V_FKV, V_FC = 254, 255
    p.I(f'''
    v_and_b32 v{V_FKV}, 1, v{L}
    v_mul_u32_u24 v{V_FKV}, {K.F_V - K.F_K}, v{V_FKV}
    v_mov_b32 v{V_FC}, 0
    ''')
    p.I(f'''
    v_lshrrev_b32 v{V_T+2}, 5, v{L}
    v_lshlrev_b32 v{V_T+3}, 8, v{V_T+2}
    v_and_b32 v{V_T+4}, 6, v{L}
    v_lshl_add_u32 v{V_T+3}, v{V_T+4}, 5, v{V_T+3}
    v_and_b32 v{V_T+4}, 1, v{L}
    v_lshl_add_u32 v{V_KM}, v{V_T+4}, 4, v{V_T+3}
    v_lshlrev_b32 v{V_T+3}, 9, v{V_T+2}
    v_and_b32 v{V_T+4}, 15, v{L}
    v_or_b32 v{V_T+4}, 2, v{V_T+4}
    v_lshl_add_u32 v{V_T+3}, v{V_T+4}, 4, v{V_T+3}
    v_and_b32 v{V_T+4}, 16, v{L}
    v_lshrrev_b32 v{V_T+4}, 2, v{V_T+4}
    v_add_u32 v{V_T+3}, v{V_T+3}, v{V_T+4}
    v_and_b32 v{V_T+4}, 2, v{L}
    v_xor_b32 v{V_T+4}, 2, v{V_T+4}
    v_lshl_add_u32 v{V_VM}, v{V_T+4}, 2, v{V_T+3}
    ''')
    p.I(f'''
    v_and_b32 v{V_T+3}, 31, v{L}
    v_lshlrev_b32 v{V_T+2}, 2, v{V_T+2}
    v_sub_u32 v{V_T+3}, v{V_T+3}, v{V_T+2}
    v_mov_b32 v{V_T+4}, 0xf149f2ca
    s_mov_b32 s{S_SC}, 0x3e0293ee
    ''')
    for r in range(16):
        p.I(f'v_cmp_gt_i32 vcc, {8*(r>>2)+(r&3)}, v{V_T+3}\nv_cndmask_b32 v{MASK+r}, 0, v{V_T+4}, vcc')
    if cfg.get('qwait', 1):
        K.wait_all(p, lab)
        p.I(f's_mov_b32 s{T2}, 1')
        poll_flags(p, f'{lab}_pw', S_FL3, 4, T2, V_FC, sleep=8)
        projw_issue(p, K.S_WQ, 'q')
        p.I('s_waitcnt vmcnt(0)\ns_barrier')
        ev(p, 1)
    else:
        p.I('s_waitcnt vmcnt(0)\ns_barrier')
        ev(p, 1)
        K.wait_all(p, lab)
    ev(p, 2)
    p.reset_cnt()
    proj_setup(p)
    p.I(f's_sub_u32 s{S_SRD}, s{S_SRD}, {4*32768}\ns_subb_u32 s{S_SRD+1}, s{S_SRD+1}, 0')
    def xl():
        for ks in range(32): xload(p, 1, ks)
        p.I('\n'.join(add64(S_SRD, S_SRD, 4 * 32768)))
    xl()
    p.I(f"""
    s_lshl_b32 s{T0}, s{S_W}, 17
    s_lshl_b32 s{T1}, s{S_H}, 12
    s_add_u32 s{T0}, s{T0}, s{T1}
    s_add_u32 s{T1}, s{T0}, {K.KVM}
    s_lshl_b32 s{T0}, s{T0}, 1
    s_add_u32 s{T0}, s{T0}, {K.OF + 4096}
    """)
    p.I('\n'.join(add64(S_PUB, S_WS, f's{T1}') + add64(S_OF, S_WS, f's{T0}')))
    AK, AV, AM, AVM = 128, 160, 192, 224
    S, SM = ACC, ACC + 16
    P, PM, OP = RING, RING + 8, RING + 12
    QB = [QF, 0]; OX = 32
    TM, TN, LX, TA = 96, 97, 98, 100
    def proj(par):
        p.lg = []
        for phi in range(RD): wread(p, phi)
        extra = {}
        for et in range(3):
            pk = pack(QB[par] + 8 * et, ACC + 16 * (et & 1))
            for i in range(4): extra.setdefault((et + 1, 3 + i), []).extend(pk[2*i:2*i+2])
        proj_body(p, 'q', 1, extra, ringcont=False, pref=False)
        p.I('s_waitcnt vmcnt(0)')
        xl()
        for x in pack(QB[par] + 24, ACC + 16): p.I(x)
    def oflag():
        p.I(f"""
        v_mov_b32 v{V_T}, s{S_IT}
        s_mov_b64 exec, 1
        global_store_dword v{V_Z}, v{V_T}, s[{S_FLG}:{S_FLG+1}] sc1
        s_mov_b64 exec, -1
        """)
        ev(p, (S_IT, 40))
    def kvload(n):
        p.I(f's_lshl_b32 s{T2}, s{S_IT}, 2\ns_add_u32 s{T2}, s{T2}, s{S_W}\ns_add_u32 s{T2}, s{T2}, 1')
        poll_flags(p, f'{lab}_pk{n}', S_FL2, 2, T2, V_FKV)
        oflag()
        for et in range(4):
            for f in range(2):
                p.I(f'buffer_load_dwordx4 {ar(AK+8*et+4*f,4)}, v{V_KA}, s[{S_SRD2}:{S_SRD2+3}], s{S_C4K+et} offen offset:{512*f} sc1', tag='kv')
        for et in range(4):
            for f in range(2):
                p.I(f'buffer_load_dwordx4 {ar(AV+8*et+4*f,4)}, v{V_VA}, s[{S_SRD2}:{S_SRD2+3}], s{S_C4K+et} offen offset:{512*f} sc1', tag='kv')
        p.I('\n'.join(add64(S_SRD2, S_SRD2, 4 * 32 * 16384)))
    def attn(par, n):
        Qf = QB[par]
        p.I(f's_add_u32 s{S_IT}, s{S_IT}, 1')
        p.vm = []
        for i in range(8):
            p.wait(vm=('k', i >> 1, i & 1))
            p.I(f'v_mfma_f32_32x32x16_bf16 {vr(S,16)}, {ar(AK+4*i,4)}, {vr(Qf+4*i,4)}, {vr(MASK,16) if i == 0 else vr(S,16)}')
        p.I(f'v_max3_f32 v{TM}, v{S}, v{S+1}, v{S+2}')
        for i in range(3, 15, 2): p.I(f'v_max3_f32 v{TM}, v{TM}, v{S+i}, v{S+i+1}')
        p.I(f"""
        v_max_f32 v{TM}, v{TM}, v{S+15}
        v_mov_b32 v{TN}, v{TM}
        v_permlane32_swap_b32 v{TM}, v{TN}
        v_max_f32 v{TM}, v{TM}, v{TN}
        v_mul_f32 v{TM}, s{S_SC}, v{TM}
        """)
        for r in range(16): p.I(f'v_fma_f32 v{S+r}, v{S+r}, s{S_SC}, -v{TM}')
        for r in range(16): p.I(f'v_exp_f32 v{S+r}, v{S+r}')
        for i in range(8): p.I(f'v_cvt_pk_bf16_f32 v{P+i}, v{S+2*i}, v{S+2*i+1}')
        for i in range(4): p.I(f'v_pk_add_f32 {vr(S+4*i,2)}, {vr(S+4*i,2)}, {vr(S+4*i+2,2)}')
        p.I(f"""
        v_pk_add_f32 {vr(S,2)}, {vr(S,2)}, {vr(S+4,2)}
        v_pk_add_f32 {vr(S+8,2)}, {vr(S+8,2)}, {vr(S+12,2)}
        v_pk_add_f32 {vr(S,2)}, {vr(S,2)}, {vr(S+8,2)}
        v_add_f32 v{LX}, v{S}, v{S+1}
        """)
        p.wait(vm='v')
        for et in range(4):
            p.I(f'v_mfma_f32_32x32x16_bf16 {vr(OX+16*et,16)}, {ar(AV+8*et,4)}, {vr(P,4)}, 0')
            p.I(f'v_mfma_f32_32x32x16_bf16 {vr(OX+16*et,16)}, {ar(AV+8*et+4,4)}, {vr(P+4,4)}, {vr(OX+16*et,16)}')
        ev(p, (S_IT, 2))
        p.I(f's_add_u32 s{T2}, s{T2}, 1')
        poll_flags(p, f'{lab}_pc{n}', S_FL3, 4, T2, V_FC, sleep=1)
        ev(p, (S_IT, 20))
        for i in range(8):
            p.I(f'global_load_dwordx4 {ar(AM+4*i,4)}, v{V_KM}, s[{S_PUB}:{S_PUB+1}] offset:{512*i} sc1', tag=('m', i))
        for et in range(4):
            for d in range(2):
                p.I(f'global_load_dword a{AVM+2*et+d}, v{V_VM}, s[{S_PUB}:{S_PUB+1}] offset:{1024*et+256*d} sc1', tag='vm')
        p.I('\n'.join(add64(S_PUB, S_PUB, 4 * 32 * 4096)))
        for i in range(8):
            p.wait(vm=('m', i))
            p.I(f'v_mfma_f32_32x32x16_bf16 {vr(SM,16)}, {ar(AM+4*i,4)}, {vr(Qf+4*i,4)}, {"0" if i == 0 else vr(SM,16)}')
        p.I(f"""
        v_max3_f32 v{TA}, v{SM}, v{SM+1}, v{SM+2}
        v_max_f32 v{TA}, v{TA}, v{SM+3}
        v_mov_b32 v{TN}, v{TA}
        v_permlane32_swap_b32 v{TA}, v{TN}
        v_max_f32 v{TA}, v{TA}, v{TN}
        v_mul_f32 v{TA}, s{S_SC}, v{TA}
        v_max_f32 v{TN}, v{TA}, v{TM}
        v_sub_f32 v{TA}, v{TM}, v{TN}
        v_fma_f32 v{SM}, v{SM}, s{S_SC}, -v{TN}
        v_fma_f32 v{SM+1}, v{SM+1}, s{S_SC}, -v{TN}
        v_fma_f32 v{SM+2}, v{SM+2}, s{S_SC}, -v{TN}
        v_fma_f32 v{SM+3}, v{SM+3}, s{S_SC}, -v{TN}
        v_exp_f32 v{TA}, v{TA}
        v_exp_f32 v{SM}, v{SM}
        v_exp_f32 v{SM+1}, v{SM+1}
        v_exp_f32 v{SM+2}, v{SM+2}
        v_exp_f32 v{SM+3}, v{SM+3}
        v_fma_f32 v{LX}, v{LX}, v{TA}, v{SM}
        v_add_f32 v{LX}, v{LX}, v{SM+1}
        v_add_f32 v{LX}, v{LX}, v{SM+2}
        v_add_f32 v{LX}, v{LX}, v{SM+3}
        v_mov_b32 v{TN}, v{LX}
        v_permlane32_swap_b32 v{LX}, v{TN}
        v_add_f32 v{LX}, v{LX}, v{TN}
        v_rcp_f32 v{LX}, v{LX}
        v_mul_f32 v{TA}, v{TA}, v{LX}
        v_pk_mul_f32 {vr(SM,2)}, {vr(SM,2)}, {vr(LX,2)} op_sel_hi:[1,0]
        v_pk_mul_f32 {vr(SM+2,2)}, {vr(SM+2,2)}, {vr(LX,2)} op_sel_hi:[1,0]
        v_cvt_pk_bf16_f32 v{PM}, v{SM}, v{SM+1}
        v_cvt_pk_bf16_f32 v{PM+1}, v{SM+2}, v{SM+3}
        """)
        for i in range(32): p.I(f'v_pk_mul_f32 {vr(OX+2*i,2)}, {vr(OX+2*i,2)}, {vr(TA,2)} op_sel_hi:[1,0]')
        p.I('s_waitcnt vmcnt(0)'); p.vm = []
        def fin(et):
            o = OP + 8 * (et & 1)
            for x in pack(o, OX + 16 * et): p.I(x)
            for f in range(2):
                p.I(f'global_store_dwordx4 v{V_L16}, {vr(o+4*f,4)}, s[{S_OF}:{S_OF+1}] offset:{2048*et+1024*f-4096} sc1')
        for et in range(4):
            p.I(f'v_mfma_f32_32x32x8_bf16 {vr(OX+16*et,16)}, {ar(AVM+2*et,2)}, {vr(PM,2)}, {vr(OX+16*et,16)}')
            if et >= 2: fin(et - 2)
        fin(2); fin(3)
        p.I('\n'.join(add64(S_OF, S_OF, 4 * 32 * 8192)))
    p.I(f's_waitcnt vmcnt(0)\ns_branch {lab}_first')
    p.L(f'{lab}_loop')
    kvload(0)
    proj(1)
    attn(0, 0)
    kvload(1)
    p.I(f's_cmp_ge_u32 s{S_IT}, 15\ns_cbranch_scc1 {lab}_skip')
    p.L(f'{lab}_first')
    proj(0)
    p.I(f's_cmp_eq_u32 s{S_IT}, 0\ns_cbranch_scc1 {lab}_loop')
    p.I(f's_branch {lab}_go')
    p.L(f'{lab}_skip')
    p.I('s_waitcnt vmcnt(0)')
    p.L(f'{lab}_go')
    attn(1, 1)
    p.I(f's_cmp_lt_u32 s{S_IT}, 16\ns_cbranch_scc1 {lab}_loop')
    p.I('s_waitcnt vmcnt(0)')
    oflag()
    ev_dump(p)
    p.I('s_branch L_end')

def o_worker(p, cfg, lab):
    L = V_T + 1
    if TL[0]: p.I(f's_mov_b32 s{K.S_XCC}, 0')
    p.I('s_barrier')
    p.I(f'''
    s_lshr_b32 s{T2}, s{S_H}, 4
    s_lshl_b32 s{T0}, s{T2}, 18
    s_lshl_b32 s{T1}, s{S_W}, 16
    s_add_u32 s{T0}, s{T0}, s{T1}
    s_add_u32 s{T0}, s{T0}, {K.OF}
    s_add_u32 s{S_SRD}, s{S_WS}, s{T0}
    s_addc_u32 s{S_SRD+1}, s{S_WS+1}, 0
    s_mov_b32 s{S_SRD+2}, 0x10000
    s_mov_b32 s{S_SRD+3}, 0x20000
    s_lshl_b32 s{T0}, s{T2}, 12
    s_lshl_b32 s{T1}, s{S_W}, 10
    s_add_u32 s{T0}, s{T0}, s{T1}
    s_add_u32 s{T0}, s{T0}, {K.FL + K.F_O}
    s_add_u32 s{S_FL2}, s{S_WS}, s{T0}
    s_addc_u32 s{S_FL2+1}, s{S_WS+1}, 0
    v_and_b32 v{V_KM}, 7, v{L}
    v_lshlrev_b32 v{V_KM}, 7, v{V_KM}
    s_lshl_b32 s{T0}, s{T2}, 16
    s_lshl_b32 s{T1}, s{S_M}, 10
    s_add_u32 s{T0}, s{T0}, s{T1}
    s_and_b32 s{T1}, s{S_H}, 15
    s_lshl_b32 s{T1}, s{T1}, 6
    s_add_u32 s{T0}, s{T0}, s{T1}
    s_lshl_b32 s{T1}, s{S_W}, 4
    s_add_u32 s{T0}, s{T0}, s{T1}
    s_add_u32 s{S_OF}, s{K.S_OUT}, s{T0}
    s_addc_u32 s{S_OF+1}, s{K.S_OUT+1}, 0
    v_and_b32 v224, 31, v{L}
    v_lshlrev_b32 v224, 11, v224
    v_lshrrev_b32 v225, 5, v{L}
    v_lshl_add_u32 v{V_VM}, v225, 3, v224
    v_add_u32 v{V_LHI}, 0x8000, v{V_L16}
    s_lshl_b32 s{T0}, s{S_W}, 12
    v_add_u32 v{V_KA}, s{T0}, v{V_L16}
    s_lshl_b32 s{T0}, s{S_W}, 10
    v_add_u32 v{V_VA}, s{T0}, v{V_L16}
    s_mov_b32 s{S_IT}, 0
    ''')
    ev(p, 20)
    A = 128
    V_PAR_W, V_PAR_R = V_KA, V_VA
    def old(k):
        va = V_L16 if k < 32 else V_LHI
        p.I(f'buffer_load_dwordx4 {ar(4*(k%32),4)}, v{va}, s[{S_SRD}:{S_SRD+3}], s{S_C4K+((k%32)>>2)} offen offset:{(k&3)*1024} sc1', tag=('o', k))
    def mm(k):
        p.wait(vm=('o', k))
        p.I(f'v_mfma_f32_32x32x16_bf16 {vr(A,16)}, {wof(k)}, {ar(4*(k%32),4)}, {"0" if k == 0 else vr(A,16)}')
    def reduce():
        p.lg = []
        for q in range(4):
            p.I(f'ds_write_b128 v{V_PAR_W}, {vr(A+4*q,4)} offset:{q*1024}')
        p.I('s_waitcnt lgkmcnt(0)\ns_barrier')
        for q in range(4):
            p.I(f'ds_read_b128 {vr(A+16+4*q,4)}, v{V_PAR_R} offset:{q*4096}')
        B = A + 16
        p.I(f"""
        v_xor_b32 v{V_PAR_W}, 0x4000, v{V_PAR_W}
        v_xor_b32 v{V_PAR_R}, 0x4000, v{V_PAR_R}
        s_waitcnt lgkmcnt(0)
        v_pk_add_f32 {vr(B,2)}, {vr(B,2)}, {vr(B+4,2)}
        v_pk_add_f32 {vr(B+2,2)}, {vr(B+2,2)}, {vr(B+6,2)}
        v_pk_add_f32 {vr(B+8,2)}, {vr(B+8,2)}, {vr(B+12,2)}
        v_pk_add_f32 {vr(B+10,2)}, {vr(B+10,2)}, {vr(B+14,2)}
        v_pk_add_f32 {vr(B,2)}, {vr(B,2)}, {vr(B+8,2)}
        v_pk_add_f32 {vr(B+2,2)}, {vr(B+2,2)}, {vr(B+10,2)}
        v_cvt_pk_bf16_f32 v{B+16}, v{B}, v{B+1}
        v_cvt_pk_bf16_f32 v{B+17}, v{B+2}, v{B+3}
        global_store_dwordx2 v{V_VM}, {vr(B+16,2)}, s[{S_OF}:{S_OF+1}]
        """)
        p.I('\n'.join(add64(S_OF, S_OF, 4 * 32 * 2048)))
        ev(p, (S_IT, 40))
    p.I(f's_mov_b32 s{S_IT}, 1')
    p.L(f'{lab}_cold')
    poll_flags(p, f'{lab}_pf', S_FL2, 8, S_IT, V_KM)
    for k in range(32): old(k)
    p.I('s_nop 0', tag=None)
    p.L(f'{lab}_run')
    ev(p, (S_IT, 20))
    p.vm = [('o', k) for k in range(32)]
    p.I(f'global_load_dword v{V_T}, v{V_KM}, s[{S_FL2}:{S_FL2+1}] sc1', tag='fl')
    for k in range(32):
        mm(k); old(k + 32)
    p.I('\n'.join(add64(S_SRD, S_SRD, 4 * 32 * 8192)))
    p.wait(vm='fl')
    p.I(f"""
    v_cmp_ge_u32 vcc, s{S_IT}, v{V_T}
    s_cbranch_vccnz {lab}_drain
    """)
    vm0 = list(p.vm)
    for k in range(32, 64):
        mm(k); old(k - 32)
    reduce()
    p.I(f's_add_u32 s{S_IT}, s{S_IT}, 1\ns_branch {lab}_run')
    p.L(f'{lab}_drain')
    p.vm = vm0
    for k in range(32, 64): mm(k)
    reduce()
    p.I(f's_add_u32 s{S_IT}, s{S_IT}, 1\ns_cmp_le_u32 s{S_IT}, 16\ns_cbranch_scc1 {lab}_cold')
    ev_dump(p)
    p.I('s_branch L_end')
```

```python
from asmlib import *
import kern as K
MB = 1 << 20
S_W, S_H, S_M, S_WS, S_SRD, S_SPIN = K.S_W, K.S_H, K.S_M, K.S_WS, K.S_SRD, K.S_SPIN
T0, T1, T2, T3 = K.S_T0, K.S_T1, K.S_T2, K.S_T3
S_PL, S_PH = K.S_PL, K.S_PH
S_C4K = 32
S_KV, S_FLG, S_PUB, S_OF, S_FL2, S_FL3 = 40, 42, 44, 46, 48, 50
S_IT = 26
S_SC = 67
S_SRD2 = 52
RING, ACC, QF, MASK = 128, 160, 192, 224
V_L16, V_LHI, V_KA, V_VA, V_KM, V_VM, V_Z, V_T = 240, 241, 242, 243, 244, 245, 246, 248
add64 = K.add64

V_EV = 247
TL = [0]
CFG = {}
def ev(p, idx):
    if TL[0]:
        if isinstance(idx, tuple): p.I(f's_add_u32 m0, s{idx[0]}, {idx[1]}')
        else: p.I(f's_mov_b32 m0, {idx}')
        p.I(f's_memrealtime s[90:91]\ns_waitcnt lgkmcnt(0)\nv_writelane_b32 v{V_EV}, s90, m0')
        p.lg = []
def ev_dump(p):
    if TL[0]:
        p.I(f"""
        s_lshl_b32 s{T0}, s{K.S_XCC}, 5
        s_add_u32 s{T0}, s{T0}, s{S_H}
        s_lshl_b32 s{T0}, s{T0}, 2
        s_add_u32 s{T0}, s{T0}, s{S_W}
        s_lshl_b32 s{T0}, s{T0}, 8
        s_add_u32 s{T0}, s{T0}, {K.TS + 131072}
        v_lshrrev_b32 v224, 2, v{V_L16}
        v_add_u32 v224, s{T0}, v224
        global_store_dword v224, v{V_EV}, s[{S_WS}:{S_WS+1}]
        """)
def base_consts(p):
    if TL[0]:
        p.I(f'v_mov_b32 v{V_EV}, 0\ns_waitcnt lgkmcnt(0)\nv_writelane_b32 v{V_EV}, s94, 0')
        ev(p, 39)
    p.I(f'''
    v_lshlrev_b32 v{V_L16}, 4, v0
    v_add_u32 v{V_LHI}, 0x10000, v{V_L16}
    v_mov_b32 v{V_Z}, 0
    s_mov_b32 s{S_PL}, 0x05040100
    s_mov_b32 s{S_PH}, 0x07060302
    ''')
    for k in range(8): p.I(f's_mov_b32 s{S_C4K+k}, {4096*k}')
    p.I(f'''
    v_lshrrev_b32 v1, 5, v0
    v_lshlrev_b32 v1, 8, v1
    v_and_b32 v2, 8, v0
    v_lshl_add_u32 v2, v2, 7, v1
    v_and_b32 v3, 16, v0
    v_lshl_add_u32 v2, v3, 3, v2
    v_and_b32 v3, 7, v0
    v_lshl_add_u32 v{V_KA}, v3, 4, v2
    v_and_b32 v3, 16, v0
    v_lshl_add_u32 v2, v3, 6, v1
    v_and_b32 v3, 15, v0
    v_lshl_add_u32 v2, v3, 4, v2
    v_add_u32 v{V_VA}, 0x800, v2
    ''')

def xf_convert(p, half, R, SB):
    p.I(f'''
    s_add_u32 s{T0}, s{S_H}, {32*half}
    s_lshl_b32 s{T0}, s{T0}, 15
    v_and_b32 v1, 31, v0
    v_lshlrev_b32 v1, 10, v1
    v_lshrrev_b32 v2, 5, v0
    v_lshl_add_u32 v1, v2, 4, v1
    s_lshl_b32 s{T1}, s{S_W}, 8
    s_add_u32 s{T1}, s{T1}, s{T0}
    v_add_u32 v1, s{T1}, v1
    ''')
    for i in range(8):
        p.I(f'global_load_dwordx4 {vr(R+4*i,4)}, v1, s[{K.S_X}:{K.S_X+1}] offset:{32*i} {K.NT.get("x","")}', tag=('xc', half, i))
    p.I(f'''
    s_lshl_b32 s{T1}, s{S_W}, 13
    s_add_u32 s{T0}, s{T0}, s{T1}
    s_add_u32 s{T0}, s{T0}, {K.XF + 4096}
    ''')
    p.I('\n'.join(add64(SB, S_WS, f's{T0}')))
def xf_store(p, half, R, SB):
    for i in range(8):
        p.wait(vm=('xc', half, i))
        p.I(f'global_store_dwordx4 v{V_L16}, {vr(R+4*i,4)}, s[{SB}:{SB+1}] offset:{1024*i-4096} sc1')

V_WA = 232
WA = [V_WA]
def projw_issue(p, wptr, kind, xd=False, mid=None):
    L = V_T + 1
    p.I(f"""
    v_mov_b32 v{L}, v0
    v_lshrrev_b32 v2, 4, v0
    v_lshlrev_b32 v3, 2, v2
    v_and_b32 v1, 15, v0
    v_xor_b32 v1, v1, v3
    v_lshlrev_b32 v3, 13, v2
    v_lshl_add_u32 v3, v1, 4, v3
    s_lshl_b32 s{T0}, s{S_W}, 15
    s_lshl_b32 s{T1}, s{S_H}, 8
    s_add_u32 s{T0}, s{T0}, s{T1}
    v_add_u32 v{V_T}, s{T0}, v3
    s_lshl_b32 s{T2}, s{S_W}, 10
    """)
    p.I(f"""
    v_lshrrev_b32 v1, 5, v0
    v_lshlrev_b32 v1, 11, v1
    v_and_b32 v2, 12, v0
    v_lshl_add_u32 v1, v2, 6, v1
    v_lshl_add_u32 v1, v2, 4, v1
    v_and_b32 v2, 1, v0
    v_lshl_add_u32 v1, v2, 3, v1
    v_and_b32 v2, 2, v0
    v_and_b32 v3, 16, v0
    """)
    if kind == 'v': p.I('v_lshl_add_u32 v1, v2, 3, v1\nv_lshl_add_u32 v1, v3, 1, v1')
    else: p.I('v_lshl_add_u32 v1, v2, 4, v1\nv_add_u32 v1, v3, v1')
    for et in range(4):
        p.I(f'v_xor_b32 v{WA[0]+2*et}, {64*et}, v1\nv_add_u32 v{WA[0]+2*et+1}, 0x10000, v{WA[0]+2*et}')
    K.set_srd(p, wptr, 4 * MB)
    if xd:
        p.I(f"""
        v_and_b32 v{V_T+2}, 31, v{V_T+1}
        v_lshlrev_b32 v{V_T+2}, 10, v{V_T+2}
        v_lshrrev_b32 v{V_T+3}, 5, v{V_T+1}
        v_lshl_add_u32 v{V_T+2}, v{V_T+3}, 4, v{V_T+2}
        s_lshl_b32 s{T0}, s{S_W}, 15
        v_add_u32 v{V_T+2}, s{T0}, v{V_T+2}
        """)
    for i in range(32):
        p.I(f's_add_u32 m0, s{T2}, {i*4096}\ns_mov_b32 s{T3}, {i*16*8192}')
        p.I(f'buffer_load_dwordx4 v{V_T}, s[{S_SRD}:{S_SRD+3}], s{T3} offen {K.NT.get(kind.upper(),"")} lds', tag='pw')
        if mid and i == 7: mid()
        if xd:
            if i >= 28: p.I('s_waitcnt vmcnt(56)')
            p.I(f'global_load_dwordx4 {vr(4*i,4)}, v{V_T+2}, s[{K.S_X}:{K.S_X+1}] offset:{32*i}', tag='pw')

def xs(buf, ks):
    if buf == 0 and WA[0] == 120 and ks >= 30: return ar(232 + 4 * (ks - 30), 4)
    return vr(4 * ks, 4) if buf == 0 else ar(4 * ks, 4)
def xload(p, buf, ks):
    p.I(f'buffer_load_dwordx4 {xs(buf,ks)}, v{V_L16}, s[{S_SRD}:{S_SRD+3}], s{S_C4K+(ks>>2)} offen offset:{(ks&3)*1024} {CFG.get("xm","sc1")}', tag=('x', buf))
RD = 6
def wread(p, phi):
    phi %= 128
    et, ks = phi >> 5, phi & 31
    for x2 in range(2):
        p.I(f'ds_read_b64_tr_b16 {vr(RING+4*(phi%8)+2*x2,2)}, v{WA[0]+2*et+(ks>>4)} offset:{(ks&15)*4096 + x2*1024}', tag=('w', phi))

def xdirect(p):
    p.I(f"""
    v_and_b32 v{V_T+2}, 31, v{V_T+1}
    v_lshlrev_b32 v{V_T+2}, 10, v{V_T+2}
    v_lshrrev_b32 v{V_T+3}, 5, v{V_T+1}
    v_lshl_add_u32 v{V_T+2}, v{V_T+3}, 4, v{V_T+2}
    s_lshl_b32 s{T0}, s{S_W}, 15
    v_add_u32 v{V_T+2}, s{T0}, v{V_T+2}
    """)
    for ks in range(32):
        p.I(f'global_load_dwordx4 {vr(4*ks,4)}, v{V_T+2}, s[{K.S_X}:{K.S_X+1}] offset:{32*ks}', tag=('x', 0))

def proj_setup(p):
    p.I(f'''
    s_lshl_b32 s{T0}, s{S_W}, 15
    s_add_u32 s{T0}, s{T0}, {K.XF}
    s_add_u32 s{S_SRD}, s{S_WS}, s{T0}
    s_addc_u32 s{S_SRD+1}, s{S_WS+1}, 0
    s_mov_b32 s{S_SRD+2}, 0x8000
    s_mov_b32 s{S_SRD+3}, 0x20000
    ''')
    p.I('\n'.join(add64(S_SRD, S_SRD, 4 * 32768)))
    p.I(f'''
    s_lshl_b32 s{T0}, s{S_W}, 19
    s_lshl_b32 s{T1}, s{S_H}, 14
    s_add_u32 s{T0}, s{T0}, s{T1}
    s_add_u32 s{S_SRD2}, s{S_WS}, s{T0}
    s_addc_u32 s{S_SRD2+1}, s{S_WS+1}, 0
    s_mov_b32 s{S_SRD2+2}, 0x4000
    s_mov_b32 s{S_SRD2+3}, 0x20000
    s_mov_b32 s{S_IT}, 0
    ''')

def proj_body(p, kind, buf, extra, ringcont=True, pf0=0, pfs=3, pref=True):
    nl = 0
    for et in range(4):
        acc = ACC + 16 * (et & 1)
        for ks in range(32):
            phi = 32 * et + ks
            if phi + RD < 128 or ringcont: wread(p, phi + RD)
            p.wait(lg=('w', phi))
            w = vr(RING + 4 * (phi % 8), 4)
            a, b = (xs(buf, ks), w) if kind == 'v' else (w, xs(buf, ks))
            p.I(f'v_mfma_f32_32x32x16_bf16 {vr(acc,16)}, {a}, {b}, {"0" if ks == 0 else vr(acc,16)}')
            if pref and phi >= pf0 and (phi - pf0) % pfs == pfs - 1 and nl < 32:
                if not CFG.get('nox'): xload(p, 1 - buf, nl)
                nl += 1
            for x in extra.get((et, ks), []):
                if callable(x): x()
                else: p.I(x)
    if pref: p.I('\n'.join(add64(S_SRD, S_SRD, 4 * 32768)))

def pack(dst, acc):
    return [f'v_cvt_pk_bf16_f32 v{dst+i}, v{acc+2*i}, v{acc+2*i+1}' for i in range(8)]

def kv_worker(p, cfg, kind, lab):
    half = 0 if kind == 'k' else 1
    base_consts(p)
    WA[0] = V_WA
    p.I(f"""
    s_lshl_b32 s{T0}, s{S_H}, 9
    s_lshl_b32 s{T1}, s{S_W}, 7
    s_add_u32 s{T0}, s{T0}, s{T1}
    s_add_u32 s{T0}, s{T0}, {K.FL + (K.F_K if kind == 'k' else K.F_V)}
    """)
    p.I('\n'.join(add64(S_FLG, S_WS, f's{T0}')))
    p.I(f'v_mov_b32 v{V_T+5}, s{S_W}\ns_mov_b64 exec, 1\nglobal_store_dword v{V_Z}, v{V_T+5}, s[{S_FLG}:{S_FLG+1}] sc1\ns_mov_b64 exec, -1')
    p.I(f"""
    s_mov_b32 s{S_SRD2}, s{K.S_X}
    s_and_b32 s{S_SRD2+1}, s{K.S_X+1}, 0xffff
    s_mov_b32 s{S_SRD2+2}, {2*MB}
    s_mov_b32 s{S_SRD2+3}, 0x20000
    s_lshl_b32 s{T2}, s{S_W}, 15
    """)
    for r in range(32):
        p.I(f'v_xor_b32 v{128+(r&15)}, {(r&15)*16}, v{V_L16}' if r < 16 else 's_nop 0')
        p.I(f's_add_u32 m0, s{T2}, {32768 + r*1024}\ns_add_u32 s{T3}, s{T2}, {r*1024}')
        p.I(f'buffer_load_dwordx4 v{128+(r&15)}, s[{S_SRD2}:{S_SRD2+3}], s{T3} offen {K.NT.get("y","")} lds', tag='x0')
    def mid():
        p.I(f"""
        v_and_b32 v144, 31, v{V_T+1}
        v_lshlrev_b32 v145, 10, v144
        v_and_b32 v144, 15, v144
        v_lshrrev_b32 v146, 5, v{V_T+1}
        v_xor_b32 v144, v144, v146
        v_lshl_add_u32 v145, v144, 4, v145
        s_lshl_b32 s{T0}, s{S_W}, 15
        s_add_u32 s{T0}, s{T0}, 0x8000
        v_add_u32 v145, s{T0}, v145
        """)
        for q in range(8): p.I(f'v_xor_b32 v{128+q}, {q*32}, v145')
        p.wait(vm='x0')
        for ks in range(32):
            p.I(f'ds_read_b128 {vr(4*ks,4)}, v{128+(ks&7)} offset:{(ks>>3)*256}')
            if ks % 8 == 7: p.wait(lg='all')
        K.arrive(p, lab, keep=8)
        ev(p, 19)
        for _ in range(cfg.get('kvdelay', 0)): p.I('s_sleep 32')
    projw_issue(p, K.S_WK if kind == 'k' else K.S_WV, kind, mid=mid)
    ev(p, 58)
    proj_setup(p)
    ev(p, 57)
    p.I('s_waitcnt vmcnt(0)\ns_barrier')
    ev(p, 59)
    p.reset_cnt()
    for phi in range(RD): wread(p, phi)
    va = V_KA if kind == 'k' else V_VA
    def epi(et, tag):
        acc = ACC + 16 * (et & 1); pk = pack(QF + 8 * (et & 1), acc)
        st = [lambda f=f: p.I(f'buffer_store_dwordx4 {vr(QF+8*(et&1)+4*f,4)}, v{va}, s[{S_SRD2}:{S_SRD2+3}], s{S_C4K+et} offen offset:{512*f} {CFG.get("stm","sc1")}', tag=tag) for f in range(2)]
        if CFG.get('nost'): st = [lambda: None, lambda: None]
        return pk, st
    def sched(extra, et_run, et, tag, post=()):
        pk, st = epi(et, tag)
        for i in range(4): extra.setdefault((et_run, 3 + i), []).extend(pk[2*i:2*i+2])
        extra.setdefault((et_run, 6), []).append(st[0]); extra.setdefault((et_run, 9), []).append(st[1])
        extra[(et_run, 9)].extend(post)
    def flag():
        p.wait(vm='e3')
        p.I(f's_lshl_b32 s{T0}, s{S_IT}, 2\ns_add_u32 s{T0}, s{T0}, s{S_W}\nv_mov_b32 v{V_T}, s{T0}')
        p.I(f's_mov_b64 exec, 1\nglobal_store_dword v{V_Z}, v{V_T}, s[{S_FLG}:{S_FLG+1}] sc1\ns_mov_b64 exec, -1')
    adv = add64(S_SRD2, S_SRD2, 4 * 32 * 16384)
    S_OI, S_LB, S_SRD3 = 56, 57, 72
    V_OA, V_OT = 228, 229
    L = V_T + 1
    if cfg.get('mix', 1): p.I(f's_lshl_b32 s{S_OI}, s{S_H}, 1\ns_add_u32 s{S_OI}, s{S_OI}, s{K.S_XCC}')
    else: p.I(f's_lshl_b32 s{S_OI}, s{K.S_XCC}, 5\ns_add_u32 s{S_OI}, s{S_OI}, s{S_H}')
    p.I(f"""
    v_lshrrev_b32 v224, 2, v{L}
    v_lshlrev_b32 v224, 10, v224
    v_and_b32 v225, 3, v{L}
    v_lshl_add_u32 v224, v225, 4, v224
    s_lshl_b32 s{T0}, s{S_W}, 20
    s_and_b32 s{T1}, s{S_OI}, 15
    s_lshl_b32 s{T1}, s{T1}, 6
    s_add_u32 s{T0}, s{T0}, s{T1}
    v_add_u32 v{V_OA}, s{T0}, v224
    s_lshl_b32 s{S_LB}, s{S_W}, 13
    s_add_u32 s{S_LB}, s{S_LB}, 0x20000
    v_lshrrev_b32 v224, 5, v{L}
    v_lshlrev_b32 v224, 8, v224
    v_and_b32 v226, 12, v{L}
    v_lshl_add_u32 v224, v226, 4, v224
    v_and_b32 v226, 16, v{L}
    v_lshl_add_u32 v224, v226, 1, v224
    v_lshl_add_u32 v224, v225, 3, v224
    v_add_u32 v{V_OT}, s{S_LB}, v224
    s_mov_b32 s{S_SRD3}, s{K.S_WO}
    s_and_b32 s{S_SRD3+1}, s{K.S_WO+1}, 0xffff
    s_mov_b32 s{S_SRD3+2}, {4*MB}
    s_mov_b32 s{S_SRD3+3}, 0x20000
    """)
    def wo_dma(q, i):
        def f():
            if i == 0: p.wait(lg=('ot', q - 1))
            p.I(f's_add_u32 m0, s{S_LB}, {i*1024}\ns_mov_b32 s{T3}, {q*131072 + i*16384}')
            p.I(f'buffer_load_dwordx4 v{V_OA}, s[{S_SRD3}:{S_SRD3+3}], s{T3} offen lds', tag=('ow', q))
        return f
    def wo_rd(q, fr):
        def f():
            if fr == 0: p.wait(vm=('ow', q))
            for x in range(2):
                p.I(f'ds_read_b64_tr_b16 {wof(8*q+fr, 2*x, 2)}, v{V_OT} offset:{fr*1024 + x*512}', tag=('ot', q))
        return f
    p.I(f's_lshl_b32 s{T0}, s{S_H}, 9\ns_add_u32 s{T0}, s{T0}, {K.FL + K.F_C}')
    p.I('\n'.join(add64(S_FL3, S_WS, f's{T0}')))
    def body(buf, first, wo=None, hold=False):
        extra = {}
        if not first:
            sched(extra, 0, 3, 'e3', adv)
            extra.setdefault((1, 1), []).append(flag)
            if hold and cfg.get('hold', 0):
                def hw():
                    vm = list(p.vm)
                    p.I(f's_cmp_eq_u32 s{S_IT}, 1\ns_cbranch_scc0 {lab}_hw_ok')
                    poll_flags(p, f'{lab}_hw', S_FL3, 1, S_IT, V_Z, sleep=8)
                    p.vm = vm
                extra[(1, 1)].append(hw)
        for et in range(3): sched(extra, et + 1, et, 'e')
        if wo is not None:
            for et in range(4):
                q = 4 * wo + et
                for i in range(8):
                    extra.setdefault((et, i), []).append(wo_dma(q, i))
                    extra.setdefault((et, 23 + i), []).append(wo_rd(q, i))
        if first:
            def wa():
                lg = list(p.lg); K.wait_all(p, lab); p.lg = lg
                ev(p, 2)
            extra.setdefault((1, 31), []).append(wa)
            proj_body(p, kind, buf, extra, pf0=64, pfs=1)
        else: proj_body(p, kind, buf, extra, pref=(wo != 1), ringcont=(wo != 1))
        p.I(f's_add_u32 s{S_IT}, s{S_IT}, 1')
        ev(p, (S_IT, 2))
    p.wait(vm='all')
    if TL[0]: p.I('s_memtime s[88:89]')
    ev(p, 1)
    ev(p, 37)
    body(0, True)
    lg0 = list(p.lg)
    p.L(f'{lab}_loop')
    p.I('s_waitcnt vmcnt(2)'); p.vm = []
    body(1, False, hold=True)
    p.I(f's_cmp_ge_u32 s{S_IT}, 14\ns_cbranch_scc1 {lab}_fin')
    p.I('s_waitcnt vmcnt(2)'); p.vm = []
    body(0, False)
    assert p.lg == lg0
    p.I(f's_branch {lab}_loop')
    p.L(f'{lab}_fin')
    p.I('s_waitcnt vmcnt(2)'); p.vm = []
    body(0, False, 0)
    p.wait(vm=('x', 1))
    body(1, False, 1)
    if TL[0]: p.I(f's_memtime s[86:87]\ns_waitcnt lgkmcnt(0)\ns_sub_u32 s86, s86, s88\nv_writelane_b32 v{V_EV}, s86, 38')
    pk, st = epi(3, 'e3')
    for x in pk: p.I(x)
    for x in st: x()
    flag()
    p.I(f's_mov_b32 s{S_H}, s{S_OI}\ns_waitcnt lgkmcnt(0)')
    p.reset_cnt()

def wof(k, o=0, n=4):
    return ar(128 + 4 * k + o, n) if k < 32 else vr(4 * (k - 32) + o, n)

def poll_flags(p, lab, sbase, nl, need_s, vaddr, sleep=2):
    p.I(f'''
{lab}:
    global_load_dword v{V_T}, v{vaddr}, s[{sbase}:{sbase+1}] sc1
    s_waitcnt vmcnt(0)
    v_cmp_gt_u32 vcc, s{need_s}, v{V_T}
    s_cbranch_vccz {lab}_ok
    s_sleep {sleep}
    s_sub_u32 s{S_SPIN}, s{S_SPIN}, 1
    s_cbranch_scc0 {lab}
    s_branch L_end
{lab}_ok:
    ''')
    p.vm = []

def q_worker(p, cfg, lab):
    base_consts(p)
    L = V_T + 1
    p.I(f'''
    s_lshl_b32 s{T0}, s{S_W}, 12
    s_lshl_b32 s{T1}, s{S_H}, 7
    s_add_u32 s{T0}, s{T0}, s{T1}
    s_add_u32 s{T0}, s{T0}, {K.FL + K.F_O}
    ''')
    p.I('\n'.join(add64(S_FLG, S_WS, f's{T0}')))
    p.I(f's_mov_b64 exec, 1\nglobal_store_dword v{V_Z}, v{V_Z}, s[{S_FLG}:{S_FLG+1}] sc1\ns_mov_b64 exec, -1')
    p.I(f"""
    s_mov_b32 s{S_SRD2}, s{K.S_X}
    s_and_b32 s{S_SRD2+1}, s{K.S_X+1}, 0xffff
    s_mov_b32 s{S_SRD2+2}, {2*MB}
    s_mov_b32 s{S_SRD2+3}, 0x20000
    s_lshr_b32 s{T0}, s{S_W}, 1
    s_lshl_b32 s{T0}, s{T0}, 5
    s_add_u32 s{T0}, s{T0}, s{S_H}
    s_lshl_b32 s{T0}, s{T0}, 15
    s_and_b32 s{T1}, s{S_W}, 1
    s_lshl_b32 s{T2}, s{T1}, 9
    s_add_u32 s{S_KV}, s{T0}, s{T2}
    s_lshl_b32 s{T1}, s{T1}, 14
    s_add_u32 s{T0}, s{T0}, s{T1}
    s_add_u32 s{T0}, s{T0}, {K.XF}
    s_add_u32 s{S_SRD}, s{S_WS}, s{T0}
    s_addc_u32 s{S_SRD+1}, s{S_WS+1}, 0
    s_mov_b32 s{S_SRD+2}, 0x4000
    s_mov_b32 s{S_SRD+3}, 0x20000
    s_lshl_b32 s{T2}, s{S_W}, 14
    v_lshrrev_b32 v1, 5, v0
    v_and_b32 v2, 31, v0
    v_xor_b32 v3, v2, v1
    v_lshlrev_b32 v3, 4, v3
    v_lshl_add_u32 v3, v1, 10, v3
    """)
    for i in range(16):
        p.I(f'v_xor_b32 v{8+(i&7)}, {(i&7)*32}, v3' if i < 8 else 's_nop 0')
        p.I(f's_add_u32 m0, s{T2}, {i*1024}\ns_add_u32 s{T3}, s{S_KV}, {i*2048}')
        p.I(f'buffer_load_dwordx4 v{8+(i&7)}, s[{S_SRD2}:{S_SRD2+3}], s{T3} offen {K.NT.get("x","")} lds', tag='xc')
    p.I(f"""
    v_and_b32 v4, 15, v0
    v_xor_b32 v4, v4, v1
    v_lshlrev_b32 v4, 4, v4
    v_lshl_add_u32 v4, v2, 9, v4
    v_add_u32 v4, s{T2}, v4
    """)
    for q in range(8): p.I(f'v_xor_b32 v{16+q}, {q*32}, v4')
    p.wait(vm='xc')
    for i in range(16):
        p.I(f'ds_read_b128 {vr(32+4*i,4)}, v{16+(i&7)} offset:{(i>>3)*256}', tag=('xr', i))
        if i == 7: p.wait(lg=('xr', 0))
    for i in range(16):
        p.wait(lg=('xr', i))
        p.I(f'buffer_store_dwordx4 {vr(32+4*i,4)}, v{V_L16}, s[{S_SRD}:{S_SRD+3}], s{S_C4K+(i>>2)} offen offset:{(i&3)*1024} sc1')
    ev(p, 57)
    WA[0] = 120
    K.arrive(p, lab)
    ev(p, 19)
    p.I(f'v_mov_b32 v{L}, v0')
    for _ in range(cfg.get('qdelay', 0)): p.I('s_sleep 32')
    if not cfg.get('qwait', 0): projw_issue(p, K.S_WQ, 'q')
    p.I(f'''
    s_lshl_b32 s{T0}, s{S_H}, 9
    s_add_u32 s{T2}, s{T0}, {K.FL + K.F_C}
    s_lshl_b32 s{T1}, s{S_W}, 7
    s_add_u32 s{T0}, s{T0}, s{T1}
    s_add_u32 s{T0}, s{T0}, {K.FL + K.F_K}
    ''')
    p.I('\n'.join(add64(S_FL2, S_WS, f's{T0}') + add64(S_FL3, S_WS, f's{T2}')))
    V_FKV, V_FC = 254, 255
    p.I(f'''
    v_and_b32 v{V_FKV}, 1, v{L}
    v_mul_u32_u24 v{V_FKV}, {K.F_V - K.F_K}, v{V_FKV}
    v_mov_b32 v{V_FC}, 0
    ''')
    p.I(f'''
    v_lshrrev_b32 v{V_T+2}, 5, v{L}
    v_lshlrev_b32 v{V_T+3}, 8, v{V_T+2}
    v_and_b32 v{V_T+4}, 6, v{L}
    v_lshl_add_u32 v{V_T+3}, v{V_T+4}, 5, v{V_T+3}
    v_and_b32 v{V_T+4}, 1, v{L}
    v_lshl_add_u32 v{V_KM}, v{V_T+4}, 4, v{V_T+3}
    v_lshlrev_b32 v{V_T+3}, 9, v{V_T+2}
    v_and_b32 v{V_T+4}, 15, v{L}
    v_or_b32 v{V_T+4}, 2, v{V_T+4}
    v_lshl_add_u32 v{V_T+3}, v{V_T+4}, 4, v{V_T+3}
    v_and_b32 v{V_T+4}, 16, v{L}
    v_lshrrev_b32 v{V_T+4}, 2, v{V_T+4}
    v_add_u32 v{V_T+3}, v{V_T+3}, v{V_T+4}
    v_and_b32 v{V_T+4}, 2, v{L}
    v_xor_b32 v{V_T+4}, 2, v{V_T+4}
    v_lshl_add_u32 v{V_VM}, v{V_T+4}, 2, v{V_T+3}
    ''')
    p.I(f'''
    v_and_b32 v{V_T+3}, 31, v{L}
    v_lshlrev_b32 v{V_T+2}, 2, v{V_T+2}
    v_sub_u32 v{V_T+3}, v{V_T+3}, v{V_T+2}
    v_mov_b32 v{V_T+4}, 0xf149f2ca
    s_mov_b32 s{S_SC}, 0x3e0293ee
    ''')
    for r in range(16):
        p.I(f'v_cmp_gt_i32 vcc, {8*(r>>2)+(r&3)}, v{V_T+3}\nv_cndmask_b32 v{MASK+r}, 0, v{V_T+4}, vcc')
    if cfg.get('qwait', 0):
        K.wait_all(p, lab)
        p.I(f's_mov_b32 s{T2}, 1')
        poll_flags(p, f'{lab}_pw', S_FL3, 4, T2, V_FC, sleep=8)
        projw_issue(p, K.S_WQ, 'q')
        p.I('s_waitcnt vmcnt(0)\ns_barrier')
        ev(p, 1)
    else:
        p.I('s_waitcnt vmcnt(0)\ns_barrier')
        ev(p, 1)
        K.wait_all(p, lab)
    ev(p, 2)
    p.reset_cnt()
    proj_setup(p)
    p.I(f's_sub_u32 s{S_SRD}, s{S_SRD}, {4*32768}\ns_subb_u32 s{S_SRD+1}, s{S_SRD+1}, 0')
    def xl():
        for ks in range(32): xload(p, 1, ks)
        p.I('\n'.join(add64(S_SRD, S_SRD, 4 * 32768)))
    xl()
    p.I(f"""
    s_lshl_b32 s{T0}, s{S_W}, 17
    s_lshl_b32 s{T1}, s{S_H}, 12
    s_add_u32 s{T0}, s{T0}, s{T1}
    s_add_u32 s{T1}, s{T0}, {K.KVM}
    s_lshl_b32 s{T0}, s{T0}, 1
    s_add_u32 s{T0}, s{T0}, {K.OF + 4096}
    """)
    p.I('\n'.join(add64(S_PUB, S_WS, f's{T1}') + add64(S_OF, S_WS, f's{T0}')))
    AK, AV, AM, AVM = 128, 160, 192, 224
    S, SM = ACC, ACC + 16
    P, PM, OP = RING, RING + 8, RING + 12
    QB = [QF, 0]; OX = 32
    TM, TN, LX, TA = 96, 97, 98, 100
    def proj(par):
        p.lg = []
        for phi in range(RD): wread(p, phi)
        extra = {}
        for et in range(3):
            pk = pack(QB[par] + 8 * et, ACC + 16 * (et & 1))
            for i in range(4): extra.setdefault((et + 1, 3 + i), []).extend(pk[2*i:2*i+2])
        proj_body(p, 'q', 1, extra, ringcont=False, pref=False)
        p.I('s_waitcnt vmcnt(0)')
        xl()
        for x in pack(QB[par] + 24, ACC + 16): p.I(x)
    def oflag():
        p.I(f"""
        v_mov_b32 v{V_T}, s{S_IT}
        s_mov_b64 exec, 1
        global_store_dword v{V_Z}, v{V_T}, s[{S_FLG}:{S_FLG+1}] sc1
        s_mov_b64 exec, -1
        """)
        ev(p, (S_IT, 40))
    def kvload(n):
        p.I(f's_lshl_b32 s{T2}, s{S_IT}, 2\ns_add_u32 s{T2}, s{T2}, s{S_W}\ns_add_u32 s{T2}, s{T2}, 1')
        poll_flags(p, f'{lab}_pk{n}', S_FL2, 2, T2, V_FKV)
        oflag()
        for et in range(4):
            for f in range(2):
                p.I(f'buffer_load_dwordx4 {ar(AK+8*et+4*f,4)}, v{V_KA}, s[{S_SRD2}:{S_SRD2+3}], s{S_C4K+et} offen offset:{512*f} sc1', tag='kv')
        for et in range(4):
            for f in range(2):
                p.I(f'buffer_load_dwordx4 {ar(AV+8*et+4*f,4)}, v{V_VA}, s[{S_SRD2}:{S_SRD2+3}], s{S_C4K+et} offen offset:{512*f} sc1', tag='kv')
        p.I('\n'.join(add64(S_SRD2, S_SRD2, 4 * 32 * 16384)))
    def attn(par, n):
        Qf = QB[par]
        p.I(f's_add_u32 s{S_IT}, s{S_IT}, 1')
        p.vm = []
        for i in range(8):
            p.wait(vm=('k', i >> 1, i & 1))
            p.I(f'v_mfma_f32_32x32x16_bf16 {vr(S,16)}, {ar(AK+4*i,4)}, {vr(Qf+4*i,4)}, {vr(MASK,16) if i == 0 else vr(S,16)}')
        p.I(f'v_max3_f32 v{TM}, v{S}, v{S+1}, v{S+2}')
        for i in range(3, 15, 2): p.I(f'v_max3_f32 v{TM}, v{TM}, v{S+i}, v{S+i+1}')
        p.I(f"""
        v_max_f32 v{TM}, v{TM}, v{S+15}
        v_mov_b32 v{TN}, v{TM}
        v_permlane32_swap_b32 v{TM}, v{TN}
        v_max_f32 v{TM}, v{TM}, v{TN}
        v_mul_f32 v{TM}, s{S_SC}, v{TM}
        """)
        for r in range(16): p.I(f'v_fma_f32 v{S+r}, v{S+r}, s{S_SC}, -v{TM}')
        for r in range(16): p.I(f'v_exp_f32 v{S+r}, v{S+r}')
        for i in range(8): p.I(f'v_cvt_pk_bf16_f32 v{P+i}, v{S+2*i}, v{S+2*i+1}')
        for i in range(4): p.I(f'v_pk_add_f32 {vr(S+4*i,2)}, {vr(S+4*i,2)}, {vr(S+4*i+2,2)}')
        p.I(f"""
        v_pk_add_f32 {vr(S,2)}, {vr(S,2)}, {vr(S+4,2)}
        v_pk_add_f32 {vr(S+8,2)}, {vr(S+8,2)}, {vr(S+12,2)}
        v_pk_add_f32 {vr(S,2)}, {vr(S,2)}, {vr(S+8,2)}
        v_add_f32 v{LX}, v{S}, v{S+1}
        """)
        p.wait(vm='v')
        for et in range(4):
            p.I(f'v_mfma_f32_32x32x16_bf16 {vr(OX+16*et,16)}, {ar(AV+8*et,4)}, {vr(P,4)}, 0')
            p.I(f'v_mfma_f32_32x32x16_bf16 {vr(OX+16*et,16)}, {ar(AV+8*et+4,4)}, {vr(P+4,4)}, {vr(OX+16*et,16)}')
        ev(p, (S_IT, 2))
        p.I(f's_add_u32 s{T2}, s{T2}, 1')
        poll_flags(p, f'{lab}_pc{n}', S_FL3, 4, T2, V_FC, sleep=1)
        ev(p, (S_IT, 20))
        for i in range(8):
            p.I(f'global_load_dwordx4 {ar(AM+4*i,4)}, v{V_KM}, s[{S_PUB}:{S_PUB+1}] offset:{512*i} sc1', tag=('m', i))
        for et in range(4):
            for d in range(2):
                p.I(f'global_load_dword a{AVM+2*et+d}, v{V_VM}, s[{S_PUB}:{S_PUB+1}] offset:{1024*et+256*d} sc1', tag='vm')
        p.I('\n'.join(add64(S_PUB, S_PUB, 4 * 32 * 4096)))
        for i in range(8):
            p.wait(vm=('m', i))
            p.I(f'v_mfma_f32_32x32x16_bf16 {vr(SM,16)}, {ar(AM+4*i,4)}, {vr(Qf+4*i,4)}, {"0" if i == 0 else vr(SM,16)}')
        p.I(f"""
        v_max3_f32 v{TA}, v{SM}, v{SM+1}, v{SM+2}
        v_max_f32 v{TA}, v{TA}, v{SM+3}
        v_mov_b32 v{TN}, v{TA}
        v_permlane32_swap_b32 v{TA}, v{TN}
        v_max_f32 v{TA}, v{TA}, v{TN}
        v_mul_f32 v{TA}, s{S_SC}, v{TA}
        v_max_f32 v{TN}, v{TA}, v{TM}
        v_sub_f32 v{TA}, v{TM}, v{TN}
        v_fma_f32 v{SM}, v{SM}, s{S_SC}, -v{TN}
        v_fma_f32 v{SM+1}, v{SM+1}, s{S_SC}, -v{TN}
        v_fma_f32 v{SM+2}, v{SM+2}, s{S_SC}, -v{TN}
        v_fma_f32 v{SM+3}, v{SM+3}, s{S_SC}, -v{TN}
        v_exp_f32 v{TA}, v{TA}
        v_exp_f32 v{SM}, v{SM}
        v_exp_f32 v{SM+1}, v{SM+1}
        v_exp_f32 v{SM+2}, v{SM+2}
        v_exp_f32 v{SM+3}, v{SM+3}
        v_fma_f32 v{LX}, v{LX}, v{TA}, v{SM}
        v_add_f32 v{LX}, v{LX}, v{SM+1}
        v_add_f32 v{LX}, v{LX}, v{SM+2}
        v_add_f32 v{LX}, v{LX}, v{SM+3}
        v_mov_b32 v{TN}, v{LX}
        v_permlane32_swap_b32 v{LX}, v{TN}
        v_add_f32 v{LX}, v{LX}, v{TN}
        v_rcp_f32 v{LX}, v{LX}
        v_mul_f32 v{TA}, v{TA}, v{LX}
        v_pk_mul_f32 {vr(SM,2)}, {vr(SM,2)}, {vr(LX,2)} op_sel_hi:[1,0]
        v_pk_mul_f32 {vr(SM+2,2)}, {vr(SM+2,2)}, {vr(LX,2)} op_sel_hi:[1,0]
        v_cvt_pk_bf16_f32 v{PM}, v{SM}, v{SM+1}
        v_cvt_pk_bf16_f32 v{PM+1}, v{SM+2}, v{SM+3}
        """)
        for i in range(32): p.I(f'v_pk_mul_f32 {vr(OX+2*i,2)}, {vr(OX+2*i,2)}, {vr(TA,2)} op_sel_hi:[1,0]')
        p.I('s_waitcnt vmcnt(0)'); p.vm = []
        def fin(et):
            o = OP + 8 * (et & 1)
            for x in pack(o, OX + 16 * et): p.I(x)
            for f in range(2):
                p.I(f'global_store_dwordx4 v{V_L16}, {vr(o+4*f,4)}, s[{S_OF}:{S_OF+1}] offset:{2048*et+1024*f-4096} sc1')
        for et in range(4):
            p.I(f'v_mfma_f32_32x32x8_bf16 {vr(OX+16*et,16)}, {ar(AVM+2*et,2)}, {vr(PM,2)}, {vr(OX+16*et,16)}')
            if et >= 2: fin(et - 2)
        fin(2); fin(3)
        p.I('\n'.join(add64(S_OF, S_OF, 4 * 32 * 8192)))
    p.I(f's_waitcnt vmcnt(0)\ns_branch {lab}_first')
    p.L(f'{lab}_loop')
    kvload(0)
    proj(1)
    attn(0, 0)
    kvload(1)
    p.I(f's_cmp_ge_u32 s{S_IT}, 15\ns_cbranch_scc1 {lab}_skip')
    p.L(f'{lab}_first')
    proj(0)
    p.I(f's_cmp_eq_u32 s{S_IT}, 0\ns_cbranch_scc1 {lab}_loop')
    p.I(f's_branch {lab}_go')
    p.L(f'{lab}_skip')
    p.I('s_waitcnt vmcnt(0)')
    p.L(f'{lab}_go')
    attn(1, 1)
    p.I(f's_cmp_lt_u32 s{S_IT}, 16\ns_cbranch_scc1 {lab}_loop')
    p.I('s_waitcnt vmcnt(0)')
    oflag()
    ev_dump(p)
    p.I('s_branch L_end')

def o_worker(p, cfg, lab):
    L = V_T + 1
    if TL[0]: p.I(f's_mov_b32 s{K.S_XCC}, 0')
    p.I('s_barrier')
    p.I(f'''
    s_lshr_b32 s{T2}, s{S_H}, 4
    s_lshl_b32 s{T0}, s{T2}, 18
    s_lshl_b32 s{T1}, s{S_W}, 16
    s_add_u32 s{T0}, s{T0}, s{T1}
    s_add_u32 s{T0}, s{T0}, {K.OF}
    s_add_u32 s{S_SRD}, s{S_WS}, s{T0}
    s_addc_u32 s{S_SRD+1}, s{S_WS+1}, 0
    s_mov_b32 s{S_SRD+2}, 0x10000
    s_mov_b32 s{S_SRD+3}, 0x20000
    s_lshl_b32 s{T0}, s{T2}, 12
    s_lshl_b32 s{T1}, s{S_W}, 10
    s_add_u32 s{T0}, s{T0}, s{T1}
    s_add_u32 s{T0}, s{T0}, {K.FL + K.F_O}
    s_add_u32 s{S_FL2}, s{S_WS}, s{T0}
    s_addc_u32 s{S_FL2+1}, s{S_WS+1}, 0
    v_and_b32 v{V_KM}, 7, v{L}
    v_lshlrev_b32 v{V_KM}, 7, v{V_KM}
    s_lshl_b32 s{T0}, s{T2}, 16
    s_lshl_b32 s{T1}, s{S_M}, 10
    s_add_u32 s{T0}, s{T0}, s{T1}
    s_and_b32 s{T1}, s{S_H}, 15
    s_lshl_b32 s{T1}, s{T1}, 6
    s_add_u32 s{T0}, s{T0}, s{T1}
    s_lshl_b32 s{T1}, s{S_W}, 4
    s_add_u32 s{T0}, s{T0}, s{T1}
    s_add_u32 s{S_OF}, s{K.S_OUT}, s{T0}
    s_addc_u32 s{S_OF+1}, s{K.S_OUT+1}, 0
    v_and_b32 v224, 31, v{L}
    v_lshlrev_b32 v224, 11, v224
    v_lshrrev_b32 v225, 5, v{L}
    v_lshl_add_u32 v{V_VM}, v225, 3, v224
    v_add_u32 v{V_LHI}, 0x8000, v{V_L16}
    s_lshl_b32 s{T0}, s{S_W}, 12
    v_add_u32 v{V_KA}, s{T0}, v{V_L16}
    s_lshl_b32 s{T0}, s{S_W}, 10
    v_add_u32 v{V_VA}, s{T0}, v{V_L16}
    s_mov_b32 s{S_IT}, 0
    ''')
    ev(p, 20)
    A = 128
    V_PAR_W, V_PAR_R = V_KA, V_VA
    def old(k):
        va = V_L16 if k < 32 else V_LHI
        p.I(f'buffer_load_dwordx4 {ar(4*(k%32),4)}, v{va}, s[{S_SRD}:{S_SRD+3}], s{S_C4K+((k%32)>>2)} offen offset:{(k&3)*1024} sc1', tag=('o', k))
    def mm(k):
        p.wait(vm=('o', k))
        p.I(f'v_mfma_f32_32x32x16_bf16 {vr(A,16)}, {wof(k)}, {ar(4*(k%32),4)}, {"0" if k == 0 else vr(A,16)}')
    def reduce():
        p.lg = []
        for q in range(4):
            p.I(f'ds_write_b128 v{V_PAR_W}, {vr(A+4*q,4)} offset:{q*1024}')
        p.I('s_waitcnt lgkmcnt(0)\ns_barrier')
        for q in range(4):
            p.I(f'ds_read_b128 {vr(A+16+4*q,4)}, v{V_PAR_R} offset:{q*4096}')
        B = A + 16
        p.I(f"""
        v_xor_b32 v{V_PAR_W}, 0x4000, v{V_PAR_W}
        v_xor_b32 v{V_PAR_R}, 0x4000, v{V_PAR_R}
        s_waitcnt lgkmcnt(0)
        v_pk_add_f32 {vr(B,2)}, {vr(B,2)}, {vr(B+4,2)}
        v_pk_add_f32 {vr(B+2,2)}, {vr(B+2,2)}, {vr(B+6,2)}
        v_pk_add_f32 {vr(B+8,2)}, {vr(B+8,2)}, {vr(B+12,2)}
        v_pk_add_f32 {vr(B+10,2)}, {vr(B+10,2)}, {vr(B+14,2)}
        v_pk_add_f32 {vr(B,2)}, {vr(B,2)}, {vr(B+8,2)}
        v_pk_add_f32 {vr(B+2,2)}, {vr(B+2,2)}, {vr(B+10,2)}
        v_cvt_pk_bf16_f32 v{B+16}, v{B}, v{B+1}
        v_cvt_pk_bf16_f32 v{B+17}, v{B+2}, v{B+3}
        global_store_dwordx2 v{V_VM}, {vr(B+16,2)}, s[{S_OF}:{S_OF+1}] {cfg.get('outm','')}
        """)
        p.I('\n'.join(add64(S_OF, S_OF, 4 * 32 * 2048)))
        ev(p, (S_IT, 40))
    p.I(f's_mov_b32 s{S_IT}, 1')
    p.L(f'{lab}_cold')
    poll_flags(p, f'{lab}_pf', S_FL2, 8, S_IT, V_KM)
    for k in range(32): old(k)
    p.I('s_nop 0', tag=None)
    p.L(f'{lab}_run')
    ev(p, (S_IT, 20))
    p.vm = [('o', k) for k in range(32)]
    p.I(f'global_load_dword v{V_T}, v{V_KM}, s[{S_FL2}:{S_FL2+1}] sc1', tag='fl')
    for k in range(32):
        mm(k); old(k + 32)
    p.I('\n'.join(add64(S_SRD, S_SRD, 4 * 32 * 8192)))
    p.wait(vm='fl')
    p.I(f"""
    v_cmp_ge_u32 vcc, s{S_IT}, v{V_T}
    s_cbranch_vccnz {lab}_drain
    """)
    vm0 = list(p.vm)
    for k in range(32, 64):
        mm(k); old(k - 32)
    reduce()
    p.I(f's_add_u32 s{S_IT}, s{S_IT}, 1\ns_branch {lab}_run')
    p.L(f'{lab}_drain')
    p.vm = vm0
    for k in range(32, 64): mm(k)
    reduce()
    p.I(f's_add_u32 s{S_IT}, s{S_IT}, 1\ns_cmp_le_u32 s{S_IT}, 16\ns_cbranch_scc1 {lab}_cold')
    ev_dump(p)
    p.I('s_branch L_end')
```

```python
import sys
sys.path.insert(0, 'gen')
from asmlib import *

NAME = 'concat_heads__memory_aug_recurrent_mem_tr__memory_aug_recurrent_mem_tr__prompt_kernel'
MB = 1 << 20
WS_MODEL = 64 * MB
KVF, OF, KVM, XF = 0, 32 * MB, 48 * MB, 56 * MB
PR = 58 * MB
MR = PR + 512 * 1024
HB = MR + 65536
FL = 59 * MB
TS = 60 * MB
SENT = 0xffc0ffc0
F_K, F_V, F_C, F_O = 0, 16384, 32768, 49152
SAFE_OFF = 3 * MB

S_X, S_MEM0, S_WQ, S_WK, S_WV, S_WO = 4, 6, 8, 10, 12, 14
S_OUT, S_DBG, S_WS = 16, 18, 20
S_XCC, S_W, S_H, S_M = 22, 23, 24, 25
S_STEP, S_SPIN = 26, 27
S_SRD = 28
S_PP, S_MS, S_MRS, S_MP, S_KV, S_PUB, S_PPO = 34, 36, 38, 40, 42, 44, 46
S_TO = 50
S_LATE = 32
S_ONE = 12
S_HBW, S_HBR = 8, 10
S_KEY = 67
S_MQ1 = 48
S_T0, S_T1, S_T2, S_T3 = 58, 59, 60, 61
S_PTOG, S_MTOG = 62, 63
S_OPS, S_OPP, S_OMP = 64, 65, 66
S_SC = 98
S_MODE, S_FLB, S_FLC = 3, 96, 4
S_PL, S_PH = 68, 69
S_SENT, S_THR = 70, 71
S_ST = 72

MF, SB = 0, 32
Q0, Q1, K0, K1, V0, V1 = 64, 68, 72, 76, 80, 84
KX, VX = 88, 96
C_IDX, A_L16, C_SELT, C_SELR = 104, 105, 106, 108
A_PST, A_MST, A_STW, A_ST1, A_ST2, A_ST3, A_WL, A_MW, A_OW, A_OR = 112, 113, 114, 115, 116, 117, 118, 119, 120, 121
A_FL, V_FL, V_FS = 122, 123, 121
S_NEED, S_W0 = 14, 8
C_SENT = 124
ALAND = 240
L_STG, L_XCH, L_W = 0, 8192, 16384
HOME = {}
for sg in range(8):
    for tt in range(2): HOME[('q', sg, tt)] = ('a', 16 * sg + 8 * tt)
_l = 0
for key in [('k', 0, 0), ('k', 0, 1), ('k', 2, 0), ('k', 2, 1), ('k', 1, 0), ('k', 1, 1), ('k', 3, 0), ('k', 3, 1),
            ('v', 5, 0), ('v', 5, 1), ('v', 7, 0), ('v', 7, 1),
            ('o', 0, 0), ('o', 1, 0), ('o', 2, 0), ('o', 3, 0), ('o', 3, 2), ('o', 3, 3)]:
    HOME[key] = ('l', _l); _l += 1
_a = 128
for sg in (0, 1, 2, 3, 4, 6):
    for tt in range(2): HOME[('v', sg, tt)] = ('a', _a); _a += 8
for tt in range(2): HOME[('k', 7, tt)] = ('a', _a); _a += 8
assert _a == ALAND
_v = 128
for t in range(4):
    for cc in range(4):
        if ('o', t, cc) not in HOME: HOME[('o', t, cc)] = ('v', _v); _v += 8
for sg in (4, 5, 6):
    for tt in range(2): HOME[('k', sg, tt)] = ('v', _v); _v += 8
assert _v == 256
def sbslot(key): return SB + 8 * (HOME[key][1] % 4)

def add64(dst, base, off_s):
    return [f's_add_u32 s{dst}, s{base}, {off_s}', f's_addc_u32 s{dst+1}, s{base+1}, 0']

def load_args(p):
    p.I(f"""
    s_load_dwordx4 s[{S_X}:{S_X+3}], s[0:1], 0
    s_load_dwordx4 s[{S_WQ}:{S_WQ+3}], s[0:1], 16
    s_load_dwordx4 s[{S_WV}:{S_WV+3}], s[0:1], 32
    s_load_dwordx2 s[32:33], s[0:1], 56
    s_load_dwordx4 s[36:39], s[0:1], 64
    s_load_dwordx4 s[40:43], s[0:1], 80
    s_load_dwordx2 s[44:45], s[0:1], 96
    s_load_dwordx4 s[{S_OUT}:{S_OUT+3}], s[0:1], 112
    s_load_dwordx2 s[{S_WS}:{S_WS+1}], s[0:1], 128
    """)

def common_prologue(p, cfg):
    p.I("""
    s_cmp_ge_u32 s2, 256
    s_cbranch_scc1 L_end2
    """)
    load_args(p)
    p.I(f"""
    s_getreg_b32 s{S_XCC}, hwreg(HW_REG_XCC_ID)
    s_and_b32 s{S_XCC}, s{S_XCC}, 7
    v_lshrrev_b32 v1, 6, v0
    v_and_b32 v0, 63, v0
    v_readfirstlane_b32 s{S_W}, v1
    s_mov_b32 s{S_SPIN}, {cfg.get('spin', 2000000)}
    s_mov_b32 s{S_MODE}, 0
    s_waitcnt lgkmcnt(0)
    """)
    if cfg.get('stamps'):
        p.I(f's_memrealtime s[94:95]')
    dbgt(p, cfg, 1, True)
    p.I(f"""
    s_cmp_eq_u32 s{S_W}, 0
    s_cbranch_scc0 L_noticket
    s_mov_b64 exec, 1
    s_lshl_b32 s{S_T0}, s{S_XCC}, 5
    v_mov_b32 v1, s{S_T0}
    v_mov_b32 v2, 1
    global_atomic_add v3, v1, v2, s[{S_DBG}:{S_DBG+1}] sc0
    s_mov_b64 exec, -1
L_noticket:
    """)
    nt = cfg.get('touch', 0)
    if nt:
        p.I(f"""
        s_barrier
        s_cmp_ge_u32 s{S_XCC}, 2
        s_cbranch_scc1 L_notouch
        s_cmp_eq_u32 s{S_XCC}, 1
        s_cselect_b64 s[46:47], s[44:45], s[{S_WO}:{S_WO+1}]
        s_lshr_b32 s{S_T0}, s2, 3
        s_lshl_b32 s{S_T0}, s{S_T0}, 17
        s_lshl_b32 s{S_T1}, s{S_W}, 15
        s_add_u32 s{S_T0}, s{S_T0}, s{S_T1}
        v_lshlrev_b32 v4, 7, v0
        v_add_u32 v4, s{S_T0}, v4
        """)
        for i in range(nt):
            p.I(f'global_load_dword v{40+i}, v4, s[46:47]\nv_add_u32 v4, 8192, v4')
        p.I(f's_waitcnt vmcnt({nt})\ns_branch L_tk2')
        p.L('L_notouch')
    p.I(f"""
    s_waitcnt vmcnt(0)
L_tk2:
    s_cmp_eq_u32 s{S_W}, 0
    s_cbranch_scc0 L_tk3
    s_mov_b64 exec, 1
    v_mov_b32 v1, 0
    ds_write_b32 v1, v3
    s_waitcnt lgkmcnt(0)
    s_mov_b64 exec, -1
L_tk3:
    s_barrier
    v_mov_b32 v1, 0
    ds_read_b32 v3, v1
    s_waitcnt lgkmcnt(0)
    v_readfirstlane_b32 s{S_H}, v3
    s_barrier
    """)

AV = (1, 2)
def arrive(p, lab, tv=(252, 253), keep=0):
    p.I(f"""
    s_waitcnt vmcnt({keep}) lgkmcnt(0)
    s_barrier
    s_cmp_eq_u32 s{S_W}, 0
    s_cbranch_scc0 {lab}_noarr
    s_mov_b64 exec, 1
    s_lshl_b32 s{S_T0}, s{S_MODE}, 5
    s_add_u32 s{S_T0}, s{S_T0}, 208
    v_mov_b32 v{tv[0]}, s{S_T0}
    v_mov_b32 v{tv[1]}, 1
    global_atomic_add v{tv[0]}, v{tv[1]}, s[{S_DBG}:{S_DBG+1}]
    s_mov_b64 exec, -1
{lab}_noarr:
    """)
    if keep: p.vm = p.vm[-keep-1:-1]
    else: p.reset_cnt()

NARR = [256]
FORCE = [0]
def wait_all(p, lab, tv=(252, 253), pre=False):
    if not pre:
        p.I(f"""
        v_mbcnt_lo_u32_b32 v{tv[0]}, -1, 0
        v_and_b32 v{tv[0]}, 15, v{tv[0]}
        v_lshlrev_b32 v{tv[0]}, 4, v{tv[0]}
        """)
    p.I(f"""
    s_lshl_b32 s{S_T1}, s{S_MODE}, 1
    s_add_u32 s{S_T1}, s{S_T1}, 13
    {f's_branch {lab}_w0' if pre else ''}
{lab}_wa:
    global_load_dword v{tv[1]}, v{tv[0]}, s[{S_DBG}:{S_DBG+1}] sc1
    s_waitcnt vmcnt(0)
{lab}_w0:
    v_readlane_b32 s{S_T0}, v{tv[1]}, s{S_T1}
    s_cmp_ge_u32 s{S_T0}, {NARR[0]}
    s_cbranch_scc1 {lab}_wb
    s_sleep 16
    s_sub_u32 s{S_SPIN}, s{S_SPIN}, 1
    s_cbranch_scc0 {lab}_wa
    s_branch L_end
{lab}_wb:
    s_cmp_eq_u32 s{S_MODE}, 1
    s_cbranch_scc1 {lab}_wc
    v_cmp_ne_u32 vcc, {32 + FORCE[0]}, v{tv[1]}
    s_and_b32 s{S_T0}, vcc_lo, 0x5555
    s_cbranch_scc0 {lab}_wc
    global_load_dword v{tv[1]}, v{tv[0]}, s[{S_DBG}:{S_DBG+1}] sc1
    s_waitcnt vmcnt(0)
    v_cmp_ne_u32 vcc, {32 + FORCE[0]}, v{tv[1]}
    s_and_b32 s{S_T0}, vcc_lo, 0x5555
    s_cbranch_scc1 L_safe
{lab}_wc:
    """)
    p.reset_cnt()

def dbgt(p, cfg, word, neg=False, v=(1, 2)):
    if cfg.get('dbgt'):
        l = p.lab('L_dt')
        p.I(f"""
        s_cmp_eq_u32 s{S_W}, 0
        s_cbranch_scc0 {l}
        {f's_cmp_lt_u32 s2, 8' if word in (1, 5) else ''}
        {f's_cbranch_scc0 {l}' if word in (1, 5) else ''}
        s_memrealtime s[90:91]
        s_waitcnt lgkmcnt(0)
        {'s_not_b32 s90, s90' if neg else ''}
        s_mov_b64 exec, 1
        v_mov_b32 v{v[0]}, {4*word}
        v_mov_b32 v{v[1]}, s90
        global_atomic_umax v{v[0]}, v{v[1]}, s[{S_DBG}:{S_DBG+1}]
        s_mov_b64 exec, -1
{l}:
        """)

def select_model(p):
    p.I(f'''
    s_cmp_eq_u32 s{S_M}, 1
    s_cselect_b64 s[{S_X}:{S_X+1}], s[32:33], s[{S_X}:{S_X+1}]
    s_cselect_b64 s[{S_MEM0}:{S_MEM0+1}], s[36:37], s[{S_MEM0}:{S_MEM0+1}]
    s_cselect_b64 s[{S_WQ}:{S_WQ+1}], s[38:39], s[{S_WQ}:{S_WQ+1}]
    s_cselect_b64 s[{S_WK}:{S_WK+1}], s[40:41], s[{S_WK}:{S_WK+1}]
    s_cselect_b64 s[{S_WV}:{S_WV+1}], s[42:43], s[{S_WV}:{S_WV+1}]
    s_cselect_b64 s[{S_WO}:{S_WO+1}], s[44:45], s[{S_WO}:{S_WO+1}]
    s_lshl_b32 s{S_T0}, s{S_M}, 26
    s_add_u32 s{S_WS}, s{S_WS}, s{S_T0}
    s_addc_u32 s{S_WS+1}, s{S_WS+1}, 0
    ''')

def set_srd(p, ptr, nbytes):
    p.I(f'''
    s_mov_b32 s{S_SRD}, s{ptr}
    s_and_b32 s{S_SRD+1}, s{ptr+1}, 0xffff
    s_mov_b32 s{S_SRD+2}, {nbytes}
    s_mov_b32 s{S_SRD+3}, 0x20000
    ''')

def chain_consts(p, RO):
    p.I(f'''
    v_and_b32 v61, 15, v0
    v_lshrrev_b32 v62, 4, v0
    v_lshlrev_b32 v{A_L16}, 4, v0
    s_mov_b32 s{S_MQ1}, 0xcccccccc
    s_mov_b32 s{S_MQ1+1}, 0xcccccccc
    s_mov_b32 s{S_SC}, 0x3e0293ee
    s_mov_b32 s{S_PL}, 0x05040100
    s_mov_b32 s{S_PH}, 0x07060302
    s_mov_b32 s{S_SENT}, {SENT}
    s_mov_b32 s{S_THR}, 0xffc00000
    s_mov_b32 s{S_SC+1}, 0x3e0293ee
    v_mov_b32 v{C_SENT}, s{S_SENT}
    v_mov_b32 v{C_SENT+1}, s{S_SENT}
    v_mov_b32 v{C_SENT+2}, s{S_SENT}
    v_mov_b32 v{C_SENT+3}, s{S_SENT}
    v_mov_b32 v64, 0xeeee
    v_mov_b32 v65, 0x4444
    v_cndmask_b32 v{C_IDX}, v65, v64, s[{S_MQ1}:{S_MQ1+1}]
    ''')
    p.I(f'''
    v_and_b32 v63, 1, v61
    v_lshlrev_b32 v63, 4, v63
    v_mov_b32 v64, 0x3f80
    v_lshlrev_b32 v64, v63, v64
    v_lshrrev_b32 v65, 2, v61
    v_cmp_eq_u32 vcc, v65, v62
    v_cndmask_b32 v64, 0, v64, vcc
    v_mov_b32 v65, 0
    v_cndmask_b32 v{C_SELT}, v65, v64, s[{S_MQ1}:{S_MQ1+1}]
    v_cndmask_b32 v{C_SELT+1}, v64, v65, s[{S_MQ1}:{S_MQ1+1}]
    ''')
    p.I(f'''
    v_lshrrev_b32 v63, 2, v61
    v_and_b32 v63, 1, v63
    v_lshlrev_b32 v63, 4, v63
    v_mov_b32 v64, 0x3f80
    v_lshlrev_b32 v64, v63, v64
    v_and_b32 v65, 11, v61
    ''')
    for d, key in enumerate([0, 1, 8, 9]):
        p.I(f'v_cmp_eq_u32 vcc, {key}, v65\nv_cndmask_b32 v{C_SELR+d}, 0, v64, vcc')
    p.I(f'''
    v_lshrrev_b32 v63, 1, v62
    v_lshlrev_b32 v63, 13, v63
    v_and_b32 v64, 1, v62
    v_lshl_add_u32 v63, v64, 11, v63
    v_lshl_add_u32 v63, v61, 2, v63
    s_lshl_b32 s{S_T0}, s{S_W}, 16
    s_lshl_b32 s{S_T1}, s{S_H}, 6
    s_add_u32 s{S_T0}, s{S_T0}, s{S_T1}
    v_add_u32 v{A_PST}, s{S_T0}, v63
    ''')
    for t in range(8): p.I(f's_mov_b32 s{S_TO+t}, {(t&3)*16384 + (t>>2)*4096}')
    p.I(f'''
    v_and_b32 v63, 2, v0
    v_lshlrev_b32 v63, 4, v63
    v_and_b32 v64, 1, v62
    v_lshl_add_u32 v63, v64, 4, v63
    v_and_b32 v64, 1, v0
    v_lshl_add_u32 v63, v64, 3, v63
    v_lshrrev_b32 v64, 1, v62
    v_lshl_add_u32 v63, v64, 2, v63
    s_lshr_b32 s{S_LATE}, s{S_W}, 1
    s_lshr_b32 s{S_T2}, s{S_H}, 1
    s_and_b32 s{S_T2}, s{S_T2}, 3
    s_lshl_b32 s{S_T0}, s{S_LATE}, 2
    s_add_u32 s{S_T2}, s{S_T2}, s{S_T0}
    s_and_b32 s{S_T3}, s{S_H}, 1
    s_lshl_b32 s{S_T3}, s{S_T3}, 1
    s_and_b32 s{S_T0}, s{S_W}, 1
    s_add_u32 s{S_T3}, s{S_T3}, s{S_T0}
    s_lshl_b32 s{S_T0}, s{S_T2}, 10
    s_lshr_b32 s{S_T1}, s{S_H}, 3
    s_lshl_b32 s{S_T1}, s{S_T1}, 8
    s_add_u32 s{S_T0}, s{S_T0}, s{S_T1}
    s_lshl_b32 s{S_T1}, s{S_T3}, 6
    s_add_u32 s{S_T0}, s{S_T0}, s{S_T1}
    v_add_u32 v{A_MST}, s{S_T0}, v63
    ''')
    p.I(f'''
    v_and_b32 v63, 1, v62
    v_lshlrev_b32 v63, 10, v63
    v_lshrrev_b32 v64, 1, v62
    v_lshl_add_u32 v63, v64, 2, v63
    v_and_b32 v64, 3, v0
    v_lshl_add_u32 v63, v64, 3, v63
    s_lshl_b32 s{S_T0}, s{S_T3}, 11
    s_lshr_b32 s{S_T1}, s{S_H}, 3
    s_lshl_b32 s{S_T1}, s{S_T1}, 8
    s_add_u32 s{S_T0}, s{S_T0}, s{S_T1}
    s_lshl_b32 s{S_T1}, s{S_T2}, 5
    s_add_u32 s{S_T0}, s{S_T0}, s{S_T1}
    v_add_u32 v70, s{S_T0}, v63
    ''')
    p.I(f'''
    s_lshl_b32 s{S_T0}, s{S_KEY}, 11
    v_add_u32 v{A_STW}, s{S_T0}, v{A_L16}
    v_xor_b32 v{A_ST1}, 0x800, v{A_STW}
    v_xor_b32 v{A_ST2}, 0x1000, v{A_STW}
    v_xor_b32 v{A_ST3}, 0x1800, v{A_STW}
    s_mul_i32 s{S_T0}, s{S_W}, 36864
    s_add_u32 s{S_T0}, s{S_T0}, {L_W}
    v_add_u32 v{A_WL}, s{S_T0}, v{A_L16}
    s_lshl_b32 s{S_T0}, s{S_W}, 2
    v_add_u32 v{A_MW}, s{S_T0}, v{A_L16}
    ''')
    p.I(f'''
    s_lshl_b32 s{S_T2}, s{S_H}, 2
    s_add_u32 s{S_T2}, s{S_T2}, s{S_W}
    s_lshl_b32 s{S_OPP}, s{S_T2}, 11
    s_add_u32 s{S_OPP}, s{S_OPP}, {PR + RO}
    s_lshl_b32 s{S_OMP}, s{S_KEY}, 10
    s_add_u32 s{S_OMP}, s{S_OMP}, {MR + RO + 2048}
    s_lshl_b32 s{S_T0}, s{S_T2}, 12
    ''')
    p.I('\n'.join(add64(S_KV, S_WS, f's{S_T0}')))
    p.I(f's_lshl_b32 s{S_T0}, s{S_T2}, 10\ns_add_u32 s{S_T0}, s{S_T0}, {KVM}')
    p.I('\n'.join(add64(S_PUB, S_WS, f's{S_T0}')))

S_LB, S_SR2 = 72, 76
VA_QKV, VA_WO, VA_TR, VA_TQ, VA_TQ2 = 3, 4, 5, 6, 7
PARK = 8
NT = {}
PL = [0]
def pev(p, i):
    if PL[0]:
        p.I(f's_memrealtime s[74:75]\ns_waitcnt lgkmcnt(0)\nv_writelane_b32 v120, s74, {i}')
def chain_weights_setup(p, mid, midat):
    if PL[0]: p.I('v_mov_b32 v120, 0')
    pev(p, 0)
    p.I(f"""
    v_and_b32 v1, 15, v0
    v_lshrrev_b32 v2, 4, v0
    v_lshlrev_b32 v2, 10, v2
    v_and_b32 v8, 16, v0
    v_lshl_add_u32 v2, v1, 4, v2
    s_lshl_b32 s{S_T0}, s{S_H}, 17
    s_lshl_b32 s{S_T1}, s{S_W}, 8
    s_add_u32 s{S_T0}, s{S_T0}, s{S_T1}
    v_add_u32 v{VA_WO}, s{S_T0}, v2
    s_mul_i32 s{S_LB}, s{S_W}, 36864
    s_add_u32 s{S_LB}, s{S_LB}, {L_W}
    """)
    b = S_SR2 + 12
    p.I(f's_mov_b32 s{b}, s{S_WO}\ns_and_b32 s{b+1}, s{S_WO+1}, 0xffff\ns_mov_b32 s{b+2}, {4*MB}\ns_mov_b32 s{b+3}, 0x20000')
    for blk in range(8):
        if blk == midat: mid()
        p.I(f's_xor_b32 s{S_T2}, s{S_W}, {blk>>1}\ns_lshl_b32 s{S_T2}, s{S_T2}, 15')
        for gb in range(4):
            p.I(f's_add_u32 m0, s{S_LB}, {blk*4096 + gb*1024}\ns_add_u32 s{S_T3}, s{S_T2}, {((blk&1)*16 + 4*gb)*1024}')
            p.I(f'buffer_load_dwordx4 v{VA_WO}, s[{b}:{b+3}], s{S_T3} offen {NT.get("o","")} lds', tag=('wo', blk))
    p.I(f"""
    v_lshrrev_b32 v2, 5, v0
    v_lshlrev_b32 v2, 16, v2
    v_lshl_add_u32 v2, v8, 9, v2
    v_lshrrev_b32 v9, 2, v0
    v_and_b32 v9, 12, v9
    v_xor_b32 v9, v9, v1
    v_lshl_add_u32 v2, v9, 4, v2
    s_lshr_b32 s{S_T0}, s{S_W}, 1
    s_lshl_b32 s{S_T0}, s{S_T0}, 21
    s_and_b32 s{S_T1}, s{S_W}, 1
    s_lshl_b32 s{S_T1}, s{S_T1}, 14
    s_add_u32 s{S_T0}, s{S_T0}, s{S_T1}
    s_lshl_b32 s{S_T1}, s{S_H}, 8
    s_add_u32 s{S_T0}, s{S_T0}, s{S_T1}
    v_add_u32 v{VA_QKV}, s{S_T0}, v2
    v_lshrrev_b32 v2, 2, v0
    v_lshlrev_b32 v2, 8, v2
    v_and_b32 v1, 3, v0
    v_lshl_add_u32 v2, v1, 3, v2
    v_lshlrev_b32 v9, 3, v1
    v_and_b32 v10, 4, v0
    v_lshl_add_u32 v9, v10, 10, v9
    v_and_b32 v10, 8, v0
    v_lshl_add_u32 v9, v10, 2, v9
    v_lshrrev_b32 v10, 4, v0
    v_lshl_add_u32 v9, v10, 9, v9
    v_add_u32 v{VA_TR}, s{S_LB}, v9
    v_and_b32 v9, 12, v0
    v_lshlrev_b32 v9, 4, v9
    s_lshl_b32 s{S_T0}, s{S_W}, 6
    v_xor_b32 v9, s{S_T0}, v9
    v_add_u32 v2, v2, v9
    v_add_u32 v{VA_TQ}, {L_W}, v2
    v_add_u32 v{VA_TQ2}, {2*36864}, v{VA_TQ}
    """)
    for i, ptr in enumerate((S_WQ, S_WK, S_WV)):
        b = S_SR2 + 4 * i
        p.I(f's_mov_b32 s{b}, s{ptr}\ns_and_b32 s{b+1}, s{ptr+1}, 0xffff\ns_mov_b32 s{b+2}, {4*MB}\ns_mov_b32 s{b+3}, 0x20000')

def chain_weights_run(p, cfg, lab, late):
    units = [(m, c) for m in cfg.get('worder', 'kv') + 'q' for c in range(8)]
    NS = 9
    def park(idx, o, n):
        if idx < 12: return vr(PARK + 8 * idx + o, n)
        return ar(HOME[('q', 1 + 2 * ((idx - 12) >> 1), idx & 1)][1] + o, n)
    TQ = [VA_TQ, VA_WO, VA_TQ2, VA_TR]
    def dest(key, jp):
        kind, idx = HOME[key]
        if kind == 'a': return ar(idx + 2 * jp, 2)
        if kind == 'v': return vr(idx + 2 * jp, 2)
        return park(idx, 2 * jp, 2)
    D = cfg.get('wd', 4)
    rdy = {s: 0 for s in (6, 7, 8)}
    for s_ in range(6):
        m = 'k' if s_ < 4 else 'v'
        rdy[s_] = max(i for i, u in enumerate(units) if u[0] == m) + 1
    slot = {}; retire = {}
    def issue(i):
        s = slot[i]
        m, c = units[i]; srd = S_SR2 + 4 * 'qkv'.index(m)
        for gb in range(4):
            d = 16 * c + 128 * (gb >> 1) + 4 * (gb & 1)
            p.I(f's_add_u32 m0, s{S_LB}, {s*4096 + gb*1024}\ns_mov_b32 s{S_T3}, {d*8192}')
            p.I(f'buffer_load_dwordx4 v{VA_QKV}, s[{srd}:{srd+3}], s{S_T3} offen {NT.get(m,"")} lds', tag=('u', i))
    first = [8, 0, 1, 2, 3, 4, 5, 6, 7][:D]
    for i, s_ in enumerate(first): slot[i] = s_
    pool = [s_ for s_ in range(9) if s_ not in first]
    live = set(range(9))
    for i in range(len(units) + 1):
        if i >= 1: pool.append(slot[i - 1])
        if i + D < len(units):
            s_ = max(pool, key=lambda x: (rdy[x], x)); pool.remove(s_); slot[i + D] = s_
        need = min(D + 1, len(units) - i)
        while True:
            cand = [x for x in pool if rdy[x] <= i]
            if not cand or len(live) - 1 < need or (retire.get(i) and i < len(units)): break
            x = min(cand, key=lambda x: (rdy[x], -x)); pool.remove(x); live.discard(x); retire.setdefault(i, []).append(x)
    assert not live and all(i < 20 for i, l in retire.items() for x in l if x >= 6)
    pev(p, 1)
    nf = [0]
    def early(upto):
        while nf[0] < D and (first[nf[0]] == 8 or first[nf[0]] <= upto):
            issue(nf[0]); nf[0] += 1
    early(-1)
    for kap in range(4):
        p.wait(vm=('wo', 2 * kap + 1))
        pev(p, 2 + kap)
        for pr in range(4):
            for jp in range(4):
                p.I(f'ds_read_b64_tr_b16 {dest(("o", pr, kap), jp)}, v{VA_TR} offset:{kap*8192 + (8*(jp>>1) + (jp&1))*256 + pr*64}')
            if pr & 1: p.wait(lg='all')
        if kap >= cfg.get('wk0', 0): early(2 * kap + 1 if kap == 3 else 2 * (kap - cfg.get('wk0', 0)) + 1)
    p.I(f'v_add_u32 v{VA_WO}, 36864, v{VA_TQ}\nv_add_u32 v{VA_TR}, 36864, v{VA_TQ2}')
    vm0 = list(p.vm)
    def home(s_):
        for idx in (2 * s_, 2 * s_ + 1):
            for hh in range(2):
                p.I(f'ds_write_b128 v{A_WL}, {park(idx, 4*hh, 4)} offset:{idx*2048 + hh*1024}')
    for key in range(4):
        if key < 3: p.I(f's_cmp_eq_u32 s{S_KEY}, {key}\ns_cbranch_scc0 {lab}_wv{key+1}')
        p.vm = list(vm0)
        for i, (m, c) in enumerate(units):
            p.wait(vm=('u', i))
            p.I('s_barrier')
            pev(p, 6 + i)
            sg = 2 * ((c & 3) ^ key) + (c >> 2)
            for tt in range(2):
                for jp in range(4):
                    p.I(f'ds_read_b64_tr_b16 {dest((m, sg, tt), jp)}, v{TQ[jp]} offset:{slot[i]*4096 + tt*32}')
            for s_ in retire.get(i, []): home(s_)
            if i + D < len(units): issue(i + D)
            late(i)
            p.wait(lg='all')
        p.I('s_barrier')
        pev(p, 30)
        for s_ in retire.get(len(units), []): home(s_)
        if key < 3:
            p.I(f's_branch {lab}_wdone')
            p.L(f'{lab}_wv{key+1}')
    p.L(f'{lab}_wdone')

def stamp(p, cfg, i):
    if cfg.get('stamps') == 2:
        p.I(f'''
        s_memtime s[{S_ST+18}:{S_ST+19}]
        s_waitcnt lgkmcnt(0)
        s_sub_u32 s{S_ST+19}, s{S_ST+18}, s{S_ST+15}
        s_add_u32 s{S_ST+i}, s{S_ST+i}, s{S_ST+19}
        s_mov_b32 s{S_ST+15}, s{S_ST+18}
        ''')
        p.lg = []

def chain_bases(RO):
    o = [f's_add_u32 s{S_T0}, s{S_PTOG}, {PR + RO}'] + add64(S_SRD, S_WS, f's{S_T0}')
    o += [f's_add_u32 s{S_T0}, s{S_OPP}, s{S_PTOG}'] + add64(S_PP, S_WS, f's{S_T0}')
    o += [f's_add_u32 s{S_T0}, s{S_MTOG}, {MR + RO}'] + add64(S_MS, S_WS, f's{S_T0}')
    o += [f's_xor_b32 s{S_T0}, s{S_MTOG}, 0x2000', f's_add_u32 s{S_T0}, s{S_T0}, {MR + RO}'] + add64(S_MRS, S_WS, f's{S_T0}')
    o += [f's_add_u32 s{S_T0}, s{S_OMP}, s{S_MTOG}'] + add64(S_MP, S_WS, f's{S_T0}')
    return o

DPP = 'row_mask:0xf bank_mask:0xf'

def chain(p, cfg, st, lab):
    RO = SAFE_OFF if st else 0
    NSTEP = cfg.get('nstep', 64)
    depth1, depth2 = cfg.get('depth1', 2), cfg.get('depth2', 2)
    def frag(key):
        kind, idx = HOME[key]
        if kind == 'l':
            p.wait(lg=key); return vr(sbslot(key), 8)
        return (ar if kind == 'a' else vr)(idx, 8)
    def smf(acc, a, key, *shadow):
        b = frag(key)
        p.I(f'v_smfmac_f32_16x16x64_bf16 {vr(acc,4)}, {vr(a,4)}, {b}, v{C_IDX}')
        for x in shadow:
            if callable(x): x()
            else: p.I(x)
    def wl(key, hh):
        return lambda: p.I(f'ds_read_b128 {vr(sbslot(key)+4*hh,4)}, v{A_WL} offset:{HOME[key][1]*2048 + hh*1024}', tag=key)
    def kvld(i):
        if cfg.get('nokv'): return lambda: p.I('s_nop 0')
        return lambda: p.I(f'global_load_dwordx4 {ar(ALAND+4*i,4)}, v{A_L16}, s[{S_KV}:{S_KV+1}] offset:{1024*i} {cfg.get("kvm","sc1")}', tag='kv')
    kv_adv = add64(S_KV, S_KV, 32 * 16384)

    def init():
        p.I(f's_mov_b32 s{S_KEY}, s{S_W}')
        chain_consts(p, RO)
        p.I(f'''
        v_and_b32 v63, 3, v0
        v_lshlrev_b32 v63, 7, v63
        v_and_b32 v64, 4, v0
        v_lshl_add_u32 v{A_FL}, v64, 12, v63
        s_lshl_b32 s{S_T0}, s{S_H}, 9
        s_add_u32 s{S_T0}, s{S_T0}, {FL}
        s_add_u32 s{S_FLB}, s{S_WS}, s{S_T0}
        s_addc_u32 s{S_FLB+1}, s{S_WS+1}, 0
        s_lshl_b32 s{S_T0}, s{S_W}, 7
        s_add_u32 s{S_T0}, s{S_T0}, {F_C}
        s_add_u32 s{S_FLC}, s{S_FLB}, s{S_T0}
        s_addc_u32 s{S_FLC+1}, s{S_FLB+1}, 0
        v_mov_b32 v64, 0
        s_mov_b64 exec, 1
        global_store_dword v{A_L16}, v64, s[{S_FLC}:{S_FLC+1}] sc1
        s_mov_b64 exec, -1
        s_mov_b32 s{S_PTOG}, 0
        s_mov_b32 s{S_MTOG}, 0
        ''')
        p.I('\n'.join(chain_bases(RO)))
        p.I(f'''
        global_store_dwordx4 v{A_L16}, {vr(C_SENT,4)}, s[{S_PP}:{S_PP+1}] {st}
        global_store_dwordx4 v{A_L16}, {vr(C_SENT,4)}, s[{S_PP}:{S_PP+1}] offset:1024 {st}
        s_add_u32 s{S_PPO}, s{S_PP}, 0x40000
        s_addc_u32 s{S_PPO+1}, s{S_PP+1}, 0
        global_store_dwordx4 v{A_L16}, {vr(C_SENT,4)}, s[{S_PPO}:{S_PPO+1}] {st}
        global_store_dwordx4 v{A_L16}, {vr(C_SENT,4)}, s[{S_PPO}:{S_PPO+1}] offset:1024 {st}
        global_store_dword v{A_MST}, v{C_SENT}, s[{S_MRS}:{S_MRS+1}] {st}
        global_store_dword v{A_MST}, v{C_SENT}, s[{S_MS}:{S_MS+1}] {st}
        ''')
        p.I(f'global_load_dword v{V_FL}, v70, s[{S_MEM0}:{S_MEM0+1}]', tag='m0')
    midat = cfg.get('midat', 4)
    chain_weights_setup(p, init, midat)
    arrive(p, lab, (1, 2), keep=4 * (8 - midat))
    nofl = cfg.get('noflags')
    def fl_ld(): p.I(f'global_load_dword v{V_FL}, v{A_FL}, s[{S_FLB}:{S_FLB+1}] sc1', tag='kv')
    def late(i):
        if i == 14:
            p.I(f'global_store_dword v{A_MST}, v{V_FL}, s[{S_MS}:{S_MS+1}] {st}')
            p.I('v_mbcnt_lo_u32_b32 v1, -1, 0\nv_and_b32 v1, 15, v1\nv_lshlrev_b32 v1, 4, v1')
            p.I(f'global_load_dword v2, v1, s[{S_DBG}:{S_DBG+1}] sc1', tag='snap')
        if i == cfg.get('lateat', 20):
            p.wait(vm='snap')
            if cfg.get('hold') or cfg.get('qwait'):
                p.I(f'v_mov_b32 v0, 1\ns_mov_b64 exec, 1\nglobal_store_dword v{A_L16}, v0, s[{S_FLC}:{S_FLC+1}] sc1\ns_mov_b64 exec, -1')
            fl_ld()
        if i == 23:
            p.wait(vm='kv')
            for q in range(4): kvld(q)()
    chain_weights_run(p, cfg, lab, late)
    dbgt(p, cfg, 6, v=(8, 9))
    if cfg.get('stamps'): p.I('s_memrealtime s[92:93]\ns_waitcnt lgkmcnt(0)\ns_mov_b32 s11, s92')
    pev(p, 31)
    def fl_spin(name, back):
        p.L(name)
        fl_ld()
        p.I(f"""
        s_waitcnt vmcnt(0)
        v_cmp_ge_u32 vcc, s{S_T1}, v{V_FL}
        s_cbranch_vccz {back}
        s_sleep 1
        s_sub_u32 s{S_SPIN}, s{S_SPIN}, 1
        s_cbranch_scc0 {name}
        s_branch L_end
        """)
    p.I(f"""
    s_mov_b32 s{S_STEP}, 0
    s_lshl_b32 s{S_T1}, s{S_MODE}, 1
    s_add_u32 s{S_T1}, s{S_T1}, 13
    v_readlane_b32 s{S_T2}, v2, s{S_T1}
    """)
    wait_all(p, lab, (1, 2), pre=True)
    if not nofl:
        p.I(f"""
        s_mov_b32 s{S_T1}, 1
        v_cmp_ge_u32 vcc, s{S_T1}, v{V_FL}
        s_cmp_ge_u32 s{S_T2}, {NARR[0]}
        s_cbranch_scc0 L_ch_fl0
        s_cbranch_vccz L_ch_kvok
        """)
        fl_spin('L_ch_fl0', 'L_ch_fl0ok')
        p.L('L_ch_fl0ok')
        for i in range(4): kvld(i)()
        p.L('L_ch_kvok')
    p.reset_cnt()
    p.I('\n'.join(kv_adv))
    if cfg.get('stamps'):
        p.I('s_memrealtime s[92:93]\ns_waitcnt lgkmcnt(0)\ns_mov_b32 s33, s94\ns_mov_b32 s64, s92')
        if cfg['stamps'] == 3: p.I('s_memtime s[94:95]\ns_mov_b32 s100, 0\ns_mov_b32 s101, 0\ns_waitcnt lgkmcnt(0)')
    dbgt(p, cfg, 2)
    p.I('s_waitcnt lgkmcnt(0)')
    p.I(f's_mov_b32 s{S_SRD+2}, 0x40000\ns_mov_b32 s{S_SRD+3}, 0x20000')
    p.I(f's_mov_b32 s{S_ONE}, 0x3f803f80\ns_mov_b32 s{S_ONE+1}, 0x3f803f80')
    pre_keys = [('k', 0, 0), ('k', 0, 1), ('k', 2, 0), ('k', 2, 1)]
    mv = lambda i: f'v_accvgpr_read_b32 v{KX+i}, a{ALAND+i}'
    kvmove = [mv(i) for i in list(range(8)) + list(range(12, 16))]
    kvlate = [mv(i) for i in range(8, 12)]
    zacc = [f'v_mov_b64 {vr(Q0+2*i,2)}, 0' for i in range(12)]
    marks = cfg.get('marks', [])
    def mk(name):
        if name in marks:
            i = marks.index(name); p.I(f's_mem{"real" if cfg.get("rt") else ""}time s[{72+2*i}:{73+2*i}]')
    def MK(name): return lambda: mk(name)
    def emit(xs):
        for x in xs:
            if callable(x): x()
            else: p.I(x)
    def m_ld(i):
        p.I(f'global_load_dwordx4 {vr(MF+4*i,4)}, v{A_L16}, s[{S_MP}:{S_MP+1}] offset:{-2048+4096*i} sc1', tag=('m', i))
    def nops(n):
        while n > 0:
            q = min(n, 16); p.I(f's_nop {q-1}'); n -= q
    pubst = f'global_store_dwordx4 v{A_L16}, {vr(VX,4)}, s[{S_PUB}:{S_PUB+1}] sc1'
    p.reset_cnt()
    for x in zacc: p.I(x)
    for kk in pre_keys: wl(kk, 0)(); wl(kk, 1)()
    m_ld(0)
    p.I(f'v_mov_b32 v{V_FS}, 1\ns_mov_b64 s[{S_NEED}:{S_NEED+1}], -1\ns_cmp_eq_u32 s{S_W}, 0\ns_cselect_b64 s[{S_W0}:{S_W0+1}], 1, 0\ns_waitcnt vmcnt(0) lgkmcnt(0)')
    pev(p, 32)
    emit(kvmove)
    Wr = lambda i: (lambda: p.I(f'ds_write_b128 v{A_STW}, {vr(MF+4*i,4)} offset:{L_STG+1024*i}', tag='stg'))
    chk = f"""
    v_max3_u32 v28, v0, v1, v2
    v_max_u32 v28, v28, v3
    v_cmp_le_u32 vcc, s{S_THR}, v28
    """
    cad = cfg.get('cad', 2)
    p.I('s_branch L_ch_chk')
    p.raw('.p2align 6')
    for _ in range(cfg.get('pad', 0)): p.I('s_nop 0')
    p.L('L_ch_mefail')
    if cad == 2: p.I('s_mov_b64 exec, vcc')
    p.L('L_ch_mestart')
    m_ld(0)
    if cad == 2: p.I('s_mov_b64 exec, -1')
    if cfg.get('stamps') == 1: p.I('s_add_u32 s101, s101, 1')
    for _ in range(cfg.get('nchk', 2) - 1):
        p.I(chk); p.I('s_cbranch_vccz L_ch_go')
    p.I(f's_sub_u32 s{S_SPIN}, s{S_SPIN}, 1\ns_cbranch_scc1 L_end')
    p.L('L_ch_chk')
    p.I(chk)
    p.I('s_cbranch_vccnz L_ch_mefail')
    p.L('L_ch_go')
    p.reset_cnt()
    Wr(0)()
    mk('qk0')
    areg = {1: A_ST1, 2: A_ST2, 3: A_ST3}
    def mf(sg):
        return lambda: p.I(f'ds_read_b128 {vr(MF+4*sg,4)}, v{areg[sg>>1]} offset:{L_STG+(sg&1)*1024}', tag=('mf', sg))
    sal = [f's_xor_b32 s{S_MTOG}, s{S_MTOG}, 0x2000'] + chain_bases(RO)
    def S(n):
        o = sal[:n]; del sal[:n]; return o
    rst = lambda i: f'global_store_dwordx4 v{A_L16}, {vr(C_SENT,4)}, s[{S_PPO}:{S_PPO+1}] offset:{1024*i} {st}'
    flst = [f's_mov_b64 exec, s[{S_W0}:{S_W0+1}]', f'global_store_dword v{A_L16}, v{V_FS}, s[{S_FLC}:{S_FLC+1}] sc1', 's_mov_b64 exec, -1']
    flld = [f's_mov_b64 exec, s[{S_NEED}:{S_NEED+1}]', fl_ld, 's_mov_b64 exec, -1']
    vp = dict(ml=3, fs=17, k0=4, pub=5, fl=18, k1=9, k3=12, k2=19, r0=22, r1=27)
    vp.update(cfg.get('vp', {}))
    place = {}
    for name, ops in (('ml', [lambda: m_ld(1)]), ('pub', [] if cfg.get('nopub') else [pubst]), ('k0', [kvld(0)]), ('k1', [kvld(1)]), ('k3', [kvld(3)]), ('k2', [kvld(2)]),
                      ('fs', [] if cfg.get('nofst') else flst), ('fl', [] if nofl else flld), ('r0', [rst(0)]), ('r1', [rst(1)])):
        place.setdefault(vp[name], []).extend(ops)
    two = vp.get('ml2') is not None
    if two: place.setdefault(vp['ml2'], []).insert(0, lambda: m_ld(1))
    lastml = vp['ml2'] if two else vp['ml']
    assert min(vp['k0'], vp['k1'], vp['k3'], vp['fl'], vp['fs'], vp['pub']) > max(lastml, 3)
    lpos = cfg.get('lpos') or ((7, 8, 10, 11) if vp['pub'] < 7 else tuple(vp['k2'] - 4 + i for i in range(4)))
    assert vp['pub'] < min(lpos) and max(lpos) < vp['k2']
    slot = [0]
    def Q(acc, sg, key, *shadow):
        ex = place.pop(slot[0], [])
        tail = [kvlate[lpos.index(slot[0])]] if slot[0] in lpos else []
        slot[0] += 1
        smf(acc, MF + 4 * sg, key, *ex, *shadow, *tail)
    mrst = f'global_store_dword v{A_MST}, v{C_SENT}, s[{S_MRS}:{S_MRS+1}] {st}'
    Q(Q0, 0, ('q', 0, 0), mrst)
    Q(Q1, 0, ('q', 0, 1))
    Q(K0, 0, ('k', 0, 0))
    Q(K1, 0, ('k', 0, 1))
    p.wait(lg='all')
    mk('b1a')
    p.I('s_barrier')
    mk('b1b')
    mf(2)()
    Q(V0, 0, ('v', 0, 0), mf(4), mf(6))
    Q(V1, 0, ('v', 0, 1), wl(('k', 1, 0), 0))
    p.wait(lg=('mf', 2))
    Q(Q0, 2, ('q', 2, 0), wl(('k', 1, 0), 1), MK('s2'))
    Q(Q1, 2, ('q', 2, 1), wl(('k', 1, 1), 0))
    Q(K0, 2, ('k', 2, 0), wl(('k', 1, 1), 1))
    Q(K1, 2, ('k', 2, 1), wl(('k', 3, 0), 0))
    p.wait(lg=('mf', 6))
    Q(Q0, 4, ('q', 4, 0), wl(('k', 3, 0), 1))
    Q(Q1, 4, ('q', 4, 1), wl(('k', 3, 1), 0))
    rest = [(K0, 4, ('k', 4, 0), wl(('k', 3, 1), 1)), (K1, 4, ('k', 4, 1)), (Q0, 6, ('q', 6, 0)), (Q1, 6, ('q', 6, 1)), (K0, 6, ('k', 6, 0)), (K1, 6, ('k', 6, 1))]
    vfill = [(V0, 4, ('v', 4, 0)), (V1, 4, ('v', 4, 1)), (V0, 6, ('v', 6, 0)), (V1, 6, ('v', 6, 1)), (V0, 2, ('v', 2, 0)), (V1, 2, ('v', 2, 1))]
    nxt = lambda: (rest.pop(0) if rest else vfill.pop(0))
    while slot[0] < cfg.get('mlat', 13): Q(*nxt())
    def mlwait():
        first = p.vm.index(('m', 1))
        p.I(f's_waitcnt vmcnt({len(p.vm) - 1 - first})')
    if two:
        Q(*nxt(), MK('mla'), mlwait, MK('mlb'), 'v_max3_u32 v28, v4, v5, v6')
        Q(*nxt(), 'v_max_u32 v28, v28, v7', Wr(1))
        Q(*nxt(), f'v_cmp_le_u32 vcc, s{S_THR}, v28')
        Q(*nxt())
    else:
        Q(*nxt(), MK('mla'), mlwait, MK('mlb'), Wr(1))
        Q(*nxt(), 'v_max3_u32 v28, v4, v5, v6')
        Q(*nxt(), 'v_max_u32 v28, v28, v7')
        Q(*nxt(), f'v_cmp_le_u32 vcc, s{S_THR}, v28')
        Q(*nxt())
    while rest: Q(*rest.pop(0))
    for _ in range(cfg.get('nb4', 1)): Q(*nxt())
    p.I(f's_cbranch_vccnz L_ch_mlfail{"2" if two else ""}')
    n2 = p.vm[::-1].index(('m', 1))
    p.L('L_ch_mlok')
    p.wait(lg='all')
    mk('b4a')
    p.I('s_barrier')
    mk('b4b')
    mf(3)()
    Q(Q0, 1, ('q', 1, 0), mf(5), *S(1))
    Q(Q1, 1, ('q', 1, 1), mf(7), *S(1))
    Q(K0, 1, ('k', 1, 0), wl(('v', 5, 0), 0), *S(1))
    Q(K1, 1, ('k', 1, 1), wl(('v', 5, 0), 1))
    for _ in range(cfg.get('nvf', 0)): Q(*nxt(), *S(2))
    p.wait(lg=('mf', 3))
    Q(Q0, 3, ('q', 3, 0), MK('s3'), wl(('v', 5, 1), 0), *S(1))
    Q(Q1, 3, ('q', 3, 1), wl(('v', 5, 1), 1), *S(1))
    Q(K0, 3, ('k', 3, 0), wl(('v', 7, 0), 0), *S(1))
    Q(K1, 3, ('k', 3, 1), wl(('v', 7, 0), 1))
    p.wait(lg=('mf', 7))
    Q(Q0, 5, ('q', 5, 0), wl(('v', 7, 1), 0))
    Q(K0, 5, ('k', 5, 0), wl(('v', 7, 1), 1), *S(1))
    Q(Q0, 7, ('q', 7, 0), *S(3))
    Q(K0, 7, ('k', 7, 0), f's_mov_b64 vcc, s[{S_MQ1}:{S_MQ1+1}]', *S(2))
    Q(Q1, 5, ('q', 5, 1), *S(2), f'v_add_f32 v{Q0}, v{Q0}, v{Q0+2}')
    Q(K1, 5, ('k', 5, 1), *S(2), f'v_add_f32 v{Q0+1}, v{Q0+1}, v{Q0+3}', f'v_add_f32 v{K0}, v{K0}, v{K0+2}')
    Q(Q1, 7, ('q', 7, 1), *S(2), f'v_cvt_pk_bf16_f32 v{Q0+2}, v{Q0}, v{Q0+1}')
    Q(K1, 7, ('k', 7, 1), MK('qk1'), f'v_add_f32 v{K0+1}, v{K0+1}, v{K0+3}', f'v_cvt_pk_bf16_f32 v{Q0+3}, v{K0}, v{K0+1}')
    assert not place
    vq = [(5, 0), (5, 1), (7, 0), (7, 1)] + [(x[1], x[2][2]) for x in vfill] + [(sg, tt) for sg in (1, 3) for tt in range(2)]
    sal.extend([f's_cmp_lt_u32 s{S_STEP}, {NSTEP-2}', f's_cselect_b32 s{S_T1}, {0 if cfg.get("kvsame") else 32*16384}, 0'] + add64(S_KV, S_KV, f's{S_T1}'))
    sal.extend([f's_cmp_eq_u32 s{S_STEP}, 0', f's_cselect_b32 s{S_T1}, 0, {32*4096}'] + add64(S_PUB, S_PUB, f's{S_T1}'))
    WA = 16
    zq = [('z', f'v_mov_b32 v1, 0', None), ('z', f'v_mov_b32 v2, 0', None)] + [('z', f'v_mov_b64 {vr(MF+4*sg+2*h,2)}, 0', sg) for sg in (5, 7, 4, 6) for h in range(2)]
    ol = [wl(('o', t, 0), hh) for t in range(4) for hh in range(2)]
    nld = [0]
    def V(*shadow, auto=True):
        sg, tt = vq.pop(0)
        if HOME[('v', sg, tt)][0] == 'l': nld[0] += 1
        ex = list(shadow)
        if auto:
            z = None
            for i, (_, ins, need) in enumerate(zq):
                if need is None or not any(s_ == need for s_, _t in vq): z = zq.pop(i)[1]; break
            canl = ol and (8 - len(ol)) // 2 < nld[0]
            nextl = vq and HOME[('v',) + vq[0]][0] == 'l'
            if z:
                if canl and not nextl: ex.append(ol.pop(0))
                elif not nextl: ex += S(1)
                ex.append(z)
            else:
                if canl: ex.append(ol.pop(0))
                ex += S(3 - len(ex) - (1 if nextl else 0))
        smf(V0 + 4 * tt, MF + 4 * sg, ('v', sg, tt), *ex)
    p.I(f"""
    v_add_f32 v{Q1}, v{Q1}, v{Q1+2}
    v_add_f32 v{Q1+1}, v{Q1+1}, v{Q1+3}
    v_mfma_f32_16x16x16_bf16 {vr(K0,4)}, {vr(Q0+2,2)}, {vr(C_SELT,2)}, 0
    v_cvt_pk_bf16_f32 v{Q1+2}, v{Q1}, v{Q1+1}
    v_add_f32 v{K1}, v{K1}, v{K1+2}
    v_add_f32 v{K1+1}, v{K1+1}, v{K1+3}
    v_cvt_pk_bf16_f32 v{Q1+3}, v{K1}, v{K1+1}
    """)
    emit(S(2))
    p.I(f"""
    v_mfma_f32_16x16x16_bf16 {vr(K1,4)}, {vr(Q1+2,2)}, {vr(C_SELT,2)}, 0
    """)
    if cfg.get('vt', 1):
        emit(S(2)); V(auto=False)
    p.I(f"""
    v_cvt_pk_bf16_f32 v{Q0}, v{K0}, v{K0+1}
    v_cvt_pk_bf16_f32 v{Q0+1}, v{K0+2}, v{K0+3}
    v_cvt_pk_bf16_f32 v{Q0+2}, v{K1}, v{K1+1}
    v_cvt_pk_bf16_f32 v{Q0+3}, v{K1+2}, v{K1+3}
    """)
    emit(S(2))
    p.I(f'v_mfma_f32_16x16x32_bf16 {vr(K0,4)}, {vr(KX,4)}, {vr(Q0,4)}, 0')
    mk('sc')
    emit(S(2))
    p.I(f"""
    v_mfma_f32_16x16x32_bf16 {vr(K1,4)}, {vr(KX+4,4)}, {vr(Q0,4)}, 0
    v_mfma_f32_16x16x32_bf16 {vr(Q1,4)}, {vr(Q0,4)}, {vr(Q0,4)}, 0
    """)
    if cfg.get('vs', 1): V(auto=False)
    for r in range(4):
        p.I(f'v_cndmask_b32_dpp v{K0+r}, v{K1+r}, v{K0+r}, vcc quad_perm:[2,3,2,3] {DPP}')
    p.I(f'v_cndmask_b32_dpp v{Q1}, v{Q1+1}, v{Q1}, vcc quad_perm:[2,3,2,3] {DPP}')
    p.I(f'ds_write_b128 v{A_STW}, {vr(K0,4)} offset:{L_XCH}', tag='sx')
    p.I(f'ds_write_b32 v{A_MW}, v{Q1} offset:{L_XCH+1024}', tag='sx')
    mk('sw')
    for i in range(cfg.get('nva', 5)): V()
    p.wait(lg='sx', vm=('m', 1) if two else None)
    mk('b2a')
    p.I('s_barrier')
    mk('b2b')
    p.I(f'ds_read_b128 {vr(K1,4)}, v{A_ST1} offset:{L_XCH}', tag='s1')
    V(lambda: p.I(f'ds_read_b128 {vr(KX,4)}, v{A_ST2} offset:{L_XCH}', tag='s2'),
      lambda: p.I(f'ds_read_b128 {vr(KX+4,4)}, v{A_ST3} offset:{L_XCH}', tag='s3'),
      lambda: p.I(f'ds_read_b128 {vr(Q1,4)}, v{A_L16} offset:{L_XCH+1024}', tag='sm'), auto=False)
    while len(vq) > 1: V()
    V('s_not_b64 vcc, vcc', lambda: p.wait(lg='sm'), auto=False)
    emit(S(99))
    zl = [x[1] for x in zq]
    mk('sm0')
    T0, T1 = Q1 + 1, Q1 + 2
    def OL():
        if ol: ol.pop(0)()
    def Z(): return zl.pop(0) if zl else ''
    QH, QL = f'quad_perm:[2,3,2,3] {DPP}', f'quad_perm:[0,1,0,1] {DPP}'
    cm = [f'v_cndmask_b32 v{VX}, v{V0+2}, v{Q0}, vcc', f'v_cndmask_b32 v{VX+1}, v{V0+3}, v{Q0+1}, vcc',
          f'v_cndmask_b32_dpp v{VX+2}, v{V0+2}, v{Q0+2}, vcc quad_perm:[2,3,0,1] {DPP}', f'v_cndmask_b32_dpp v{VX+3}, v{V0+3}, v{Q0+3}, vcc quad_perm:[2,3,0,1] {DPP}']
    p.I(f"""
    v_add_f32 v{K0}, v{K0}, v{K1}
    v_add_f32 v{K0+1}, v{K0+1}, v{K1+1}
    v_add_f32 v{K0+2}, v{K0+2}, v{K1+2}
    v_add_f32 v{K0+3}, v{K0+3}, v{K1+3}
    v_pk_add_f32 {vr(KX,2)}, {vr(KX,2)}, {vr(KX+4,2)}
    v_pk_add_f32 {vr(KX+2,2)}, {vr(KX+2,2)}, {vr(KX+6,2)}
    v_pk_add_f32 {vr(Q1,2)}, {vr(Q1,2)}, {vr(Q1+2,2)}
    v_pk_add_f32 {vr(K0,2)}, {vr(K0,2)}, {vr(KX,2)}
    v_pk_add_f32 {vr(K0+2,2)}, {vr(K0+2,2)}, {vr(KX+2,2)}
    v_add_f32 v{Q1}, v{Q1}, v{Q1+1}
    v_max3_f32 v{T0}, v{K0}, v{K0+1}, v{K0+2}
    v_max3_f32 v{T0}, v{T0}, v{K0+3}, v{Q1}
    v_pk_add_f32 {vr(V0,2)}, {vr(V0,2)}, {vr(V0+2,2)}
    v_pk_add_f32 {vr(V1,2)}, {vr(V1,2)}, {vr(V1+2,2)}
    v_max_f32_dpp v{T0}, v{T0}, v{T0} quad_perm:[2,3,0,1] {DPP}
    v_mov_b32 v{T1}, v{T0}
    v_cvt_pk_bf16_f32 v{V0+2}, v{V0}, v{V0+1}
    v_cvt_pk_bf16_f32 v{V0+3}, v{V1}, v{V1+1}
    v_permlane16_swap_b32 v{T0}, v{T1}
    v_max_f32 v{T0}, v{T0}, v{T1}
    v_mov_b32 v{T1}, v{T0}
    v_mov_b64 {vr(K1,2)}, s[{S_ONE}:{S_ONE+1}]
    v_mov_b64 {vr(K1+2,2)}, s[{S_ONE}:{S_ONE+1}]
    v_permlane32_swap_b32 v{T0}, v{T1}
    v_max_f32 v{T0}, v{T0}, v{T1}
    """)
    mk('mx')
    p.I(f"""
    v_mul_f32 v{T1}, s{S_SC}, v{T0}
    v_pk_fma_f32 {vr(K0,2)}, {vr(K0,2)}, s[{S_SC}:{S_SC+1}], {vr(T1,2)} op_sel_hi:[1,1,0] neg_lo:[0,0,1] neg_hi:[0,0,1]
    v_pk_fma_f32 {vr(K0+2,2)}, {vr(K0+2,2)}, s[{S_SC}:{S_SC+1}], {vr(T1,2)} op_sel_hi:[1,1,0] neg_lo:[0,0,1] neg_hi:[0,0,1]
    v_fma_f32 v{Q1}, v{Q1}, s{S_SC}, -v{T1}
    v_exp_f32 v{K0}, v{K0}
    v_exp_f32 v{K0+1}, v{K0+1}
    v_exp_f32 v{K0+2}, v{K0+2}
    v_cvt_pk_bf16_f32 v{K0}, v{K0}, v{K0+1}
    v_exp_f32 v{K0+3}, v{K0+3}
    v_exp_f32 v{Q1}, v{Q1}
    v_cvt_pk_bf16_f32 v{K0+2}, v{K0+2}, v{K0+3}
    v_mov_b32_dpp v{KX}, v{K0} {QH}
    v_mov_b32_dpp v{KX+2}, v{K0} {QL}
    v_mov_b32_dpp v{KX+1}, v{K0+2} {QH}
    v_mov_b32_dpp v{KX+3}, v{K0+2} {QL}
    v_mov_b32_dpp v{T0}, v{Q1} {QH}
    v_mov_b32_dpp v{T1}, v{Q1} {QL}
    v_mfma_f32_16x16x32_bf16 {vr(KX+4,4)}, {vr(K1,4)}, {vr(KX,4)}, 0
    """)
    mk('pv')
    p.I(f"""
    v_cvt_pk_bf16_f32 v0, v{T0}, v{T1}
    v_cvt_pk_bf16_f32 v3, v{T0}, v{T1}
    v_mfma_f32_16x16x32_bf16 {vr(V1,4)}, {vr(VX+4,4)}, {vr(KX,4)}, 0
    """)
    OL(); p.I(Z())
    p.I(f'v_mfma_f32_16x16x32_bf16 {vr(K0,4)}, {vr(VX,4)}, {vr(KX,4)}, 0')
    OL(); p.I(Z() or cm.pop(0))
    p.I(f'v_mfma_f32_16x16x16_bf16 {vr(KX+4,4)}, {vr(K1,2)}, v[0:1], {vr(KX+4,4)}')
    OL(); p.I(Z() or cm.pop(0)); p.I(cm.pop(0))
    p.I(f'v_mfma_f32_16x16x16_bf16 {vr(V1,4)}, {vr(V0+2,2)}, v[2:3], {vr(V1,4)}')
    p.I(cm.pop(0))
    p.I(f'v_mfma_f32_16x16x16_bf16 {vr(K0,4)}, {vr(V0+2,2)}, v[0:1], {vr(K0,4)}')
    p.I(f'v_rcp_f32 v{Q1}, v{KX+4}')
    while ol: OL()
    while zl: p.I(Z())
    for x in cm: p.I(x)
    p.I(f"""
    s_cmp_ge_u32 s{S_STEP}, {NSTEP-1}
    v_mul_f32 v{V1}, v{V1}, v{Q1}
    v_mul_f32 v{V1+1}, v{V1+1}, v{Q1}
    v_pk_mul_f32 {vr(V1+2,2)}, {vr(V1+2,2)}, {vr(Q1,2)} op_sel_hi:[1,0]
    v_pk_mul_f32 {vr(K0,2)}, {vr(K0,2)}, {vr(Q1,2)} op_sel_hi:[1,0]
    v_pk_mul_f32 {vr(K0+2,2)}, {vr(K0+2,2)}, {vr(Q1,2)} op_sel_hi:[1,0]
    v_cvt_pk_bf16_f32 v{K0}, v{K0}, v{V1}
    v_cvt_pk_bf16_f32 v{K0+1}, v{K0+1}, v{V1+1}
    v_cvt_pk_bf16_f32 v{K0+2}, v{K0+2}, v{V1+2}
    v_cvt_pk_bf16_f32 v{K0+3}, v{K0+3}, v{V1+3}
    """)
    p.I(f'ds_write_b128 v{A_STW}, {vr(K0,4)} offset:{L_STG}', tag='ow')
    mk('ow')
    OA = [K0, Q1, K1, V0]
    def cv(t):
        a = WA + 2 * t
        return f'v_cvt_pk_bf16_f32 v{a}, v{a}, v{a+1}'
    def pst(t): return lambda: p.I(f'buffer_store_dword v{WA+2*t}, v{A_PST}, s[{S_SRD}:{S_SRD+3}], s{S_TO+t} offen {st}', tag='ps')
    def p_poll(tag=None):
        p.I(f'global_load_dwordx4 v[4:7], v{A_L16}, s[{S_PP}:{S_PP+1}] sc1', tag=tag)
        p.I(f'global_load_dwordx4 v[12:15], v{A_L16}, s[{S_PP}:{S_PP+1}] offset:1024 sc1', tag=tag)
    def W(pr, kap, *shadow): smf(WA + 4 * pr, OA[kap], ('o', pr, kap), *shadow)
    sent = [f'v_mov_b64 v[0:1], {vr(C_SENT,2)}', f'v_mov_b64 v[2:3], {vr(C_SENT,2)}']
    W(0, 0, MK('w0'), 's_cbranch_scc1 L_ch_done')
    W(1, 0, wl(('o', 3, 2), 0), sent[0])
    nw = cfg.get('nw', 3)
    def obar():
        p.wait(lg='ow')
        mk('b3a')
        p.I('s_barrier')
        mk('b3b')
        for kap in (1, 2, 3):
            p.I(f'ds_read_b128 {vr(OA[kap],4)}, v{areg[kap]} offset:{L_STG}', tag=('or', kap))
    if nw == 2: obar()
    W(2, 0, wl(('o', 3, 2), 1), sent[1])
    if nw == 3: obar()
    W(3, 0, wl(('o', 3, 3), 0), wl(('o', 3, 3), 1))
    if nw == 4: obar()
    p.I(f"""
    s_add_u32 s{S_STEP}, s{S_STEP}, 1
    s_mov_b64 s[{S_PPO}:{S_PPO+1}], s[{S_PP}:{S_PP+1}]
    s_xor_b32 s{S_PTOG}, s{S_PTOG}, 0x40000
    s_add_u32 s{S_T1}, s{S_STEP}, 1
    s_min_u32 s{S_T1}, s{S_T1}, 63
    s_cmp_eq_u32 s{S_LATE}, 1
    """)
    zw = [zacc[0], zacc[1], zacc[10], zacc[11]]
    emit(zw[:2])
    p.wait(lg=('or', 1)); W(0, 1, MK('w1'))
    p.wait(lg=('or', 2)); W(0, 2)
    p.wait(lg=('or', 3)); W(0, 3, zw[2])
    W(1, 1, zw[3])
    W(1, 2, cv(0))
    W(1, 3, pst(0), cv(1))
    W(2, 1, pst(1))
    W(2, 2, cv(2))
    W(2, 3, pst(2), cv(3))
    W(3, 1, pst(3))
    dl = cfg.get('dl', 0)
    fl = []
    for kk in pre_keys: fl += [wl(kk, 0), wl(kk, 1)]
    fl = [x for pr in zip(fl, zacc[2:10]) for x in pr]
    ep = 0
    W(3, 2, cv(4))
    if dl:
        if dl == 4: W(3, 3, MK('w7'), cv(5))
        else: W(3, 3, pst(4), cv(5), pst(5), MK('w7'))
        n0 = cfg.get('n0', 4)
        emit([fl[0], fl[2], zacc[2], zacc[3], zacc[4]])
        p.I(cv(6)); p.I(cv(7))
        mk('we')
        fl = [fl[4], zacc[5], fl[6], zacc[6], fl[8], zacc[7], fl[10], zacc[8], fl[12], zacc[9], fl[14]]
        emit(fl[:n0]); nops(cfg.get('d1e', 0))
        p.I('s_cbranch_scc1 L_ch_noe'); p_poll('pe'); p.L('L_ch_noe')
        p.I('s_barrier')
        for t in range(8 - dl, 8): pst(t)()
        emit(fl[n0:]); fl = []
    else:
        W(3, 3, pst(4), cv(5), pst(5), MK('w7'))
        p.I(cv(6)); p.I(cv(7)); pst(6)(); pst(7)()
        mk('we')
    p.I('s_cbranch_scc1 L_ch_late')
    def kvpart(n, lab2):
        p.I(f's_waitcnt vmcnt({n})')
        if not nofl: p.I(f'v_cmp_ge_u32 vcc, s{S_T1}, v{V_FL}')
        emit(kvmove)
        if not nofl:
            p.I(f's_cbranch_vccnz L_ch_fl{lab2}'); p.L(f'L_ch_flok{lab2}')
        p.I(f'v_mov_b32 v{V_FS}, s{S_STEP}')
        if not nofl:
            p.I(f's_add_u32 s{S_T1}, s{S_T1}, {cfg.get("fla", 2)}\ns_min_u32 s{S_T1}, s{S_T1}, 63\nv_cmp_ge_u32 vcc, s{S_T1}, v{V_FL}\ns_cmp_lg_u64 vcc, 0\ns_cselect_b64 s[{S_NEED}:{S_NEED+1}], -1, 0')
    def diag():
        if cfg.get('stamps') == 1:
            l = p.lab('L_ch_st')
            p.I(f's_cmp_eq_u32 s{S_STEP}, 3\ns_cbranch_scc0 {l}')
            p.I(f's_mov_b32 s100, 0\ns_mov_b32 s101, 0')
            if not marks: p.I('s_mov_b32 s73, 0')
            p.I(f's_memrealtime s[92:93]\ns_memtime s[94:95]\ns_waitcnt lgkmcnt(0)')
            p.L(l)
            if cfg.get('mid'):
                l = p.lab('L_ch_st')
                p.I(f's_cmp_eq_u32 s{S_STEP}, {cfg["mid"]}\ns_cbranch_scc0 {l}')
                p.I(f's_memrealtime s[74:75]\ns_memtime s[76:77]\ns_mov_b32 s78, s100\ns_mov_b32 s80, s101\ns_waitcnt lgkmcnt(0)\ns_sub_u32 s74, s74, s92\ns_sub_u32 s76, s76, s94')
                p.L(l)
    def attempt(y, me=False):
        p.I(f"""
        s_waitcnt vmcnt({y+1})
        v_mfma_f32_16x16x32_bf16 v[8:11], {vr(C_SELR,4)}, v[4:7], 0
        s_waitcnt vmcnt({y})
        v_mfma_f32_16x16x32_bf16 v[8:11], {vr(C_SELR,4)}, v[12:15], v[8:11]
        """)
        if me in (1, 3): m_ld(0)
        mk('h1r')
        p.I(f"""
        v_add_f32_dpp v8, v8, v8 row_ror:4 {DPP}
        v_add_f32_dpp v9, v9, v9 row_ror:4 {DPP}
        v_cmp_u_f32 vcc, v10, v10
        v_add_f32_dpp v8, v8, v8 row_ror:8 {DPP}
        v_add_f32_dpp v9, v9, v9 row_ror:8 {DPP}
        v_cvt_pk_bf16_f32 v8, v8, v9
        """)
        if me in (2, 3): m_ld(0)
        p.I(f'global_store_dword v{A_MST}, v8, s[{S_MS}:{S_MS+1}] {st}')
    def retry(name, back):
        p.L(name)
        if cfg.get('stamps') == 1: p.I('s_add_u32 s100, s100, 1')
        p_poll(); attempt(0)
        p.I(f"""
        s_cbranch_vccz {back}
        s_sub_u32 s{S_SPIN}, s{S_SPIN}, 1
        s_cbranch_scc0 {name}
        s_branch L_end
        """)
    n1e = cfg.get('n1e', 8)
    if not dl:
        ea = cfg.get('ea', 4)
        if cfg.get('kvf', 2) == 1: kvpart(8, 'e')
        emit(fl[:n1e]); nops(cfg.get('d1e', 0))
        if ea is not None: p.I(f's_waitcnt vmcnt({ea})')
        p_poll('pe'); emit(fl[n1e:])
    if cfg.get('kvf', 2) == 0: kvpart(10, 'e')
    diag()
    attempt(dl)
    p.I('s_cbranch_vccnz L_ch_eret')
    p.L('L_ch_eok')
    mk('ms')
    if cfg.get('kvf', 2) == 2: kvpart(1, 'e')
    nops(cfg.get('d2e', 0))
    if cfg.get('ma'): p.I('s_waitcnt vmcnt(0)')
    mk('h2a')
    eg = cfg.get('eg')
    if eg is None: p.I('s_waitcnt lgkmcnt(0)\ns_branch L_ch_mestart')
    else:
        m_ld(0)
        if eg > 0:
            nops(eg); m_ld(0)
        p.I(f's_waitcnt vmcnt({1 if eg > 0 else 0}) lgkmcnt(0)\ns_branch L_ch_chk')
    p.L('L_ch_late')
    emit(fl)
    kvpart(8, 'l')
    nops(cfg.get('d1l', 0))
    if cfg.get('la', 0) is not None: p.I(f's_waitcnt vmcnt({cfg.get("la", 0)})')
    mk('h1a')
    p_poll()
    diag()
    lpre = cfg.get('lpre')
    if lpre is not None:
        nops(lpre); m_ld(0)
    attempt(0 if lpre is None else 1, me=cfg.get('lme', 2))
    p.I('s_cbranch_vccnz L_ch_lret')
    p.L('L_ch_lok')
    mk('ms')
    mk('h2a')
    nops(cfg.get('d2l', 0))
    if cfg.get('lw'): p.I('s_waitcnt vmcnt(1)')
    p.I('s_waitcnt lgkmcnt(0)\ns_branch L_ch_chk')
    retry('L_ch_eret', 'L_ch_eok')
    retry('L_ch_lret', 'L_ch_lok')
    if two:
        p.L('L_ch_mlfail2')
        p.I(f"""
        s_waitcnt vmcnt({n2}) lgkmcnt(0)
        v_max3_u32 v28, v4, v5, v6
        v_max_u32 v28, v28, v7
        v_cmp_le_u32 vcc, s{S_THR}, v28
        ds_write_b128 v{A_STW}, {vr(MF+4,4)} offset:{L_STG+1024}
        s_cbranch_vccz L_ch_mlok
        """)
    p.L('L_ch_mlfail')
    m_ld(1)
    if cfg.get('stamps') == 1 and not marks: p.I('s_add_u32 s73, s73, 1')
    p.I(f"""
    s_waitcnt vmcnt(0) lgkmcnt(0)
    v_max3_u32 v28, v4, v5, v6
    v_max_u32 v28, v28, v7
    v_cmp_le_u32 vcc, s{S_THR}, v28
    ds_write_b128 v{A_STW}, {vr(MF+4,4)} offset:{L_STG+1024}
    s_cbranch_vccz L_ch_mlok
    s_sub_u32 s{S_SPIN}, s{S_SPIN}, 1
    s_cbranch_scc0 L_ch_mlfail
    s_branch L_end
    """)
    if not nofl:
        fl_spin('L_ch_fle', 'L_ch_floke'); fl_spin('L_ch_fll', 'L_ch_flokl')
    p.L('L_ch_done')
    p.I(pubst)
    dbgt(p, cfg, 3)
    p.I(f'''
    v_mov_b32 v29, 65
    s_waitcnt vmcnt(0)
    s_barrier
    s_mov_b64 exec, 1
    global_store_dword v{A_L16}, v29, s[{S_FLC}:{S_FLC+1}] sc1
    s_mov_b64 exec, -1
    ''')
    if cfg.get('stamps'):
        p.I(f"""
        s_memtime s[60:61]
        s_memrealtime s[58:59]
        s_waitcnt lgkmcnt(0)
        s_sub_u32 s60, s60, s94
        v_mov_b32 v0, s60
        v_mov_b32 v1, s58
        v_mov_b32 v2, s92
        v_mov_b32 v3, s33
        v_mov_b32 v4, s64
        v_mov_b32 v5, s100
        v_mov_b32 v6, s101
        v_mov_b32 v7, s73
        v_mov_b32 v18, s11
        s_lshl_b32 s{S_T0}, s{S_H}, 2
        s_add_u32 s{S_T0}, s{S_T0}, s{S_W}
        s_lshl_b32 s{S_T0}, s{S_T0}, 7
        s_add_u32 s{S_T0}, s{S_T0}, {TS}
        v_mov_b32 v30, s{S_T0}
        """)
        for i in range(10): p.I(f'v_mov_b32 v{8+i}, s{72+2*i}')
        if PL[0]:
            p.I(f's_lshl_b32 s{S_T0}, s{S_H}, 2\ns_add_u32 s{S_T0}, s{S_T0}, s{S_W}\ns_lshl_b32 s{S_T0}, s{S_T0}, 8\ns_add_u32 s{S_T0}, s{S_T0}, {TS + 65536}\nv_lshrrev_b32 v31, 2, v{A_L16}\nv_add_u32 v31, s{S_T0}, v31\nglobal_store_dword v31, v120, s[{S_WS}:{S_WS+1}]')
        p.I('s_mov_b64 exec, 1')
        for q in range(5): p.I(f'global_store_dwordx4 v30, {vr(4*q,4)}, s[{S_WS}:{S_WS+1}] offset:{16*q}')
    p.I('s_branch L_end')

def relabel(p, start, old, new):
    for i in range(start, len(p.items)):
        it = p.items[i]
        if isinstance(it, Inst):
            if it.kind == 'branch' and it.target.startswith(old):
                p.items[i] = Inst(it.text.replace(old, new))
        elif it[0] == 'label' and it[1].startswith(old):
            p.items[i] = ('label', it[1].replace(old, new))

def build(cfg):
    import workers as Wk
    p = Prog()
    only = cfg.get('only')
    NARR[0] = 64 if only == 'chain' else 256
    FORCE[0] = cfg.get('force_safe', 0)
    Wk.TL[0] = cfg.get('tl', 0)
    Wk.CFG.clear(); Wk.CFG.update(cfg)
    PL[0] = cfg.get('pl', 0)
    NT.clear(); NT.update({c: 'nt' for c in cfg.get('nt', '')})
    common_prologue(p, cfg)
    p.I(f"""
L_role:
    s_cmp_ge_u32 s{S_H}, 32
    s_cbranch_scc1 L_norole
    s_cmp_ge_u32 s{S_XCC}, 2
    s_cbranch_scc1 {'L_end' if only == 'chain' else 'L_worker'}
    {'s_branch L_norole' if only == 'kv' else ''}
    s_mov_b32 s{S_M}, s{S_XCC}
    """)
    select_model(p)
    p.I(f's_cmp_eq_u32 s{S_MODE}, 1\ns_cbranch_scc1 L_chain_safe')
    chain(p, cfg, '', 'L_ch')
    if only == 'chain':
        p.L('L_norole'); p.L('L_safe'); p.L('L_chain_safe'); p.I('s_branch L_end')
        return finish(p, cfg)
    p.L('L_worker')
    p.I(f"""
    s_cmp_ge_u32 s{S_XCC}, 5
    s_cselect_b32 s{S_M}, 1, 0
    s_cselect_b32 s{S_T1}, 5, 2
    s_sub_u32 s{S_XCC}, s{S_XCC}, s{S_T1}
    """)
    if cfg.get('mix', 1):
        p.I(f"""
        s_lshl_b32 s{S_T0}, s{S_XCC}, 5
        s_add_u32 s{S_T0}, s{S_T0}, s{S_H}
        s_mul_i32 s{S_H}, s{S_T0}, 0x5556
        s_lshr_b32 s{S_H}, s{S_H}, 16
        s_mul_i32 s{S_T1}, s{S_H}, 3
        s_sub_u32 s{S_XCC}, s{S_T0}, s{S_T1}
        """)
    select_model(p)
    p.I(f"""
    s_cmp_eq_u32 s{S_XCC}, 1
    s_cbranch_scc1 L_vw
    s_cmp_eq_u32 s{S_XCC}, 2
    s_cbranch_scc1 {'L_norole' if only == 'kv' else 'L_qw'}
    """)
    p.reset_cnt(); Wk.kv_worker(p, cfg, 'k', 'L_k')
    p.I(f's_branch L_ow')
    p.L('L_vw')
    p.reset_cnt(); Wk.kv_worker(p, cfg, 'v', 'L_v')
    p.L('L_ow')
    if only == 'kv':
        Wk.ev_dump(p); p.I('s_branch L_end')
    p.reset_cnt(); Wk.o_worker(p, cfg, 'L_o')
    p.L('L_qw')
    p.reset_cnt(); Wk.q_worker(p, cfg, 'L_q')
    p.L('L_norole')
    arrive(p, 'L_n'); wait_all(p, 'L_n')
    p.I('s_branch L_end')
    p.L('L_safe')
    load_args(p)
    p.I(f"""
    s_mov_b32 s{S_MODE}, 1
    s_and_b32 s{S_XCC}, s2, 7
    s_lshr_b32 s{S_H}, s2, 3
    v_mbcnt_lo_u32_b32 v0, -1, 0
    v_mbcnt_hi_u32_b32 v0, -1, v0
    s_waitcnt vmcnt(0) lgkmcnt(0)
    s_barrier
    s_branch L_role
    """)
    p.L('L_chain_safe')
    n0 = len(p.items)
    p.reset_cnt(); chain(p, cfg, 'sc1', 'L_ch')
    relabel(p, n0, 'L_ch', 'L_cs')
    return finish(p, cfg)

def finish(p, cfg):
    p.L('L_end')
    if cfg.get('dbgt'):
        p.I(f's_load_dwordx2 s[{S_DBG}:{S_DBG+1}], s[0:1], 120\ns_waitcnt vmcnt(0) lgkmcnt(0)')
        dbgt(p, cfg, 4)
    p.L('L_end2')
    p.I('s_endpgm')
    n = p.fix_hazards(cfg.get('verbose', False))
    errs = p.check_branches()
    for e in errs: print(e)
    assert not errs
    head = f'''; @launch grid=(256,1,1) block=(256,1,1) lds=163840
.amdgcn_target "amdgcn-amd-amdhsa--gfx950"
.text
.globl {NAME}
.p2align 8
.type {NAME},@function
{NAME}:
'''
    tail = f'''.section .rodata,"a"
.p2align 6
.amdhsa_kernel {NAME}
  .amdhsa_next_free_vgpr 512
  .amdhsa_next_free_sgpr 102
  .amdhsa_accum_offset 256
  .amdhsa_group_segment_fixed_size 0
  .amdhsa_kernarg_size 136
  .amdhsa_user_sgpr_count 2
  .amdhsa_user_sgpr_kernarg_segment_ptr 1
  .amdhsa_system_sgpr_workgroup_id_x 1
  .amdhsa_float_denorm_mode_32 3
.end_amdhsa_kernel
'''
    return head + p.text() + tail

if __name__ == '__main__':
    cfg = eval(sys.argv[2]) if len(sys.argv) > 2 else {}
    open(sys.argv[1], 'w').write(build(cfg))
```
